```python
import torch

def _softmax(x, axis=-1):
    return torch.softmax(x, dim=axis)
def _gelu(x):
    return torch.nn.functional.gelu(x, approximate="tanh")
def _silu(x):
    return torch.nn.functional.silu(x)
def _sigmoid(x):
    return torch.sigmoid(x)
def _layernorm(x, axis=-1, eps=1e-5):
    m = x.mean(dim=axis, keepdim=True)
    v = x.var(dim=axis, keepdim=True, unbiased=False)
    return (x - m) / torch.sqrt(v + eps)
def _scatter_add(tgt, idx, src, axis=0):
    return tgt.clone().index_add_(axis, idx, src)
def _segment_sum(src, seg, n):
    out = torch.zeros((n,) + src.shape[1:], dtype=src.dtype)
    return out.index_add_(0, seg, src)
def _pad(x, pw):
    flat = tuple(v for pair in reversed(pw) for v in pair)
    return torch.nn.functional.pad(x, flat)

kernel_name = 'sequential_preLN__gqa_block_cached__geglu_ffn__decode'

def setup_inputs():

    _w = (lambda a: (lambda t: t.to(torch.bfloat16) if t.is_floating_point() else t)(torch.as_tensor(a)))
    def _A_setup():
        B, Sq, D = 1, 1, 576
        Hq, Hkv, Sk, Dh = 32, 16, 65536, 128
        assert Hq % Hkv == 0, (Hq, Hkv)
        return {
            "x": _w((lambda *s: torch.randn(*s, dtype=torch.bfloat16) * 0.05)(B, Sq, D)),
            "k_cache": _w((lambda *s: torch.randn(*s, dtype=torch.bfloat16) * 3.2)(B, Hkv, Sk, Dh)),
            "v_cache": _w((lambda *s: torch.randn(*s, dtype=torch.bfloat16) * 0.4)(B, Hkv, Sk, Dh)),
            "wq": _w((lambda *s: torch.randn(*s, dtype=torch.bfloat16) * 3.2)(D, Hq * Dh) * (D ** -0.5)),
            "wo": _w((lambda *s: torch.randn(*s, dtype=torch.bfloat16) * 0.4)(Hq * Dh, D) * ((Hq * Dh) ** -0.5)),
        }
    _A_in = _A_setup()

    def _B_setup():
        B, S, D, F = 1, 1, 576, 4608
        return {
            "x": _w((lambda *s: torch.randn(*s, dtype=torch.bfloat16) * 0.05)(B, S, D)),
            "w_gate": _w((lambda *s: torch.randn(*s, dtype=torch.bfloat16) * 0.05)(D, F)),
            "w_up": _w((lambda *s: torch.randn(*s, dtype=torch.bfloat16) * 0.05)(D, F)),
            "w_down": _w((lambda *s: torch.randn(*s, dtype=torch.bfloat16) * 0.05)(F, D)),
        }
    _B_in = _B_setup()

    return {
        "A_x": _A_in["x"],
        "A_k_cache": _A_in["k_cache"],
        "A_v_cache": _A_in["v_cache"],
        "A_wq": _A_in["wq"],
        "A_wo": _A_in["wo"],
        "B_x": _B_in["x"],
        "B_w_gate": _B_in["w_gate"],
        "B_w_up": _B_in["w_up"],
        "B_w_down": _B_in["w_down"],
    }

def reference(A_x, A_k_cache, A_v_cache, A_wq, A_wo, B_x, B_w_gate, B_w_up, B_w_down):
    def _A_ref(x, k_cache, v_cache, wq, wo):
        B, Sq, D = x.shape
        Hq, Dh = 32, 128
        Hkv = k_cache.shape[1]
        rep = Hq // Hkv
        q = (lambda x, *d: x.permute(*d))((x @ wq).reshape(B, Sq, Hq, Dh), 0, 2, 1, 3)
        k = (lambda x, n, axis: torch.repeat_interleave(x, n, dim=axis))(k_cache, rep, axis=1)
        v = (lambda x, n, axis: torch.repeat_interleave(x, n, dim=axis))(v_cache, rep, axis=1)
        scores = torch.einsum("bhqd,bhkd->bhqk", q, k) * (Dh ** -0.5)
        p = _softmax(scores, axis=-1)
        o = torch.einsum("bhqk,bhkd->bhqd", p, v)
        return (lambda x, *d: x.permute(*d))(o, 0, 2, 1, 3).reshape(B, Sq, Hq * Dh) @ wo

    def _B_ref(x, w_gate, w_up, w_down):
        return (_gelu(x @ w_gate) * (x @ w_up)) @ w_down

    x = A_x
    h = x + _A_ref(_layernorm(x, axis=-1), A_k_cache, A_v_cache, A_wq, A_wo)
    h2 = h + _B_ref(_layernorm(h, axis=-1), B_w_gate, B_w_up, B_w_down)
    return h2
```

```python
import re
class Asm:
    def __init__(self):
        self.lines = []
        self.uid = 0
    def __call__(self, s):
        for l in s.strip("\n").split("\n"):
            l = l.strip()
            if l: self.lines.append(l)
    def label(self, base):
        self.uid += 1
        return f"{base}_{self.uid}"
    def text(self):
        return "\n".join(("" if (l.endswith(":") or l.startswith(".") or l.startswith(";")) else "  ") + l for l in self.lines) + "\n"

REG = re.compile(r"\b([vsa])\[(\d+):(\d+)\]|\b([vsa])(\d+)\b|\b(vcc|exec|m0|scc)\b")
def regs(tok):
    out = set()
    for m in REG.finditer(tok):
        if m.group(1):
            for i in range(int(m.group(2)), int(m.group(3))+1): out.add(m.group(1)+str(i))
        elif m.group(4): out.add(m.group(4)+m.group(5))
        else: out.add(m.group(6))
    return out
TRANS = ("v_exp_f32","v_log_f32","v_rcp_f32","v_rsq_f32","v_sqrt_f32","v_sin_f32","v_cos_f32","v_rcp_iflag_f32")
class Ins:
    def __init__(self, text):
        self.text = text
        t = text.split(";")[0].strip()
        p = t.split(None, 1)
        self.op = p[0]
        ops = [x.strip() for x in re.split(r",(?![^\[]*\])", p[1])] if len(p) > 1 else []
        self.ops = ops
        op = self.op
        self.valu = op.startswith("v_") and not op.startswith("v_mfma")
        self.mfma = op.startswith("v_mfma")
        self.vmem = op.startswith(("buffer_", "global_", "flat_"))
        self.ds = op.startswith("ds_")
        self.salu = op.startswith("s_")
        self.dpp = "_dpp" in op or " row_" in t or "quad_perm" in t
        self.perm = op.startswith("v_permlane")
        self.trans = op.startswith(TRANS)
        self.lane = op.startswith(("v_readlane", "v_readfirstlane", "v_writelane"))
        self.ldsdma = self.vmem and (t.endswith(" lds") or " lds " in t or op.startswith("global_load_lds"))
        self.wr = set(); self.rd = set(); self.cs = set()
        self.states = 1
        if op == "s_nop": self.states = int(ops[0], 0) + 1
        if self.mfma:
            self.wr = regs(ops[0]); self.rd = regs(ops[1]) | regs(ops[2]); self.cs = regs(ops[3])
            self.passes = 8 if "32x32" in op else 4
        elif self.valu:
            if op.startswith("v_cmp"):
                self.wr = regs(ops[0]); self.rd = set().union(*[regs(x) for x in ops[1:]])
            elif self.perm and "swap" in op:
                self.wr = regs(ops[0]) | regs(ops[1]); self.rd = set(self.wr)
            elif op.startswith(("v_add_co", "v_sub_co", "v_addc_co", "v_subb_co", "v_div_scale")):
                self.wr = regs(ops[0]) | regs(ops[1]); self.rd = set().union(*[regs(x) for x in ops[2:]])
            else:
                self.wr = regs(ops[0]); self.rd = set().union(*[regs(x) for x in ops[1:]]) if len(ops) > 1 else set()
                if op.startswith(("v_fmac", "v_writelane", "v_dot2c")) or self.dpp: self.rd |= self.wr
                if op.startswith("v_cndmask") and len(ops) == 3: self.rd.add("vcc")
        elif self.vmem:
            allr = set().union(*[regs(x) for x in ops]) if ops else set()
            if "load" in op and not self.ldsdma:
                self.wr = regs(ops[0]); self.rd = set().union(*[regs(x) for x in ops[1:]])
            elif "atomic" in op and " sc0" in t:
                self.wr = regs(ops[0]); self.rd = allr
            else:
                self.rd = allr
            self.sdata = set()
            if "store" in op and ("x3" in op or "x4" in op):
                self.sdata = regs(ops[0]) if op.startswith("buffer") else regs(ops[1])
        elif self.ds:
            if op.startswith("ds_read") or "rtn" in op or "permute" in op or "swizzle" in op:
                self.wr = regs(ops[0]); self.rd = set().union(*[regs(x) for x in ops[1:]])
            else:
                self.rd = set().union(*[regs(x) for x in ops])
        elif self.salu:
            nodst = ("s_cmp", "s_waitcnt", "s_nop", "s_branch", "s_cbranch", "s_sleep", "s_barrier", "s_endpgm", "s_setprio", "s_bitcmp", "s_setreg")
            if not op.startswith(nodst) and ops:
                self.wr = regs(ops[0]); self.rd = set().union(*[regs(x) for x in ops[1:]]) if len(ops) > 1 else set()
                if "saveexec" in op: self.wr.add("exec")
            else:
                self.rd = set().union(*[regs(x) for x in ops]) if ops else set()
        self.branch = op.startswith(("s_branch", "s_cbranch"))
        self.uncond = op in ("s_branch", "s_endpgm")
        self.target = ops[0] if self.branch else None
def vg(s): return {r for r in s if r[0] in "va" and r != "vcc"}
def sg(s): return {r for r in s if r[0] == "s" or r == "vcc"}
def need(p, c):
    n = 0
    if p.valu:
        w = vg(p.wr)
        if c.lane and (w & c.rd): n = max(n, 1)
        if c.dpp and (w & c.rd): n = max(n, 2)
        if c.perm and (w & c.rd): n = max(n, 2)
        if c.mfma and (w & (c.rd | c.cs)): n = max(n, 2)
        if p.trans and (c.valu and not c.trans) and (w & c.rd): n = max(n, 1)
        if p.trans and (c.vmem or c.ds) and (w & c.rd): n = max(n, 1)
        sw = sg(p.wr)
        if sw:
            if c.lane and (sw & c.rd): n = max(n, 4)
            if (c.valu or c.mfma) and (sw & c.rd): n = max(n, 2)
            if c.vmem and (sw & c.rd): n = max(n, 5)
            if c.salu and (sw & c.rd): n = max(n, 1)
        if "exec" in p.wr: n = max(n, 5)
    if p.mfma:
        d = p.wr
        big = 8 if p.passes == 4 else 12
        if c.mfma:
            if d & c.rd: n = max(n, big)
            if (d & c.cs) and d != c.cs: n = max(n, big - 2)
            if (d & c.wr) and not (d == c.cs): n = max(n, big)
        elif (c.valu or c.vmem or c.ds) and (d & (c.rd | c.wr)): n = max(n, big)
        if c.valu and (p.cs & c.wr): n = max(n, 3 if p.passes == 4 else 7)
    if p.salu and "m0" in p.wr and c.ldsdma: n = max(n, 1)
    if p.vmem and getattr(p, "sdata", None) and (c.valu or c.ds or c.vmem or c.mfma) and (p.sdata & c.wr): n = max(n, 2)
    return n
def pad(lines, maxd=12):
    items = []
    for l in lines:
        if l.endswith(":") or l.startswith(".") or l.startswith(";"): items.append(l)
        else: items.append(Ins(l))
    added = 0
    changed = True
    while changed:
        changed = False
        lab = {}
        for i, it in enumerate(items):
            if isinstance(it, str) and it.endswith(":"): lab[it[:-1]] = i
        srcs = {}
        for i, it in enumerate(items):
            if isinstance(it, Ins) and it.branch and it.target in lab: srcs.setdefault(lab[it.target], []).append(i)
        def preds(i):
            out = []
            j = i - 1
            while j >= 0:
                it = items[j]
                if isinstance(it, Ins):
                    if not it.uncond: out.append(j)
                    break
                if j in srcs: out.extend(srcs[j])
                j -= 1
            return out
        for i, c in enumerate(items):
            if not isinstance(c, Ins): continue
            deficit = 0
            stack = [(j, 0) for j in preds(i)]
            seen = {}
            while stack:
                j, dist = stack.pop()
                if dist >= maxd or seen.get(j, 99) <= dist: continue
                seen[j] = dist
                p = items[j]
                deficit = max(deficit, need(p, c) - dist)
                for k in preds(j): stack.append((k, dist + p.states))
            if deficit > 0:
                items.insert(i, Ins(f"s_nop {deficit-1}"))
                added += 1
                changed = True
                break
    return [it if isinstance(it, str) else it.text for it in items], added
```

```python
import struct, sys
from asmlib import Asm, pad
KN = "sequential_preLN__gqa_block_cached__geglu_ffn__decode"
def fhex(x): return "0x%08x" % struct.unpack("<I", struct.pack("<f", x))[0]

def gen(W=20, W2=20, diag=False, NSLOT=18, sleep=1, polK='nt', polV='nt', polW='nt'):
    UNIT = 8192
    RING = NSLOT * UNIT
    M = RING
    L_LANDED = M
    L_CONS = M + 256
    L_CNT = M + 1280
    C_Q, C_Q2, C_O, C_P, C_ST, C_HN, C_ACT = [L_CNT + 4*i for i in range(7)]
    L_XN = M + 1536
    L_QRED = L_XN + 2304
    L_Q = L_QRED + 1024
    L_ORED = L_Q + 512
    L_OB = L_ORED + 4096
    L_PRED = L_OB + 512
    L_ST = L_PRED + 768
    L_HN = L_ST + 64
    L_H = L_HN + 1152
    L_ACT = L_H + 2304
    LDS = L_ACT + 64
    assert LDS <= 163840, LDS
    s0 = 256 % NSLOT
    WO_L = s0 * UNIT
    WG_L = WO_L + 24576
    WU_L = WG_L + 27648
    WD_L = WU_L + 27648
    assert WD_L + 27648 <= RING
    def need_cnt(endbyte):
        slot = (endbyte - 1) // UNIT
        unit = 256 - NSLOT + (slot - s0)
        assert unit <= 255
        return (unit >> 2) + 1
    O_E, O_RDY, O_QX, O_ML, O_OP, O_P2, O_P3 = 0, 0x1000, 0x10000, 0x40000, 0x50000, 0x90000, 0xA0000
    WS_SZ = 0x110000
    TAGC = 0x9E3779B9
    OOB = 0x7ffffff0
    a = Asm()
    NST = 16
    ST0 = 64
    def stamp(i):
        if diag: a(f"s_memrealtime s[{ST0+2*i}:{ST0+2*i+1}]")
    sTO = "s62"
    def spin_lds(vaddr, vt, st, cmp_need, sl=0, off=0):
        L, D = a.label("spin"), a.label("done")
        a(f"""{L}:
        ds_read_b32 {vt}, {vaddr} offset:{off}
        s_waitcnt lgkmcnt(0)
        v_readfirstlane_b32 {st}, {vt}
        s_cmp_ge_i32 {st}, {cmp_need}
        s_cbranch_scc1 {D}
        s_sub_u32 {sTO}, {sTO}, 1
        s_cbranch_scc1 L_end""")
        if sl: a(f"s_sleep {sl}")
        a(f"s_branch {L}\n{D}:")
    def srd(r, lo, hi, nrec, addlo=None):
        if addlo is None:
            a(f"s_mov_b32 s{r}, s{lo}\ns_mov_b32 s{r+1}, s{hi}")
        else:
            a(f"s_add_u32 s{r}, s{lo}, {addlo}\ns_addc_u32 s{r+1}, s{hi}, 0")
        a(f"s_mov_b32 s{r+2}, {nrec}\ns_mov_b32 s{r+3}, 0x20000")

    a(f"; @launch grid=(256,1,1) block=(320,1,1) lds={LDS}")
    a(f""".amdgcn_target "amdgcn-amd-amdhsa--gfx950"
    .text
    .globl {KN}_kernel
    .p2align 8
    .type {KN}_kernel,@function
    {KN}_kernel:
    s_cmp_ge_u32 s2, 256
    s_cbranch_scc1 L_end
    s_load_dwordx16 s[4:19], s[0:1], 0
    s_load_dwordx8 s[20:27], s[0:1], 64""")
    if diag:
        for i in range(1, NST): a(f"s_mov_b64 s[{ST0+2*i}:{ST0+2*i+1}], 0")
    stamp(0)
    a(f"""v_lshrrev_b32 v2, 6, v0
    v_and_b32 v1, 63, v0
    v_readfirstlane_b32 s3, v2
    s_mov_b32 {sTO}, 0x40000
    v_lshrrev_b32 v2, 4, v1
    v_and_b32 v3, 15, v1
    s_cmp_lg_u32 s3, 0
    s_cbranch_scc1 L_cons""")
    def roles():
        a("""s_and_b32 s52, s2, 7
        s_lshr_b32 s53, s2, 3
        s_cmp_ge_u32 s53, 12
        s_cselect_b32 s54, 8, 0
        s_cselect_b32 s55, 12, 0
        s_add_u32 s54, s54, s52
        s_sub_u32 s55, s53, s55
        s_mul_i32 s56, s52, 24
        s_add_u32 s56, s56, s53
        s_sub_u32 s56, s56, 8""")
    j0 = (W + 7) % 8
    lag = (W + 7 - j0) // 8
    a(f"""s_setprio 3
    v_lshlrev_b32 v4, 1, v2
    v_xor_b32 v4, v4, v3
    v_lshlrev_b32 v4, 4, v4
    v_lshl_add_u32 v4, v2, 8, v4
    v_xor_b32 v5, 0x80, v4
    s_lshl_b32 s57, s2, 20
    s_mov_b32 s58, 0
    s_mov_b32 s59, 4096
    s_mov_b32 m0, 0
    s_waitcnt lgkmcnt(0)""")
    srd(28, 6, 7, "0x100000", "s57")
    def unit_loads(sr, pub, waits=True):
        for j in range(8):
            if j == 4: a("s_add_u32 m0, m0, 4096")
            if waits: a(f"s_waitcnt vmcnt({W-1})")
            a(f"buffer_load_dwordx4 v{4 + (j&1)}, s[{sr}:{sr+3}], s{58 + (j>>2)} offen offset:{(j&3)*1024} {polK if sr == 28 else polV} lds")
            if pub and j == j0:
                a("v_mov_b32 v7, s60\nds_write_b32 v6, v7")
        a("s_add_u32 s58, s58, 8192\ns_add_u32 s59, s59, 8192")
    unit_loads(28, False, False)
    a("s_add_u32 m0, m0, 4096")
    unit_loads(28, False, W <= 16)
    srd(32, 8, 9, "0x100000", "s57")
    roles()
    a(f"""s_mul_i32 s57, s54, {256*1152}
    s_mul_i32 s61, s55, 96
    s_add_u32 s57, s57, s61
    s_sub_u32 s61, {4096*1152}, s57""")
    srd(36, 12, 13, "s61", "s57")
    a(f"""s_mul_i32 s57, s56, 48
    s_sub_u32 s61, {576*9216}, s57""")
    srd(40, 16, 17, "s61", "s57")
    srd(44, 18, 19, "s61", "s57")
    a(f"s_mul_i32 s57, s56, {24*1152}")
    srd(48, 20, 21, str(24*1152), "s57")
    for i in range(3):
        a(f"""v_add_u32 v8, {64*i}, v1
        v_mul_u32_u24 v9, 10923, v8
        v_lshrrev_b32 v9, 16, v9
        v_mul_u32_u24 v10, 6, v9
        v_sub_u32 v10, v8, v10
        v_mul_u32_u24 v9, 1152, v9
        v_lshl_add_u32 v{12+i}, v10, 4, v9
        v_mul_u32_u24 v9, 21846, v8
        v_lshrrev_b32 v9, 16, v9
        v_mul_u32_u24 v10, 3, v9
        v_sub_u32 v10, v8, v10
        v_mul_u32_u24 v9, 9216, v9
        v_lshl_add_u32 v{16+i}, v10, 4, v9""")
    a(f"""v_lshlrev_b32 v20, 4, v1
    v_lshlrev_b32 v6, 2, v1
    v_add_u32 v6, {L_LANDED}, v6
    v_mov_b32 v22, 0
    v_mov_b32 v21, {L_CONS}
    s_mov_b32 s63, 2
    s_mov_b32 s60, {2 - lag + 1}
    s_mov_b32 s57, {2*UNIT}
    s_mov_b32 s61, 0
    s_barrier""")
    for ph, sr, uend in ((0, 28, 128), (1, 32, 256)):
        L, SL, BK = a.label("ld"), a.label("ldslow"), a.label("ldback")
        if ph == 1:
            a("s_mov_b32 s58, 0\ns_mov_b32 s59, 4096")
            stamp(1)
        a(f"""{L}:
        s_waitcnt lgkmcnt(0)
        v_readfirstlane_b32 s52, v22
        s_cmp_ge_i32 s52, s61
        s_cbranch_scc1 {BK}""")
        spin_lds("v21", "v22", "s52", "s61", 1)
        a(f"""{BK}:
        s_mov_b32 m0, s57
        s_sub_u32 s52, s63, {NSLOT-1}
        s_ashr_i32 s61, s52, 2
        s_add_u32 s61, s61, 1
        s_and_b32 s52, s52, 3
        s_lshl_b32 s52, s52, 8
        s_add_u32 s52, s52, {L_CONS}
        v_mov_b32 v21, s52
        ds_read_b32 v22, v21""")
        unit_loads(sr, True)
        a(f"""s_add_u32 s57, s57, {UNIT}
        s_cmp_ge_u32 s57, {RING}
        s_cselect_b32 s57, 0, s57
        s_add_u32 s60, s60, 1
        s_add_u32 s63, s63, 1
        s_cmp_lt_u32 s63, {uend}
        s_cbranch_scc1 {L}""")
    stamp(2)
    a(f"""v_mov_b32 v21, {L_CONS}""")
    def free_check(cnt):
        L, D = a.label("fc"), a.label("fcd")
        a(f"""{L}:
        ds_read_b32 v24, v21
        ds_read_b32 v25, v21 offset:256
        ds_read_b32 v26, v21 offset:512
        ds_read_b32 v27, v21 offset:768
        s_waitcnt lgkmcnt(0)
        v_min_i32 v24, v24, v25
        v_min3_i32 v24, v24, v26, v27
        v_readfirstlane_b32 s52, v24
        s_cmp_ge_i32 s52, {cnt}
        s_cbranch_scc1 {D}
        s_sub_u32 {sTO}, {sTO}, 1
        s_cbranch_scc1 L_end
        s_branch {L}
        {D}:""")
    def weights(doO, doF):
        seq = []
        if doO:
            seq.append(("check", need_cnt(WO_L + 24576)))
            for i in range(24): seq.append(("load", WO_L + 1024*i, 12 + i % 3, 36, (i//3) * 32 * 1152))
            seq.append(("mark", 257))
        if doF:
            seq.append(("check", need_cnt(WG_L + 27648)))
            for i in range(27): seq.append(("load", WG_L + 1024*i, 16 + i % 3, 40, (i//3) * 64 * 9216))
            seq.append(("check", need_cnt(WU_L + 27648)))
            for i in range(27): seq.append(("load", WU_L + 1024*i, 16 + i % 3, 44, (i//3) * 64 * 9216))
            seq.append(("mark", 258))
            seq.append(("check", need_cnt(WD_L + 27648)))
            for i in range(27): seq.append(("load", WD_L + 1024*i, 20, 48, i * 1024))
            seq.append(("mark", 259))
        ev = [(8*u + 7, u + 1) for u in range(256 - lag, 256)]
        n = 2048
        for it in seq:
            if it[0] == "load": n += 1
            elif it[0] == "mark": ev.append((n - 1, it[1]))
        ev.sort()
        n = 2048
        def publish(v): a(f"v_mov_b32 v7, {v}\nds_write_b32 v6, v7")
        for it in seq:
            if it[0] == "check": free_check(it[1])
            elif it[0] == "load":
                _, la, vr, sr, so = it
                w = W if n - W < 2047 else W2
                a(f"s_mov_b32 m0, {la}\ns_mov_b32 s58, {so}\ns_waitcnt vmcnt({w-1})")
                a(f"buffer_load_dwordx4 v{vr}, s[{sr}:{sr+3}], s58 offen {polW} lds")
                last = None
                while ev and ev[0][0] <= n - w: last = ev.pop(0)[1]
                if last is not None: publish(last)
                n += 1
        while ev:
            idx, v = ev.pop(0)
            a(f"s_waitcnt vmcnt({n - 1 - idx})")
            publish(v)
        a("s_waitcnt lgkmcnt(0)")
        stamp(3)
        a("s_branch L_fin")
    LO, LF = a.label("wO"), a.label("wF")
    a(f"s_cmp_lt_u32 s2, 64\ns_cbranch_scc1 {LO}\ns_cmp_ge_u32 s2, 192\ns_cbranch_scc1 {LF}")
    weights(True, True)
    a(f"{LO}:"); weights(True, False)
    a(f"{LF}:"); weights(False, True)

    vTAG, vXR, vQ, vAK, vAV, vA, vF, vD, vSA, vS, vP, vO = 16, 18, 20, 36, 40, 42, 52, 84, 92, 100, 132, 148
    vLND, vCON, vG = 180, 181, 184
    sCW, sHK = "s3", "s57"
    WS, XS, WQS, OUTS = "s[28:31]", "s[32:35]", "s[36:39]", "s[40:43]"
    def one(x): a(f"s_mov_b64 exec, 1\n{x}\ns_mov_b64 exec, -1")
    def arrive_last(cnt, notlast, n=4):
        a(f"v_mov_b32 v4, {cnt}\nv_mov_b32 v5, 1\ns_mov_b64 exec, 1\nds_add_rtn_u32 v5, v4, v5\ns_waitcnt lgkmcnt(0)\nv_readfirstlane_b32 s52, v5\ns_mov_b64 exec, -1")
        a(f"s_cmp_lg_u32 s52, {n-1}\ns_cbranch_scc1 {notlast}")
    def arrive(cnt):
        a(f"v_mov_b32 v4, {cnt}\nv_mov_b32 v5, 1"); one("ds_add_u32 v4, v5")
    def waitcnt(cnt, n):
        a(f"v_mov_b32 v4, {cnt}"); spin_lds("v4", "v5", "s52", n)
    def red63(op, *vs):
        for m in ("row_ror:8", "row_ror:4", "row_ror:2", "row_ror:1"):
            for v in vs: a(f"{op}_dpp {v}, {v}, {v} {m} row_mask:0xf bank_mask:0xf")
        for v in vs: a(f"{op}_dpp {v}, {v}, {v} row_bcast:15 row_mask:0xa bank_mask:0xf")
        for v in vs: a(f"{op}_dpp {v}, {v}, {v} row_bcast:31 row_mask:0xc bank_mask:0xf")
    def red_par(op, v, t):
        for m in ("row_ror:8", "row_ror:4", "row_ror:2"):
            a(f"{op}_dpp {v}, {v}, {v} {m} row_mask:0xf bank_mask:0xf")
        a(f"v_mov_b32 {t}, {v}\nv_permlane16_swap_b32 {t}, {v}\n{op} {v}, {v}, {t}")
        a(f"v_mov_b32 {t}, {v}\nv_permlane32_swap_b32 {t}, {v}\n{op} {v}, {v}, {t}")
    def rnd2(x, y, t):
        a(f"v_cvt_pk_bf16_f32 {t}, {x}, {y}\nv_lshlrev_b32 {x}, 16, {t}\nv_and_b32 {y}, 0xffff0000, {t}")
    def rnd1(x):
        a(f"v_cvt_pk_bf16_f32 {x}, {x}, {x}\nv_and_b32 {x}, 0xffff0000, {x}")
    def tr4(x):
        a(f"""v_permlane32_swap_b32 v{x}, v{x+1}
        v_permlane32_swap_b32 v{x+2}, v{x+3}
        v_add_f32 v{x}, v{x}, v{x+1}
        v_add_f32 v{x+2}, v{x+2}, v{x+3}
        v_permlane16_swap_b32 v{x}, v{x+2}
        v_add_f32 v{x}, v{x}, v{x+2}""")
    def ln_scale(mean, var, t):
        rnd2(mean, var, t)
        a(f"v_add_f32 {var}, {fhex(1e-5)}, {var}"); rnd1(var)
        a(f"v_sqrt_f32 {var}, {var}"); rnd1(var)
        a(f"v_rcp_f32 {var}, {var}")
    def retry(L):
        a(f"s_sub_u32 {sTO}, {sTO}, 1\ns_cbranch_scc1 L_end\ns_branch {L}")
    def poison_check(first, n, sums, L, OK):
        a(f"v_cmp_u_f32 vcc, v{sums}, v{sums+1}\nv_cmp_u_f32 s[52:53], v{sums+2}, v{sums+3}\ns_or_b64 vcc, vcc, s[52:53]\ns_cbranch_vccz {OK}")
        a(f"v_max_u32 v4, v{first}, v{first+1}")
        for i in range(2, n, 2): a(f"v_max3_u32 v4, v4, v{first+i}, v{first+i+1}")
        a(f"v_cmp_eq_u32 vcc, -1, v4\ns_cbranch_vccz {OK}")
        retry(L)
        a(f"{OK}:")

    a(f"""L_cons:
    s_sub_u32 s3, s3, 1
    s_lshr_b32 {sHK}, s2, 4
    v_lshlrev_b32 v4, 4, v1
    v_lshlrev_b32 v5, 1, v1
    v_lshlrev_b32 v6, 13, v2
    v_lshl_add_u32 v6, v3, 3, v6
    s_and_b32 s52, s2, 3
    s_mul_i32 s58, s52, 144
    s_mul_i32 s53, s3, 36
    s_add_u32 s58, s58, s53
    s_lshl_b32 s52, s58, 13
    s_lshr_b32 s53, s2, 2
    s_lshl_b32 s53, s53, 7
    s_add_u32 s59, s52, s53
    s_sub_u32 s60, {576*8192}, s59
    v_mov_b32 v7, 0
    s_waitcnt lgkmcnt(0)""")
    srd(28, 26, 27, hex(WS_SZ))
    srd(32, 4, 5, "1152")
    srd(36, 10, 11, "s60", "s59")
    srd(40, 22, 23, "1152")
    a(f"""buffer_load_dwordx4 v[70:73], v4, {XS}, 0 offen
    buffer_load_ushort v74, v5, {XS}, 0 offen offset:1024
    buffer_load_dword v{vTAG}, v7, {WS}, 0 offen offset:{O_E} sc0 sc1
    s_mov_b32 s52, 0""")
    for k in range(9):
        a(f"buffer_load_dwordx2 v[{52+2*k}:{53+2*k}], v6, {WQS}, s52 offen nt")
        if k < 8: a("s_add_u32 s52, s52, 32768")
    a(f"""s_mul_i32 s52, s3, 288
    v_lshlrev_b32 v8, 3, v1
    v_add_u32 v8, s52, v8
    v_cmp_gt_u32 s[44:45], 36, v1
    v_mov_b32 v9, {OOB}
    v_cndmask_b32 v8, v9, v8, s[44:45]
    buffer_load_dwordx2 v[{vXR}:{vXR+1}], v8, {XS}, 0 offen""")
    roles()
    LZ = a.label("nz")
    a(f"""v_lshlrev_b32 v{vLND}, 2, v1
    v_add_u32 v{vLND}, {L_LANDED}, v{vLND}
    s_lshl_b32 s52, s3, 8
    s_add_u32 s52, s52, 256
    v_add_u32 v{vCON}, s52, v{vLND}
    s_cmp_lg_u32 s3, 0
    s_cbranch_scc1 {LZ}""")
    for i in range(6): a(f"ds_write_b32 v{vLND}, v7 offset:{256*i}")
    a(f"s_waitcnt lgkmcnt(0)\n{LZ}:\ns_barrier")
    a(f"""v_and_b32 v8, 7, v3
    v_lshlrev_b32 v8, 1, v8
    v_xor_b32 v8, v8, v2
    v_lshlrev_b32 v8, 4, v8
    v_lshl_add_u32 v{vAK}, v3, 8, v8
    v_xor_b32 v{vAK+1}, 64, v{vAK}
    v_xor_b32 v{vAK+2}, 0x80, v{vAK}
    v_xor_b32 v{vAK+3}, 0xc0, v{vAK}
    v_lshrrev_b32 v8, 2, v1
    v_and_b32 v9, 7, v8
    v_lshlrev_b32 v9, 5, v9
    v_lshl_add_u32 v9, v8, 8, v9
    v_and_b32 v8, 3, v1
    v_lshl_add_u32 v{vAV}, v8, 3, v9""")
    X = 76
    a("s_waitcnt vmcnt(0)")
    stamp(1)
    for i in range(4):
        a(f"v_lshlrev_b32 v{X+2*i}, 16, v{70+i}\nv_and_b32 v{X+2*i+1}, 0xffff0000, v{70+i}")
    a(f"v_lshlrev_b32 v{X+8}, 16, v74")
    a(f"v_add_u32 v{vTAG}, {hex(TAGC)}, v{vTAG}")
    a(f"v_add_f32 v8, v{X}, v{X+1}")
    for i in range(2, 9): a(f"v_add_f32 v8, v8, v{X+i}")
    red63("v_add_f32", "v8")
    a(f"v_readlane_b32 s52, v8, 63\nv_mov_b32 v8, {fhex(1/576)}\nv_mul_f32 v8, s52, v8")
    a(f"v_sub_f32 v10, v{X}, v8\nv_mul_f32 v9, v10, v10")
    for i in range(1, 9): a(f"v_sub_f32 v10, v{X+i}, v8\nv_fmac_f32 v9, v10, v10")
    red63("v_add_f32", "v9")
    a(f"v_readlane_b32 s52, v9, 63\nv_mov_b32 v9, {fhex(1/576)}\nv_mul_f32 v9, s52, v9")
    ln_scale("v8", "v9", "v10")
    for i in range(9): a(f"v_sub_f32 v{X+i}, v{X+i}, v8")
    for i in range(0, 8, 2): rnd2(f"v{X+i}", f"v{X+i+1}", "v10")
    rnd1(f"v{X+8}")
    for i in range(9): a(f"v_mul_f32 v{X+i}, v{X+i}, v9")
    for i in range(0, 8, 2): rnd2(f"v{X+i}", f"v{X+i+1}", "v10")
    rnd1(f"v{X+8}")
    a(f"""v_lshlrev_b32 v8, 5, v1
    v_add_u32 v8, {L_XN}, v8
    ds_write_b128 v8, v[{X}:{X+3}]
    ds_write_b128 v8, v[{X+4}:{X+7}] offset:16
    v_lshlrev_b32 v8, 2, v1
    v_add_u32 v8, {L_XN+2048}, v8
    ds_write_b32 v8, v{X+8}
    v_add_u32 v8, s58, v2
    v_lshlrev_b32 v8, 2, v8
    v_add_u32 v8, {L_XN}, v8
    s_waitcnt lgkmcnt(0)""")
    for k in range(9): a(f"ds_read_b32 v{X+k}, v8 offset:{16*k}")
    for i in range(4): a(f"v_mov_b32 v{12+i}, 0")
    a("s_waitcnt lgkmcnt(0)")
    for k in range(9):
        w = 52 + 2*k
        a(f"""v_lshlrev_b32 v8, 16, v{w}
        v_and_b32 v9, 0xffff0000, v{w}
        v_lshlrev_b32 v10, 16, v{w+1}
        v_and_b32 v11, 0xffff0000, v{w+1}
        v_fmac_f32 v12, v8, v{X+k}
        v_fmac_f32 v13, v9, v{X+k}
        v_fmac_f32 v14, v10, v{X+k}
        v_fmac_f32 v15, v11, v{X+k}""")
    tr4(12)
    a(f"""v_and_b32 v8, 1, v2
    v_lshlrev_b32 v8, 1, v8
    v_lshrrev_b32 v9, 1, v2
    v_or_b32 v8, v8, v9
    v_lshl_add_u32 v17, v3, 2, v8
    s_lshl_b32 s52, s3, 8
    s_add_u32 s52, s52, {L_QRED}
    v_lshl_add_u32 v8, v17, 2, s52
    ds_write_b32 v8, v12""")
    NL = a.label("qnl")
    arrive_last(C_Q, NL)
    a(f"""v_lshlrev_b32 v8, 2, v1
    v_add_u32 v8, {L_QRED}, v8
    ds_read_b32 v12, v8
    ds_read_b32 v13, v8 offset:256
    ds_read_b32 v14, v8 offset:512
    ds_read_b32 v15, v8 offset:768
    s_lshl_b32 s52, s2, 9
    s_add_u32 s52, s52, {O_QX}
    v_lshlrev_b32 v8, 3, v1
    s_waitcnt lgkmcnt(0)
    v_add_f32 v12, v12, v13
    v_add_f32 v14, v14, v15
    v_add_f32 v12, v12, v14
    v_mov_b32 v13, v{vTAG}
    buffer_store_dwordx2 v[12:13], v8, {WS}, s52 offen sc0 sc1""")
    a(f"{NL}:")
    stamp(2)
    P1, P23, PD = a.label("p1"), a.label("p23"), a.label("pd")
    a(f"""v_lshlrev_b32 v4, 4, v1
    v_mov_b32 v9, {OOB}
    v_mov_b32 v12, -1
    v_mov_b32 v13, -1
    v_mov_b32 v14, -1
    v_mov_b32 v15, -1
    s_cmp_eq_u32 s3, 1
    s_cbranch_scc1 {P1}
    s_cmp_gt_u32 s3, 1
    s_cbranch_scc1 {P23}
    s_lshl_b32 s52, s2, 10
    s_add_u32 s52, s52, {O_OP}
    buffer_store_dwordx4 v[12:15], v4, {WS}, s52 offen sc0 sc1
    s_branch {PD}
    {P1}:
    s_lshl_b32 s52, s2, 6
    s_add_u32 s52, s52, {O_ML}
    s_mov_b64 exec, 0xf
    buffer_store_dwordx4 v[12:15], v4, {WS}, s52 offen sc0 sc1
    s_mov_b64 exec, -1""")
    PX = a.label("px")
    a(f"""s_cmp_ge_u32 s2, 192
    s_cbranch_scc1 {PX}
    s_mul_i32 s52, s54, 2304
    s_mul_i32 s53, s55, 192
    s_add_u32 s52, s52, s53
    s_add_u32 s52, s52, {O_P2}
    s_mov_b64 exec, 0xfff
    buffer_store_dwordx4 v[12:15], v4, {WS}, s52 offen sc0 sc1
    s_mov_b64 exec, -1
    {PX}:
    {P23}:
    s_cmp_lt_u32 s2, 64
    s_cbranch_scc1 {PD}
    s_sub_u32 s52, s3, 2
    s_cmp_eq_u32 s3, 1
    s_cselect_b32 s52, 2, s52
    s_lshl_b32 s52, s52, 6
    v_add_u32 v8, s52, v1
    v_cmp_gt_u32 vcc, 144, v8
    v_mul_u32_u24 v8, 3072, v8
    v_cndmask_b32 v8, v9, v8, vcc
    s_lshl_b32 s52, s56, 4
    s_add_u32 s52, s52, {O_P3}
    buffer_store_dwordx4 v[12:15], v8, {WS}, s52 offen sc0 sc1
    {PD}:""")
    LQ, LQD = a.label("qg"), a.label("qgd")
    a(f"""s_lshl_b32 s52, {sHK}, 13
    s_lshl_b32 s53, s3, 11
    s_add_u32 s58, s52, s53
    s_add_u32 s58, s58, {O_QX}
    v_lshlrev_b32 v8, 3, v1
    {LQ}:""")
    for k in range(4): a(f"buffer_load_dwordx2 v[{52+2*k}:{53+2*k}], v8, {WS}, s58 offen offset:{512*k} sc0 sc1")
    a(f"""s_waitcnt vmcnt(0)
    v_cmp_ne_u32 vcc, v53, v{vTAG}
    v_cmp_ne_u32 s[52:53], v55, v{vTAG}
    s_or_b64 vcc, vcc, s[52:53]
    v_cmp_ne_u32 s[52:53], v57, v{vTAG}
    s_or_b64 vcc, vcc, s[52:53]
    v_cmp_ne_u32 s[52:53], v59, v{vTAG}
    s_or_b64 vcc, vcc, s[52:53]
    s_cbranch_vccz {LQD}""")
    retry(LQ)
    a(f"""{LQD}:
    v_add_f32 v52, v52, v54
    v_add_f32 v56, v56, v58
    v_add_f32 v52, v52, v56
    v_cvt_pk_bf16_f32 v52, v52, v52
    s_lshl_b32 s52, s3, 7
    s_add_u32 s52, s52, {L_Q}
    v_lshl_add_u32 v8, v1, 1, s52
    ds_write_b16 v8, v52""")
    arrive(C_Q2); waitcnt(C_Q2, 4)
    LNR = a.label("nr")
    a(f"s_cmp_lg_u32 s3, 0\ns_cbranch_scc1 {LNR}\ns_lshl_b32 s52, s2, 2\ns_add_u32 s52, s52, {O_RDY}")
    one(f"buffer_store_dword v{vTAG}, v7, {WS}, s52 offen sc0 sc1")
    a(f"{LNR}:")
    a(f"""v_and_b32 v8, 1, v3
    v_lshlrev_b32 v8, 8, v8
    v_lshl_add_u32 v8, v2, 4, v8
    v_add_u32 v8, {L_Q}, v8""")
    for i in range(4): a(f"ds_read_b128 v[{vQ+4*i}:{vQ+4*i+3}], v8 offset:{64*i}")
    stamp(3)
    a(f"""s_mov_b32 s58, s3
    s_lshl_b32 s59, s3, 13
    s_mov_b32 s60, 0
    s_mov_b32 s46, 0x00030003
    s_mov_b32 s47, 0x00030003""")
    def next_unit():
        a(f"""s_add_u32 s58, s58, 4
        s_add_u32 s59, s59, {4*UNIT}
        s_cmp_ge_u32 s59, {RING}
        s_cselect_b32 s52, {RING}, 0
        s_sub_u32 s59, s59, s52""")
    LK, LKN = a.label("kl"), a.label("kn")
    a(f"{LK}:\ns_add_u32 s61, s58, 1")
    spin_lds(f"v{vLND}", "v4", "s52", "s61", sleep)
    for i in range(4): a(f"v_add_u32 v{vA+i}, s59, v{vAK+i}")
    for T in range(2):
        for i in range(4): a(f"ds_read_b128 v[{vF+16*T+4*i}:{vF+16*T+4*i+3}], v{vA+i} offset:{4096*T}")
    a(f"s_add_u32 s60, s60, 1\nv_mov_b32 v4, s60\ns_waitcnt lgkmcnt(0)\nds_write_b32 v{vCON}, v4")
    for i in range(4):
        for T in range(2):
            c = "0" if i == 0 else f"v[{vD+4*T}:{vD+4*T+3}]"
            a(f"v_mfma_f32_16x16x32_bf16 v[{vD+4*T}:{vD+4*T+3}], v[{vF+16*T+4*i}:{vF+16*T+4*i+3}], v[{vQ+4*i}:{vQ+4*i+3}], {c}")
    next_unit()
    for r in range(8): a(f"v_cndmask_b32 v{vSA+r}, v{vSA+r}, v{vD+r}, s[46:47]")
    a(f"""s_lshl_b64 s[46:47], s[46:47], 2
    s_and_b32 s52, s60, 7
    s_cbranch_scc1 {LK}
    s_mov_b32 s46, 0x00030003
    s_mov_b32 s47, 0x00030003""")
    for r in range(24): a(f"v_mov_b32 v{vS+r}, v{vS+8+r}")
    for r in range(0, 8, 2): rnd2(f"v{vSA+r}", f"v{vSA+r+1}", "v4")
    for r in range(8): a(f"v_mul_f32 v{vS+24+r}, {fhex(128**-0.5)}, v{vSA+r}")
    for r in range(0, 8, 2): rnd2(f"v{vS+24+r}", f"v{vS+24+r+1}", "v4")
    a(f"s_cmp_lt_u32 s60, 32\ns_cbranch_scc1 {LK}")
    stamp(4)
    LOG2E = fhex(1.4426950408889634)
    a(f"v_max3_f32 v8, v{vS}, v{vS+1}, v{vS+2}")
    for r in range(3, 31, 2): a(f"v_max3_f32 v8, v8, v{vS+r}, v{vS+r+1}")
    a(f"v_max_f32 v8, v8, v{vS+31}")
    red_par("v_max_f32", "v8", "v4")
    a("v_mov_b32 v9, 0")
    for r in range(32):
        t = 10 + (r & 3)
        a(f"v_sub_f32 v{t}, v{vS+r}, v8\nv_mul_f32 v{t}, {LOG2E}, v{t}\nv_exp_f32 v{t}, v{t}")
        if r: a(f"v_add_f32 v9, v9, v{10 + ((r-1)&3)}")
    a("v_add_f32 v9, v9, v13")
    red_par("v_add_f32", "v9", "v4")
    a(f"""v_min_u32 v8, -2, v8
    v_min_u32 v9, -2, v9
    s_lshl_b32 s52, s2, 6
    s_lshl_b32 s53, s3, 4
    s_add_u32 s52, s52, s53
    s_add_u32 s52, s52, {O_ML}
    v_lshlrev_b32 v4, 3, v1
    s_mov_b64 exec, 3
    buffer_store_dwordx2 v[8:9], v4, {WS}, s52 offen sc0 sc1
    s_mov_b64 exec, -1
    v_lshlrev_b32 v4, 4, v1""")
    LR, LRD = a.label("rdy"), a.label("rdyd")
    a(f"""s_mov_b32 s53, {O_RDY}
    {LR}:
    buffer_load_dwordx4 v[12:15], v4, {WS}, s53 offen sc0 sc1""")
    a(f"""s_waitcnt vmcnt(0)
    v_xor_b32 v12, v12, v{vTAG}
    v_xor_b32 v13, v13, v{vTAG}
    v_xor_b32 v14, v14, v{vTAG}
    v_xor_b32 v15, v15, v{vTAG}
    v_or3_b32 v12, v12, v13, v14
    v_or_b32 v12, v12, v15
    v_cmp_ne_u32 vcc, 0, v12
    s_cbranch_vccz {LRD}""")
    retry(LR)
    LE = a.label("noe")
    a(f"""{LRD}:
    s_or_b32 s52, s2, s3
    s_cbranch_scc1 {LE}
    v_subrev_u32 v12, {hex(TAGC-1)}, v{vTAG}""")
    one(f"buffer_store_dword v12, v7, {WS}, 0 offen offset:{O_E} sc0 sc1")
    LM, LMD = a.label("ml"), a.label("mld")
    a(f"""{LE}:
    s_lshl_b32 s53, {sHK}, 10
    s_add_u32 s53, s53, {O_ML}
    {LM}:
    buffer_load_dwordx4 v[12:15], v4, {WS}, s53 offen sc0 sc1
    s_waitcnt vmcnt(0)
    v_max_u32 v8, v12, v13
    v_max3_u32 v8, v8, v14, v15
    v_cmp_eq_u32 vcc, -1, v8
    s_cbranch_vccz {LMD}""")
    retry(LM)
    a(f"{LMD}:")
    stamp(5)
    a("v_mov_b32 v8, v12\nv_mov_b32 v9, v14")
    red63("v_max_f32", "v8", "v9")
    a(f"""v_readlane_b32 s52, v8, 63
    v_readlane_b32 s53, v9, 63
    v_subrev_f32 v12, s52, v12
    v_subrev_f32 v14, s53, v14
    v_mul_f32 v12, {LOG2E}, v12
    v_mul_f32 v14, {LOG2E}, v14
    v_exp_f32 v12, v12
    v_exp_f32 v14, v14
    v_mul_f32 v13, v13, v12
    v_mul_f32 v15, v15, v14""")
    red63("v_add_f32", "v13", "v15")
    a(f"""v_readlane_b32 s48, v13, 63
    v_readlane_b32 s49, v15, 63
    s_mov_b32 s46, 0xaaaaaaaa
    s_mov_b32 s47, 0xaaaaaaaa
    v_mov_b32 v8, s52
    v_mov_b32 v10, s53
    v_mov_b32 v9, s48
    v_mov_b32 v11, s49
    v_cndmask_b32 v8, v8, v10, s[46:47]
    v_cndmask_b32 v9, v9, v11, s[46:47]
    v_rcp_f32 v10, v9
    v_fma_f32 v11, -v9, v10, 1.0
    v_fma_f32 v9, v11, v10, v10""")
    for r in range(32): a(f"v_sub_f32 v{vS+r}, v{vS+r}, v8\nv_mul_f32 v{vS+r}, {LOG2E}, v{vS+r}\nv_exp_f32 v{vS+r}, v{vS+r}")
    for r in range(32): a(f"v_mul_f32 v{vS+r}, v{vS+r}, v9")
    for r in range(16): a(f"v_cvt_pk_bf16_f32 v{vP+r}, v{vS+2*r}, v{vS+2*r+1}")
    for r in range(32): a(f"v_mov_b32 v{vO+r}, 0")
    stamp(6)
    LV = a.label("vl")
    a(f"{LV}:\ns_add_u32 s61, s58, 1")
    spin_lds(f"v{vLND}", "v4", "s52", "s61", sleep)
    a(f"v_add_u32 v{vA}, s59, v{vAV}")
    for b in range(1, 8): a(f"v_xor_b32 v{vA+b}, {hex(32*b)}, v{vA}")
    for b in range(8):
        for T in range(2): a(f"ds_read_b64_tr_b16 v[{vF+4*b+2*T}:{vF+4*b+2*T+1}], v{vA+b} offset:{4096*T}")
    a(f"s_add_u32 s60, s60, 1\nv_mov_b32 v4, s60")
    for b in range(8):
        a(f"s_waitcnt lgkmcnt({14-2*b})")
        a(f"v_mfma_f32_16x16x32_bf16 v[{vO+4*b}:{vO+4*b+3}], v[{vF+4*b}:{vF+4*b+3}], v[{vP}:{vP+3}], v[{vO+4*b}:{vO+4*b+3}]")
    a(f"ds_write_b32 v{vCON}, v4")
    next_unit()
    for r in range(4): a(f"v_mov_b32_dpp v{vP+r}, v{vP+r} row_shl:2 row_mask:0xf bank_mask:0xf")
    a(f"s_and_b32 s52, s60, 7\ns_cbranch_scc1 {LV}")
    for r in range(12): a(f"v_mov_b32 v{vP+r}, v{vP+4+r}")
    a(f"s_cmp_lt_u32 s60, 64\ns_cbranch_scc1 {LV}")
    stamp(7)
    a(f"""s_lshl_b32 s52, s3, 10
    s_add_u32 s52, s52, {L_ORED}
    v_lshlrev_b32 v8, 9, v3
    v_lshl_add_u32 v8, v2, 4, v8
    v_add_u32 v8, s52, v8
    s_mov_b32 s46, 0x00030003
    s_mov_b32 s47, 0x00030003
    s_mov_b64 exec, s[46:47]""")
    for b in range(8): a(f"ds_write_b128 v8, v[{vO+4*b}:{vO+4*b+3}] offset:{64*b}")
    a("s_mov_b64 exec, -1")
    NL = a.label("onl")
    arrive_last(C_O, NL)
    a(f"v_lshlrev_b32 v8, 4, v1\nv_add_u32 v9, {L_ORED}, v8")
    for w in range(4): a(f"ds_read_b128 v[{vG+4*w}:{vG+4*w+3}], v9 offset:{1024*w}")
    a(f"""s_lshl_b32 s52, s2, 10
    s_add_u32 s52, s52, {O_OP}
    s_waitcnt lgkmcnt(0)
    v_pk_add_f32 v[{vG}:{vG+1}], v[{vG}:{vG+1}], v[{vG+4}:{vG+5}]
    v_pk_add_f32 v[{vG+2}:{vG+3}], v[{vG+2}:{vG+3}], v[{vG+6}:{vG+7}]
    v_pk_add_f32 v[{vG+8}:{vG+9}], v[{vG+8}:{vG+9}], v[{vG+12}:{vG+13}]
    v_pk_add_f32 v[{vG+10}:{vG+11}], v[{vG+10}:{vG+11}], v[{vG+14}:{vG+15}]
    v_pk_add_f32 v[{vG}:{vG+1}], v[{vG}:{vG+1}], v[{vG+8}:{vG+9}]
    v_pk_add_f32 v[{vG+2}:{vG+3}], v[{vG+2}:{vG+3}], v[{vG+10}:{vG+11}]""")
    for r in range(4): a(f"v_min_u32 v{vG+r}, -2, v{vG+r}")
    a(f"buffer_store_dwordx4 v[{vG}:{vG+3}], v8, {WS}, s52 offen sc0 sc1\n{NL}:")
    stamp(8)
    LNO = a.label("noO")
    a(f"""s_cmp_ge_u32 s2, 192
    s_cbranch_scc1 {LNO}
    v_lshlrev_b32 v10, 12, v2
    v_lshl_add_u32 v10, v3, 4, v10
    s_lshl_b32 s58, s54, 14
    s_lshl_b32 s52, s3, 8
    s_add_u32 s58, s58, s52
    s_add_u32 s58, s58, {O_OP}
    v_lshrrev_b32 v8, 2, v3
    v_lshl_add_u32 v8, v2, 3, v8
    s_lshl_b32 s52, s3, 6
    v_add_u32 v8, s52, v8
    v_mul_u32_u24 v8, 96, v8
    v_and_b32 v9, 3, v3
    v_lshl_add_u32 v8, v9, 3, v8
    v_add_u32 v8, {WO_L}, v8
    s_movk_i32 s61, 257""")
    spin_lds(f"v{vLND}", "v4", "s52", "s61")
    for m in range(3):
        for s in range(2):
            for h in range(2):
                r = vF + 8*m + 4*s + 2*h
                a(f"ds_read_b64_tr_b16 v[{r}:{r+1}], v8 offset:{3072*s + 384*h + 32*m}")
    L1, L1D = a.label("h1"), a.label("h1d")
    a(f"{L1}:")
    for k in range(4): a(f"buffer_load_dwordx4 v[{vG+4*k}:{vG+4*k+3}], v10, {WS}, s58 offen offset:{1024*k} sc0 sc1")
    a(f"""s_waitcnt vmcnt(0)
    v_pk_add_f32 v[12:13], v[{vG}:{vG+1}], v[{vG+4}:{vG+5}]
    v_pk_add_f32 v[14:15], v[{vG+2}:{vG+3}], v[{vG+6}:{vG+7}]
    v_pk_add_f32 v[12:13], v[12:13], v[{vG+8}:{vG+9}]
    v_pk_add_f32 v[14:15], v[14:15], v[{vG+10}:{vG+11}]
    v_pk_add_f32 v[12:13], v[12:13], v[{vG+12}:{vG+13}]
    v_pk_add_f32 v[14:15], v[14:15], v[{vG+14}:{vG+15}]""")
    poison_check(vG, 16, 12, L1, L1D)
    stamp(9)
    tr4(12)
    a(f"""v_cvt_pk_bf16_f32 v12, v12, v12
    s_lshl_b32 s52, s3, 7
    s_add_u32 s52, s52, {L_OB}
    v_lshl_add_u32 v8, v17, 1, s52
    ds_write_b16 v8, v12
    v_lshl_add_u32 v8, v2, 4, s52
    s_waitcnt lgkmcnt(0)
    ds_read_b128 v[{vG}:{vG+3}], v8
    ds_read_b128 v[{vG+4}:{vG+7}], v8 offset:64
    s_mov_b32 s46, 0x00020002
    s_mov_b32 s47, 0x00020002
    s_mov_b32 s48, 0x00040004
    s_mov_b32 s49, 0x00040004
    s_mul_i32 s52, s3, 192
    s_add_u32 s52, s52, {L_PRED}
    v_lshlrev_b32 v9, 6, v3
    v_lshl_add_u32 v9, v2, 4, v9
    v_add_u32 v8, s52, v9
    s_waitcnt lgkmcnt(0)""")
    DO = vG + 8
    for s in range(2):
        for m in range(3):
            c = "0" if s == 0 else f"v[{DO+4*m}:{DO+4*m+3}]"
            a(f"v_mfma_f32_16x16x32_bf16 v[{DO+4*m}:{DO+4*m+3}], v[{vF+8*m+4*s}:{vF+8*m+4*s+3}], v[{vG+4*s}:{vG+4*s+3}], {c}")
    for r in range(4): a(f"v_cndmask_b32 v{DO+r}, v{DO+r}, v{DO+4+r}, s[46:47]")
    for r in range(4): a(f"v_cndmask_b32 v{DO+r}, v{DO+r}, v{DO+8+r}, s[48:49]")
    a(f"""s_mov_b32 s46, 0x00070007
    s_mov_b32 s47, 0x00070007
    s_mov_b64 exec, s[46:47]
    ds_write_b128 v8, v[{DO}:{DO+3}]
    s_mov_b64 exec, -1""")
    arrive_last(C_P, LNO)
    a(f"v_add_u32 v8, {L_PRED}, v9\ns_mov_b64 exec, s[46:47]")
    for w in range(4): a(f"ds_read_b128 v[{vG+4*w}:{vG+4*w+3}], v8 offset:{192*w}")
    a(f"""s_mul_i32 s52, s54, 2304
    s_mul_i32 s53, s55, 192
    s_add_u32 s52, s52, s53
    s_add_u32 s52, s52, {O_P2}
    s_waitcnt lgkmcnt(0)
    v_pk_add_f32 v[{vG}:{vG+1}], v[{vG}:{vG+1}], v[{vG+4}:{vG+5}]
    v_pk_add_f32 v[{vG+2}:{vG+3}], v[{vG+2}:{vG+3}], v[{vG+6}:{vG+7}]
    v_pk_add_f32 v[{vG+8}:{vG+9}], v[{vG+8}:{vG+9}], v[{vG+12}:{vG+13}]
    v_pk_add_f32 v[{vG+10}:{vG+11}], v[{vG+10}:{vG+11}], v[{vG+14}:{vG+15}]
    v_pk_add_f32 v[{vG}:{vG+1}], v[{vG}:{vG+1}], v[{vG+8}:{vG+9}]
    v_pk_add_f32 v[{vG+2}:{vG+3}], v[{vG+2}:{vG+3}], v[{vG+10}:{vG+11}]""")
    for r in range(4): a(f"v_min_u32 v{vG+r}, -2, v{vG+r}")
    a(f"buffer_store_dwordx4 v[{vG}:{vG+3}], v9, {WS}, s52 offen sc0 sc1\ns_mov_b64 exec, -1\n{LNO}:")
    stamp(10)
    a("s_cmp_lt_u32 s2, 64\ns_cbranch_scc1 L_fin")
    AG = 100
    AD = 52
    LW3 = a.label("w3")
    a(f"""v_lshrrev_b32 v8, 2, v3
    v_lshl_add_u32 v8, v2, 3, v8
    v_mul_u32_u24 v8, 48, v8
    v_and_b32 v9, 1, v3
    v_lshl_add_u32 v8, v9, 3, v8
    v_bfe_u32 v9, v3, 1, 1
    v_mul_u32_u24 v9, {WU_L - WG_L}, v9
    s_lshl_b32 s52, s3, 4
    s_add_u32 s52, s52, {WG_L}
    v_add3_u32 v8, v8, v9, s52
    v_lshlrev_b32 v10, 4, v1
    v_mov_b32 v9, {OOB}
    v_cndmask_b32 v10, v9, v10, s[44:45]
    s_mul_i32 s52, s3, 576
    s_add_u32 s96, s52, {O_P2}
    s_add_u32 s97, s96, {4608*1}
    s_add_u32 s98, s96, {4608*2}
    s_add_u32 s99, s96, {4608*3}
    s_add_u32 s100, s96, {4608*4}
    s_add_u32 s101, s96, {4608*5}
    s_add_u32 s50, s96, {4608*6}
    s_add_u32 s51, s96, {4608*7}
    s_cmp_eq_u32 s3, 3
    s_cbranch_scc1 {LW3}
    s_movk_i32 s61, 258""")
    spin_lds(f"v{vLND}", "v4", "s52", "s61")
    for s in range(18):
        for h in range(2):
            r = AG + 4*s + 2*h
            a(f"ds_read_b64_tr_b16 v[{r}:{r+1}], v8 offset:{1536*s + 192*h}")
    a(f"{LW3}:")
    L2, L2D = a.label("h2"), a.label("h2d")
    a(f"{L2}:")
    so = ["s96", "s97", "s98", "s99", "s100", "s101", "s50", "s51"]
    for p in range(16): a(f"buffer_load_dwordx4 v[{vG+4*p}:{vG+4*p+3}], v10, {WS}, {so[p>>1]} offen offset:{2304*(p&1)} sc0 sc1")
    a("s_waitcnt vmcnt(14)")
    a(f"v_pk_add_f32 v[12:13], v[{vG}:{vG+1}], v[{vG+4}:{vG+5}]\nv_pk_add_f32 v[14:15], v[{vG+2}:{vG+3}], v[{vG+6}:{vG+7}]")
    for p in range(2, 16):
        a(f"s_waitcnt vmcnt({15-p})")
        a(f"v_pk_add_f32 v[12:13], v[12:13], v[{vG+4*p}:{vG+4*p+1}]\nv_pk_add_f32 v[14:15], v[14:15], v[{vG+4*p+2}:{vG+4*p+3}]")
    poison_check(vG, 64, 12, L2, L2D)
    stamp(11)
    rnd2("v12", "v13", "v4"); rnd2("v14", "v15", "v5")
    a(f"""v_lshlrev_b32 v8, 16, v{vXR}
    v_and_b32 v9, 0xffff0000, v{vXR}
    v_lshlrev_b32 v10, 16, v{vXR+1}
    v_and_b32 v11, 0xffff0000, v{vXR+1}
    v_pk_add_f32 v[12:13], v[12:13], v[8:9]
    v_pk_add_f32 v[14:15], v[14:15], v[10:11]""")
    rnd2("v12", "v13", "v4"); rnd2("v14", "v15", "v5")
    a(f"""v_readfirstlane_b32 s53, v12
    s_mul_i32 s52, s3, 576
    s_add_u32 s52, s52, {L_H}
    v_lshl_add_u32 v6, v1, 4, s52""")
    for i in range(4): a(f"v_subrev_f32 v{8+i}, s53, v{12+i}")
    for i in range(4): a(f"v_cndmask_b32 v{8+i}, v7, v{8+i}, s[44:45]")
    a(f"""v_mul_f32 v5, v8, v8
    v_add_f32 v4, v8, v9
    v_fmac_f32 v5, v9, v9
    v_add_f32 v4, v4, v10
    v_fmac_f32 v5, v10, v10
    v_add_f32 v4, v4, v11
    v_fmac_f32 v5, v11, v11
    s_mov_b64 exec, s[44:45]
    ds_write_b128 v6, v[12:15]
    s_mov_b64 exec, -1""")
    red63("v_add_f32", "v4", "v5")
    a(f"""v_readlane_b32 s46, v4, 63
    v_readlane_b32 s47, v5, 63
    v_mov_b32 v8, {fhex(1/144)}
    v_mul_f32 v8, s46, v8
    v_mov_b32 v9, s47
    v_fma_f32 v9, -v8, s46, v9
    v_add_f32 v8, s53, v8
    s_lshl_b32 s52, s3, 3
    s_add_u32 s52, s52, {L_ST}
    v_mov_b32 v6, s52""")
    one("ds_write_b64 v6, v[8:9]")
    arrive(C_ST); waitcnt(C_ST, 4)
    a(f"""v_mov_b32 v6, {L_ST}
    ds_read_b128 v[{vG}:{vG+3}], v6
    ds_read_b128 v[{vG+4}:{vG+7}], v6 offset:16
    s_mul_i32 s52, s3, 288
    s_add_u32 s52, s52, {L_HN}
    v_lshl_add_u32 v6, v1, 3, s52
    s_waitcnt lgkmcnt(0)
    v_add_f32 v8, v{vG}, v{vG+2}
    v_add_f32 v9, v{vG+4}, v{vG+6}
    v_add_f32 v8, v8, v9
    v_mul_f32 v8, 0x3e800000, v8
    v_add_f32 v9, v{vG+1}, v{vG+3}
    v_add_f32 v10, v{vG+5}, v{vG+7}
    v_add_f32 v9, v9, v10
    v_sub_f32 v{vG}, v{vG}, v8
    v_sub_f32 v{vG+2}, v{vG+2}, v8
    v_sub_f32 v{vG+4}, v{vG+4}, v8
    v_sub_f32 v{vG+6}, v{vG+6}, v8
    v_mul_f32 v10, v{vG}, v{vG}
    v_fmac_f32 v10, v{vG+2}, v{vG+2}
    v_fmac_f32 v10, v{vG+4}, v{vG+4}
    v_fmac_f32 v10, v{vG+6}, v{vG+6}
    v_fmac_f32 v9, {fhex(144.0)}, v10
    v_mul_f32 v9, {fhex(1/576)}, v9""")
    ln_scale("v8", "v9", "v10")
    for i in range(4): a(f"v_sub_f32 v{12+i}, v{12+i}, v8")
    rnd2("v12", "v13", "v4"); rnd2("v14", "v15", "v5")
    for i in range(4): a(f"v_mul_f32 v{12+i}, v{12+i}, v9")
    a(f"""v_cvt_pk_bf16_f32 v12, v12, v13
    v_cvt_pk_bf16_f32 v13, v14, v15
    s_mov_b64 exec, s[44:45]
    ds_write_b64 v6, v[12:13]
    s_mov_b64 exec, -1""")
    arrive(C_HN)
    LNG = a.label("nog")
    a(f"s_cmp_eq_u32 s3, 3\ns_cbranch_scc1 {LNG}")
    waitcnt(C_HN, 4)
    stamp(12)
    a(f"v_lshlrev_b32 v6, 4, v2\nv_add_u32 v6, {L_HN}, v6")
    BG = vG
    for s in range(18): a(f"ds_read_b128 v[{BG+4*s}:{BG+4*s+3}], v6 offset:{64*s}")
    for s in range(18):
        a(f"s_waitcnt lgkmcnt({min(15, 17-s)})")
        c = "0" if s == 0 else "v[12:15]"
        a(f"v_mfma_f32_16x16x32_bf16 v[12:15], v[{AG+4*s}:{AG+4*s+3}], v[{BG+4*s}:{BG+4*s+3}], {c}")
    K0 = (2/3.141592653589793)**0.5
    a(f"""v_cvt_pk_bf16_f32 v12, v12, v13
    v_cvt_pk_bf16_f32 v13, v14, v15
    v_mov_b32 v14, v12
    v_mov_b32 v15, v13
    v_permlane32_swap_b32 v12, v14
    v_permlane32_swap_b32 v13, v15
    v_lshlrev_b32 v8, 16, v12
    v_and_b32 v9, 0xffff0000, v12
    v_lshlrev_b32 v10, 16, v13
    v_and_b32 v11, 0xffff0000, v13
    v_mov_b32 v6, {fhex(0.044715)}""")
    T = vG
    for i in range(4): a(f"v_mul_f32 v{T+i}, v{8+i}, v{8+i}")
    for i in range(4): a(f"v_mul_f32 v{T+i}, v{T+i}, v{8+i}")
    for i in range(4): a(f"v_fma_f32 v{T+i}, v{T+i}, v6, v{8+i}")
    for i in range(4): a(f"v_mul_f32 v{T+i}, {fhex(-2*K0*1.4426950408889634)}, v{T+i}")
    for i in range(4): a(f"v_exp_f32 v{T+i}, v{T+i}")
    for i in range(4): a(f"v_add_f32 v{T+i}, 1.0, v{T+i}")
    for i in range(4): a(f"v_rcp_f32 v{T+i}, v{T+i}")
    for i in range(4): a(f"v_mul_f32 v{8+i}, v{8+i}, v{T+i}")
    rnd2("v8", "v9", "v4"); rnd2("v10", "v11", "v5")
    a(f"""v_lshlrev_b32 v{T}, 16, v14
    v_and_b32 v{T+1}, 0xffff0000, v14
    v_lshlrev_b32 v{T+2}, 16, v15
    v_and_b32 v{T+3}, 0xffff0000, v15""")
    for i in range(4): a(f"v_mul_f32 v{8+i}, v{8+i}, v{T+i}")
    a(f"""v_cvt_pk_bf16_f32 v8, v8, v9
    v_cvt_pk_bf16_f32 v9, v10, v11
    s_lshl_b32 s52, s3, 4
    s_add_u32 s52, s52, {L_ACT}
    v_lshl_add_u32 v6, v2, 3, s52
    s_mov_b64 exec, 0x10001
    ds_write_b64 v6, v[8:9]
    s_mov_b64 exec, -1""")
    arrive(C_ACT)
    a(f"{LNG}:")
    a(f"""v_min_u32 v9, 2, v2
    v_lshrrev_b32 v8, 2, v3
    v_lshl_add_u32 v8, v9, 3, v8
    v_mul_u32_u24 v8, 1152, v8
    v_and_b32 v10, 3, v3
    v_lshl_add_u32 v8, v10, 3, v8
    s_mul_i32 s52, s3, 288
    s_add_u32 s52, s52, {WD_L}
    v_add_u32 v8, s52, v8
    v_lshlrev_b32 v6, 4, v9
    v_add_u32 v6, {L_ACT}, v6
    v_lshl_add_u32 v10, v3, 2, v2
    s_mul_i32 s52, s3, 36
    v_add_u32 v10, s52, v10
    v_mul_u32_u24 v10, 3072, v10
    v_mov_b32 v9, {OOB}
    v_cmp_gt_u32 vcc, 9, v3
    v_cndmask_b32 v10, v9, v10, vcc
    s_movk_i32 s61, 259""")
    spin_lds(f"v{vLND}", "v4", "s52", "s61")
    for bb in range(9):
        for h in range(2):
            r = AD + 4*bb + 2*h
            a(f"ds_read_b64_tr_b16 v[{r}:{r+1}], v8 offset:{32*bb + 4608*h}")
    waitcnt(C_ACT, 3)
    stamp(13)
    a(f"""ds_read_b128 v[12:15], v6
    s_mov_b32 s46, 0x00010001
    s_mov_b32 s47, 0x00000001
    s_lshl_b32 s58, s56, 4
    s_add_u32 s58, s58, {O_P3}
    s_waitcnt lgkmcnt(0)""")
    DD = 96
    for bb in range(9):
        B = vG + 4*bb
        for r in range(4): a(f"v_cndmask_b32 v{B+r}, v7, v{12+r}, s[46:47]")
        if bb < 8: a("s_lshl_b64 s[46:47], s[46:47], 1")
    for bb in range(9):
        B = vG + 4*bb
        c = "0" if bb == 0 else f"v[{DD}:{DD+3}]"
        a(f"v_mfma_f32_16x16x32_bf16 v[{DD}:{DD+3}], v[{AD+4*bb}:{AD+4*bb+3}], v[{B}:{B+3}], {c}")
    for r in range(4): a(f"v_min_u32 v{DD+r}, -2, v{DD+r}")
    a(f"buffer_store_dwordx4 v[{DD}:{DD+3}], v10, {WS}, s58 offen sc0 sc1")
    stamp(14)
    a(f"""s_cmp_lg_u32 s3, 3
    s_cbranch_scc1 L_fin
    s_cmp_ge_u32 s2, 208
    s_cbranch_scc1 L_fin
    s_sub_u32 s59, s2, 64
    s_mul_i32 s58, s59, 3072
    s_add_u32 s58, s58, {O_P3}
    v_lshlrev_b32 v10, 4, v1
    v_and_b32 v9, 3, v17
    s_lshl_b32 s52, s59, 2
    v_add_u32 v9, s52, v9
    v_lshlrev_b32 v6, 2, v9
    v_add_u32 v6, {L_H}, v6
    ds_read_b32 v11, v6
    v_lshlrev_b32 v9, 1, v9
    v_mov_b32 v8, {OOB}
    v_cmp_eq_u32 vcc, 0, v3
    v_cndmask_b32 v9, v8, v9, vcc""")
    L3, L3D = a.label("h3"), a.label("h3d")
    a(f"{L3}:")
    for k in range(3): a(f"buffer_load_dwordx4 v[{vG+4*k}:{vG+4*k+3}], v10, {WS}, s58 offen offset:{1024*k} sc0 sc1")
    a(f"""s_waitcnt vmcnt(0)
    v_pk_add_f32 v[12:13], v[{vG}:{vG+1}], v[{vG+4}:{vG+5}]
    v_pk_add_f32 v[14:15], v[{vG+2}:{vG+3}], v[{vG+6}:{vG+7}]
    v_pk_add_f32 v[12:13], v[12:13], v[{vG+8}:{vG+9}]
    v_pk_add_f32 v[14:15], v[14:15], v[{vG+10}:{vG+11}]""")
    poison_check(vG, 12, 12, L3, L3D)
    tr4(12)
    for m in ("row_ror:8", "row_ror:4", "row_ror:2", "row_ror:1"):
        a(f"v_add_f32_dpp v12, v12, v12 {m} row_mask:0xf bank_mask:0xf")
    rnd1("v12")
    a(f"""s_waitcnt lgkmcnt(0)
    v_add_f32 v12, v12, v11
    v_cvt_pk_bf16_f32 v12, v12, v12
    buffer_store_short v12, v9, {OUTS}, 0 offen""")
    a("L_fin:")
    if diag:
        a("s_waitcnt vmcnt(0)")
        stamp(15)
        a(f"""s_getreg_b32 s52, hwreg(HW_REG_XCC_ID)
        s_add_u32 s26, s26, 0x20000000
        s_addc_u32 s27, s27, 0
        v_lshrrev_b32 v2, 6, v0
        v_mov_b32 v3, s2
        v_mul_u32_u24 v3, 5, v3
        v_add_u32 v3, v3, v2
        v_lshlrev_b32 v3, 7, v3
        s_waitcnt lgkmcnt(0)
        s_mov_b64 exec, 1""")
        for i in range(NST):
            a(f"v_mov_b32 v4, s{ST0+2*i}\nv_mov_b32 v5, s{ST0+2*i+1}\nglobal_store_dwordx2 v3, v[4:5], s[26:27] offset:{8*i}\ns_nop 1")
    a(f"""L_end:
    s_endpgm
    .section .rodata,"a"
    .p2align 6
    .amdhsa_kernel {KN}_kernel
    .amdhsa_next_free_vgpr 256
    .amdhsa_next_free_sgpr 102
    .amdhsa_accum_offset 256
    .amdhsa_group_segment_fixed_size 0
    .amdhsa_kernarg_size 96
    .amdhsa_user_sgpr_count 2
    .amdhsa_user_sgpr_kernarg_segment_ptr 1
    .amdhsa_system_sgpr_workgroup_id_x 1
    .amdhsa_float_denorm_mode_32 3
    .end_amdhsa_kernel""")
    a.lines, n = pad(a.lines)
    return a.text()

if __name__ == "__main__":
    import ast
    out = sys.argv[1]
    kw = {}
    for x in sys.argv[2:]:
        k, v = x.split("="); kw[k] = ast.literal_eval(v)
    open(out, "w").write(gen(**kw))
```

```python
import struct, sys
from asmlib import Asm, pad
KN = "sequential_preLN__gqa_block_cached__geglu_ffn__decode"
def fhex(x): return "0x%08x" % struct.unpack("<I", struct.pack("<f", x))[0]

def gen(W=20, W2=20, diag=False, sleep=1, polK='nt', polV='nt', polW='', ldbar=True, pf_at=0, pfg=128, npre=3, pf_rows=9, order="gd", levels=None, thr=(1,), pgw=2, lvl2=True, sc='sc0 sc1', hold=0, fastfail=True, Wh=0, NH=0, spf=0, spw=6, WO2=None, rot=True, early=True, Wd=None, hu=True, hu1='land', hu3=18, d1=0, d2=0, d3=0, hwbar=True, defer=True, obias=0, fbias=0):
    NSLOT = 18
    UNIT = 8192
    RING = NSLOT * UNIT
    M = RING
    L_LANDED = M
    L_CONS = M + 256
    L_CNT = M + 1280
    C_Q, C_Q2, C_O, C_P, C_ST, C_HN, C_ACT, C_R, C_LVL, C_RD, C_OP, C_IS, C_WD = [4*i for i in range(13)]
    L_XN = M + 1536
    L_QRED = L_XN + 2304
    L_Q = L_QRED + 1024
    L_ORED = L_Q + 512
    L_OB = L_ORED + 4096
    L_ST = L_OB + 1024
    L_HN = L_ST + 64
    L_H = L_HN + 1152
    L_ACT = L_H + 2304
    LDS = L_ACT + 64
    assert LDS <= 163840, LDS
    WO_L = 32768
    WG_L = 32768
    WU_L = WG_L + 36864
    WD_L = WU_L + 36864
    assert WD_L + 36864 <= RING
    def need_cnt(lo, hi):
        last = max(u for u in range(256 - NSLOT, 256) if lo // UNIT <= u % NSLOT <= (hi - 1) // UNIT)
        return (last >> 2) + 1
    O_PG = 0x120000
    O_E, O_QX, O_ML, O_OP, O_P2, O_P3 = 0, 0x10000, 0x40000, 0x50000, 0x90000, 0xC0000
    P2C = 8 * 2304
    O_H1, O_H2, O_H3 = 0x130000, 0x138000, 0x13A000
    WS_SZ = 0x140000
    TAGC = 0x9E3779B9
    OOB = 0x7ffffff0
    a = Asm()
    NST = 16
    ST0 = 64
    def stamp(i):
        if diag: a(f"s_memrealtime s[{ST0+2*i}:{ST0+2*i+1}]")
    sTO = "s62"
    def spin_lds(vaddr, vt, st, cmp_need, sl=0, off=0):
        L, D = a.label("spin"), a.label("done")
        a(f"""{L}:
        ds_read_b32 {vt}, {vaddr} offset:{off}
        s_waitcnt lgkmcnt(0)
        v_readfirstlane_b32 {st}, {vt}
        s_cmp_ge_i32 {st}, {cmp_need}
        s_cbranch_scc1 {D}
        s_sub_u32 {sTO}, {sTO}, 1
        s_cbranch_scc1 L_end""")
        if sl: a(f"s_sleep {sl}")
        a(f"s_branch {L}\n{D}:")
    def srd(r, lo, hi, nrec, addlo=None):
        if addlo is None:
            a(f"s_mov_b32 s{r}, s{lo}\ns_mov_b32 s{r+1}, s{hi}")
        else:
            a(f"s_add_u32 s{r}, s{lo}, {addlo}\ns_addc_u32 s{r+1}, s{hi}, 0")
        a(f"s_mov_b32 s{r+2}, {nrec}\ns_mov_b32 s{r+3}, 0x20000")

    a(f"; @launch grid=(256,1,1) block=(320,1,1) lds={LDS}")
    a(f""".amdgcn_target "amdgcn-amd-amdhsa--gfx950"
    .text
    .globl {KN}_kernel
    .p2align 8
    .type {KN}_kernel,@function
    {KN}_kernel:
    s_cmp_ge_u32 s2, 256
    s_cbranch_scc1 L_end
    s_load_dwordx16 s[4:19], s[0:1], 0
    s_load_dwordx8 s[20:27], s[0:1], 64""")
    if diag:
        for i in range(1, NST): a(f"s_mov_b64 s[{ST0+2*i}:{ST0+2*i+1}], 0")
    stamp(0)
    a(f"""v_lshrrev_b32 v2, 6, v0
    v_and_b32 v1, 63, v0
    v_readfirstlane_b32 s3, v2
    s_mov_b32 {sTO}, 0x40000
    v_lshrrev_b32 v2, 4, v1
    v_and_b32 v3, 15, v1
    s_cmp_lg_u32 s3, 0
    s_cbranch_scc1 L_cons""")
    ID_O, ID_R, ID_F = 72, 108, 112
    def roles():
        a("""s_and_b32 s54, s2, 7
        s_lshr_b32 s55, s2, 3
        s_mul_i32 s56, s54, 18
        s_add_u32 s56, s56, s55
        s_sub_u32 s56, s56, 14""")
    j0 = (W + 7) % 8
    lag = (W + 7 - j0) // 8
    a(f"""s_setprio 3
    v_lshlrev_b32 v4, 1, v2
    v_xor_b32 v4, v4, v3
    v_lshlrev_b32 v4, 4, v4
    v_lshl_add_u32 v4, v2, 8, v4
    v_xor_b32 v5, 0x80, v4
    s_lshl_b32 s57, s2, 20
    s_mov_b32 s58, 0
    s_mov_b32 s59, 4096
    s_mov_b32 m0, 0
    s_waitcnt lgkmcnt(0)""")
    srd(28, 6, 7, "0x100000", "s57")
    if ldbar: a("s_barrier")
    stamp(8)
    def unit_loads(sr, pub, waits=True, W=W):
        j0 = (W + 7) % 8
        assert (W + 7 - j0) // 8 == lag
        for j in range(8):
            if j == 4: a("s_add_u32 m0, m0, 4096")
            if waits: a(f"s_waitcnt vmcnt({W-1})")
            a(f"buffer_load_dwordx4 v{4 + (j&1)}, s[{sr}:{sr+3}], s{58 + (j>>2)} offen offset:{(j&3)*1024} {polK if sr == 28 else polV} lds")
            if pub and j == j0:
                a("v_mov_b32 v7, s60\nds_write_b32 v6, v7")
        a("s_add_u32 s58, s58, 8192\ns_add_u32 s59, s59, 8192")
    unit_loads(28, False, False)
    a("s_add_u32 m0, m0, 4096")
    unit_loads(28, False, W <= 16)
    srd(32, 8, 9, "0x100000", "s57")
    roles()
    a(f"""s_mul_i32 s57, s54, {512*1152}
    s_lshl_b32 s61, s55, 7
    s_add_u32 s57, s57, s61
    s_sub_u32 s61, {4096*1152}, s57""")
    srd(36, 12, 13, "s61", "s57")
    a(f"""s_lshl_b32 s57, s56, 6
    s_sub_u32 s61, {576*9216}, s57""")
    srd(40, 16, 17, "s61", "s57")
    srd(44, 18, 19, "s61", "s57")
    a(f"s_mul_i32 s57, s56, {32*1152}")
    srd(48, 20, 21, str(32*1152), "s57")
    a(f"""v_lshrrev_b32 v8, 3, v1
    v_and_b32 v9, 2, v8
    v_mul_u32_u24 v8, 1152, v8
    v_and_b32 v10, 7, v1
    v_xor_b32 v9, v9, v10
    v_lshl_add_u32 v12, v9, 4, v8
    v_xor_b32 v9, 4, v9
    v_lshl_add_u32 v16, v9, 4, v8
    v_lshrrev_b32 v8, 2, v1
    v_lshrrev_b32 v9, 5, v1
    v_mul_u32_u24 v8, 9216, v8
    v_and_b32 v10, 3, v1
    v_xor_b32 v9, v9, v10
    v_lshl_add_u32 v13, v9, 4, v8
    v_xor_b32 v9, 2, v9
    v_lshl_add_u32 v17, v9, 4, v8""")
    for i in range(18):
        a(f"""v_add_u32 v8, {64*i}, v1
        v_mul_u32_u24 v9, 911, v8
        v_lshrrev_b32 v9, 16, v9
        v_mul_u32_u24 v10, 72, v9
        v_sub_u32 v10, v8, v10
        v_and_b32 v11, 2, v9
        v_xor_b32 v10, v10, v11
        v_lshrrev_b32 v11, 1, v9
        v_and_b32 v11, 4, v11
        v_xor_b32 v10, v10, v11
        v_mul_u32_u24 v9, 1152, v9
        v_lshl_add_u32 v{32+i}, v10, 4, v9""")
    a(f"""v_mov_b32 v14, 0
    v_lshlrev_b32 v6, 2, v1
    v_add_u32 v6, {L_LANDED}, v6
    v_mov_b32 v22, 0
    v_mov_b32 v23, 0
    v_mov_b32 v20, {L_CNT + C_LVL}
    v_mov_b32 v21, {L_CONS}
    s_mov_b32 s63, 2
    s_mov_b32 s60, {2 - lag + 1}
    s_mov_b32 s57, {2*UNIT}
    s_mov_b32 s61, 0""")
    if not ldbar: a("s_barrier")
    for ph, sr, uend in ((0, 28, 128), (1, 32, 256)):
        L, BK = a.label("ld"), a.label("ldback")
        if ph == 1:
            a("s_mov_b32 s58, 0\ns_mov_b32 s59, 4096")
            stamp(1)
        a(f"""{L}:
        s_waitcnt lgkmcnt(0)
        v_readfirstlane_b32 s52, v22
        s_cmp_ge_i32 s52, s61
        s_cbranch_scc1 {BK}""")
        if diag: a(f"s_add_u32 s{ST0+2*(9+ph)}, s{ST0+2*(9+ph)}, 100")
        spin_lds("v21", "v22", "s52", "s61", 1)
        a(f"""{BK}:
        s_mov_b32 m0, s57
        s_sub_u32 s52, s63, {NSLOT-1}
        s_ashr_i32 s61, s52, 2
        s_add_u32 s61, s61, 1
        s_and_b32 s52, s52, 3
        s_lshl_b32 s52, s52, 8
        s_add_u32 s52, s52, {L_CONS}
        v_mov_b32 v21, s52
        ds_read_b32 v22, v21""")
        if levels:
            J = a.label("lj")
            a(f"v_readfirstlane_b32 s52, v23\nds_read_b32 v23, v20")
            order_ = [i for i in range(len(levels)) if i != len(levels)//2]
            labs = {i: a.label("lv") for i in order_}
            for i in order_: a(f"s_cmp_eq_u32 s52, {i+1}\ns_cbranch_scc1 {labs[i]}")
            unit_loads(sr, True, True, levels[len(levels)//2])
            for i in order_:
                a(f"s_branch {J}\n{labs[i]}:")
                unit_loads(sr, True, True, levels[i])
            a(f"{J}:")
        else:
            unit_loads(sr, True)
        if diag and ph == 0:
            for k, u in enumerate((4, 12, 24, 48)):
                X_ = a.label("st")
                a(f"s_cmp_lg_u32 s63, {u}\ns_cbranch_scc1 {X_}"); stamp(11 + k); a(f"{X_}:")
        a(f"""s_add_u32 s57, s57, {UNIT}
        s_cmp_ge_u32 s57, {RING}
        s_cselect_b32 s57, 0, s57
        s_add_u32 s60, s60, 1
        s_add_u32 s63, s63, 1
        s_cmp_lt_u32 s63, {uend}
        s_cbranch_scc1 {L}""")
    stamp(2)
    if diag:
        for ph in range(2): a(f"s_add_u32 s{ST0+2*(9+ph)}, s{ST0+2*(9+ph)}, s{ST0}\ns_addc_u32 s{ST0+2*(9+ph)+1}, s{ST0+1}, 0")
    a(f"""v_mov_b32 v21, {L_CONS}""")
    def free_check(cnt):
        L, D = a.label("fc"), a.label("fcd")
        a(f"""{L}:
        ds_read_b32 v24, v21
        ds_read_b32 v25, v21 offset:256
        ds_read_b32 v26, v21 offset:512
        ds_read_b32 v27, v21 offset:768
        s_waitcnt lgkmcnt(0)
        v_min_i32 v24, v24, v25
        v_min3_i32 v24, v24, v26, v27
        v_readfirstlane_b32 s52, v24
        s_cmp_ge_i32 s52, {cnt}
        s_cbranch_scc1 {D}
        s_sub_u32 {sTO}, {sTO}, 1
        s_cbranch_scc1 L_end
        s_branch {L}
        {D}:""")
    def weights(doO, doF, r0=0):
        seq = []
        have = [0]
        def mat(base, n, vr, sr, step):
            for i in range(n):
                c = need_cnt(base + 1024*i, base + 1024*(i+1))
                if c > have[0]:
                    have[0] = c
                    seq.append(("check", c))
                seq.append(("load", base + 1024*i, vr(i), sr, step(i)))
        if doO:
            mat(WO_L, 64, lambda i: 12 + 4*(i & 1), 36, lambda i: i * 8 * 1152); seq.append(("mark", 257))
        if doF:
            mk = 258
            for o in order:
                if o == "g":
                    seq.append(("check", need_cnt(WG_L, WU_L + 36864))); have[0] = max(have[0], seq[-1][1])
                    for i in [(k + r0) % 36 for k in range(36)]:
                        seq.append(("load", WG_L + 1024*i, 13, 40, i * 16 * 9216)); seq.append(("load", WU_L + 1024*i, 17, 44, i * 16 * 9216))
                else:
                    if defer: seq.append(("wait", C_WD))
                    mat(WD_L, 36, lambda i: 32 + i % 18, 48, lambda i: (i // 18) * 16 * 1152)
                seq.append(("mark", mk)); mk += 1
        if not doO and not doF and spf:
            a(f"""s_mul_i32 s57, s54, 1152
            s_sub_u32 s61, {576*9216}, s57""")
            srd(40, 16, 17, "s61", "s57")
            srd(44, 18, 19, "s61", "s57")
            a(f"""s_sub_u32 s59, s55, 9
            s_mul_i32 s59, s59, {7*9216}
            v_mul_u32_u24 v8, 7282, v1
            v_lshrrev_b32 v8, 16, v8
            v_mul_u32_u24 v9, 9, v8
            v_sub_u32 v9, v1, v9
            v_mul_u32_u24 v8, 9216, v8
            v_lshl_add_u32 v15, v9, 7, v8
            s_bfm_b64 exec, 63, 0""")
            for t in range(2 * spf):
                k = t >> 1
                top = (575 if k % 2 == 0 else 287) - 35 * (k >> 1) if rot else 575 - 35 * k
                seq.append(("load", None, 15, 40 + 4*(t & 1), (top - 6) * 9216))
        ev = [(8*u + 7, u + 1) for u in range(256 - lag, 256)]
        n = 2048
        for it in seq:
            if it[0] == "load": n += 1
            elif it[0] == "mark": ev.append((n - 1, it[1]))
        ev.sort()
        n = 2048
        def publish(v):
            a(f"v_mov_b32 v7, {v}\nds_write_b32 v6, v7")
            if v >= 256: stamp(v - 256 + 4)
        for it in seq:
            if hold and it[0] == "load" and n == 2048 + hold:
                while ev and ev[0][1] <= 256:
                    idx, v = ev.pop(0)
                    a(f"s_waitcnt vmcnt({n - 1 - idx})"); publish(v)
                a(f"v_mov_b32 v24, {L_CNT + C_OP}")
                spin_lds("v24", "v25", "s52", 1)
            if it[0] == "wait":
                a(f"v_mov_b32 v24, {L_CNT + C_IS}\nv_mov_b32 v25, 1\ns_mov_b64 exec, 1\nds_write_b32 v24, v25\ns_mov_b64 exec, -1")
                while ev and ev[0][0] < n:
                    idx, v = ev.pop(0)
                    a(f"s_waitcnt vmcnt({n - 1 - idx})"); publish(v)
                a(f"v_mov_b32 v24, {L_CNT + it[1]}")
                spin_lds("v24", "v25", "s52", 1)
            if it[0] == "check":
                while ev and ev[0][1] <= 256 and ((ev[0][1] - 1) >> 2) + 1 <= it[1]:
                    idx, v = ev.pop(0)
                    a(f"s_waitcnt vmcnt({n - 1 - idx})"); publish(v)
                free_check(it[1])
            elif it[0] == "load":
                _, la, vr, sr, so = it
                w = W if n - W < 2047 else (WO2 if (doO and WO2) else W2)
                if doF and Wd and sr == 48 and n - W >= 2047: w = Wd
                if doF and Wh and n < 2048 + NH: w = Wh
                if la is None:
                    t = n - 2048
                    w = max(max(0, 16 - 4*t) + t, 0) + 1 if t < 4 else spw
                while ev and ev[0][0] < n - w:
                    idx, v = ev.pop(0)
                    a(f"s_waitcnt vmcnt({n - 1 - idx})"); publish(v)
                if la is None:
                    a(f"s_sub_u32 s58, {so}, s59\ns_waitcnt vmcnt({w-1})")
                    a(f"buffer_load_dword v30, v{vr}, s[{sr}:{sr+3}], s58 offen")
                else:
                    a(f"s_mov_b32 m0, {la}\ns_mov_b32 s58, {so}\ns_waitcnt vmcnt({w-1})")
                    a(f"buffer_load_dwordx4 v{vr}, s[{sr}:{sr+3}], s58 offen {polW} lds")
                last = None
                while ev and ev[0][0] <= n - w: last = ev.pop(0)[1]
                if last is not None: publish(last)
                n += 1
        if doO or doF:
            a(f"v_mov_b32 v24, {L_CNT + C_IS}\nv_mov_b32 v25, 1\ns_mov_b64 exec, 1\nds_write_b32 v24, v25\ns_mov_b64 exec, -1")
        while ev:
            idx, v = ev.pop(0)
            a(f"s_waitcnt vmcnt({n - 1 - idx})")
            publish(v)
        a("s_waitcnt lgkmcnt(0)")
        stamp(3)
        a("s_branch L_fin")
    LO, LF = a.label("wO"), a.label("wF")
    a(f"s_cmp_lt_u32 s2, {ID_O}\ns_cbranch_scc1 {LO}\ns_cmp_ge_u32 s2, {ID_F}\ns_cbranch_scc1 {LF}")
    weights(False, False)
    a(f"{LO}:"); weights(True, False)
    a(f"{LF}:")
    if rot:
        LF2 = a.label("wF2")
        a(f"s_bitcmp1_b32 s56, 0\ns_cbranch_scc1 {LF2}")
        weights(False, True)
        a(f"{LF2}:"); weights(False, True, 18)
    else:
        weights(False, True)
    MK_G = 258 + order.index("g")
    MK_D = 258 + order.index("d")

    vTAG, vE, vXR, vLND, vCON, vPF_, vQ, vAK, vAV, vCNT, vONE, vM, vL, vPG = 16, 17, 18, 21, 22, 23, 24, 40, 44, 45, 46, 47, 48, 240
    vA, vF, vD, vSA, vS, vP, vO = 50, 58, 90, 98, 106, 138, 142
    PRE = [176, 208, vF][3-npre:] if npre else []
    vG = 106
    vPA, vXF, vXO = 174, 175, 23
    sHK = "s57"
    WS, XS, WQS, OUTS = "s[28:31]", "s[32:35]", "s[36:39]", "s[40:43]"
    LOG2E = fhex(1.4426950408889634)
    def one(x): a(f"s_mov_b64 exec, 1\n{x}\ns_mov_b64 exec, -1")
    def arrive_last(cnt, notlast, n=4):
        a(f"s_mov_b64 exec, 1\nds_add_rtn_u32 v5, v{vCNT}, v{vONE} offset:{cnt}\ns_waitcnt lgkmcnt(0)\nv_readfirstlane_b32 s52, v5\ns_mov_b64 exec, -1")
        a(f"s_cmp_lg_u32 s52, {n-1}\ns_cbranch_scc1 {notlast}")
    def barrier(cnt, hw=False):
        if hw and hwbar:
            a("s_mov_b64 exec, -1\ns_waitcnt lgkmcnt(0)\ns_barrier")
            return
        G = a.label("go")
        a(f"s_mov_b64 exec, 1\nds_add_rtn_u32 v5, v{vCNT}, v{vONE} offset:{cnt}\ns_waitcnt lgkmcnt(0)\nv_readfirstlane_b32 s52, v5\ns_mov_b64 exec, -1")
        a(f"s_cmp_eq_u32 s52, 3\ns_cbranch_scc1 {G}")
        spin_lds(f"v{vCNT}", "v5", "s52", 4, off=cnt)
        a(f"{G}:")
    def red63(op, *vs):
        for m in ("row_ror:8", "row_ror:4", "row_ror:2", "row_ror:1"):
            for v in vs: a(f"{op}_dpp {v}, {v}, {v} {m} row_mask:0xf bank_mask:0xf")
        for v in vs: a(f"{op}_dpp {v}, {v}, {v} row_bcast:15 row_mask:0xa bank_mask:0xf")
        for v in vs: a(f"{op}_dpp {v}, {v}, {v} row_bcast:31 row_mask:0xc bank_mask:0xf")
    def red_par(op, v, t):
        for m in ("row_ror:8", "row_ror:4", "row_ror:2"):
            a(f"{op}_dpp {v}, {v}, {v} {m} row_mask:0xf bank_mask:0xf")
        a(f"v_mov_b32 {t}, {v}\nv_permlane16_swap_b32 {t}, {v}\n{op} {v}, {v}, {t}")
        a(f"v_mov_b32 {t}, {v}\nv_permlane32_swap_b32 {t}, {v}\n{op} {v}, {v}, {t}")
    def rnd2(x, y, t):
        a(f"v_cvt_pk_bf16_f32 {t}, {x}, {y}\nv_lshlrev_b32 {x}, 16, {t}\nv_and_b32 {y}, 0xffff0000, {t}")
    def rnd1(x):
        a(f"v_cvt_pk_bf16_f32 {x}, {x}, {x}\nv_and_b32 {x}, 0xffff0000, {x}")
    def tr4(*xs):
        for x in xs: a(f"v_permlane32_swap_b32 v{x}, v{x+1}\nv_permlane32_swap_b32 v{x+2}, v{x+3}")
        for x in xs: a(f"v_add_f32 v{x}, v{x}, v{x+1}\nv_add_f32 v{x+2}, v{x+2}, v{x+3}")
        for x in xs: a(f"v_permlane16_swap_b32 v{x}, v{x+2}")
        for x in xs: a(f"v_add_f32 v{x}, v{x}, v{x+2}")
    def ln_scale(mean, var, t):
        rnd2(mean, var, t)
        a(f"v_add_f32 {var}, {fhex(1e-5)}, {var}"); rnd1(var)
        a(f"v_sqrt_f32 {var}, {var}"); rnd1(var)
        a(f"v_rcp_f32 {var}, {var}")
    def retry(L):
        a(f"s_sub_u32 {sTO}, {sTO}, 1\ns_cbranch_scc1 L_end\ns_branch {L}")
    def pk(d, x, y): a(f"v_pk_add_f32 v[{d}:{d+1}], v[{x}:{x+1}], v[{y}:{y+1}]")
    def sum4(d, srcs):
        pk(d, srcs[0], srcs[1]); pk(d+2, srcs[0]+2, srcs[1]+2)
        for x in srcs[2:]: pk(d, d, x); pk(d+2, d+2, x+2)
    def poison_check(first, n, sums, L, OK):
        pk(4, sums[0], sums[0]+2)
        for x in sums[1:]: pk(4, 4, x); pk(4, 4, x+2)
        a(f"v_cmp_u_f32 vcc, v4, v5\ns_cbranch_vccz {OK}")
        if fastfail:
            a(f"s_mov_b64 exec, vcc\ns_sub_u32 {sTO}, {sTO}, 1\ns_cbranch_scc1 L_end\ns_and_b32 s52, {sTO}, 63\ns_cbranch_scc1 {L}")
        a(f"v_max_u32 v4, v{first}, v{first+1}")
        for i in range(2, n, 2): a(f"v_max3_u32 v4, v4, v{first+i}, v{first+i+1}")
        a(f"v_cmp_eq_u32 vcc, -1, v4\ns_cbranch_vccz {OK}\ns_mov_b64 exec, vcc")
        retry(L)
        a(f"{OK}:\ns_mov_b64 exec, -1")
    def next_unit():
        a(f"""s_add_u32 s58, s58, 4
        s_add_u32 s59, s59, {4*UNIT}
        s_cmp_ge_u32 s59, {RING}
        s_cselect_b32 s52, {RING}, 0
        s_sub_u32 s59, s59, s52""")
    def wait_unit():
        a("s_add_u32 s61, s58, 1")
        spin_lds(f"v{vLND}", "v4", "s52", "s61", sleep)
        if levels: a("s_mov_b32 s51, s52")
    def progress():
        if not levels: return
        X0, X1, X2 = a.label("pg"), a.label("pgx"), a.label("pgl")
        G = vPG
        a(f"""s_cmp_lg_u32 s3, 0
        s_cbranch_scc1 {X0}
        s_add_u32 s52, s51, s97
        v_add_u32 v5, s52, v{vTAG}
        s_mov_b64 exec, 1
        buffer_store_dword v5, v7, {WS}, s50 offen
        s_mov_b64 exec, -1
        s_branch {X1}
        {X0}:
        s_cmp_lg_u32 s3, {pgw}
        s_cbranch_scc1 {X1}
        s_waitcnt vmcnt(0)""")
        for r in range(5): a(f"v_sub_u32 v{8+r}, v{G+r}, v{vTAG}")
        a(f"""v_lshlrev_b32 v4, 4, v1
        buffer_load_dwordx4 v[{G}:{G+3}], v4, {WS}, s48 offen sc1
        buffer_load_dword v{G+4}, v{vPA}, {WS}, 0 offen sc1
        v_cndmask_b32 v4, v8, v9, s[98:99]
        v_cndmask_b32 v5, v10, v11, s[98:99]
        v_cndmask_b32 v4, v4, v5, s[100:101]
        v_readlane_b32 s53, v12, s49
        s_lshr_b32 s52, s2, 2
        v_readlane_b32 s52, v4, s52
        v_mov_b32 v5, 0
        s_mov_b32 s61, 0
        s_cmp_ge_u32 s52, 0x200
        s_cbranch_scc1 {X1}""")
        for r in range(4):
            a(f"""v_cmp_gt_u32 vcc, 0x200, v{8+r}
            v_subrev_u32 v{8+r}, s52, v{8+r}
            s_bcnt1_i32_b64 s96, vcc
            v_cndmask_b32 v{8+r}, v7, v{8+r}, vcc
            s_add_u32 s61, s61, s96
            v_add_u32 v5, v5, v{8+r}""")
        a(f"""v_cmp_gt_u32 vcc, 0x200, v12
        v_subrev_u32 v12, s53, v12
        s_cmp_lt_u32 s53, 0x200
        s_cselect_b64 vcc, vcc, 0
        v_cndmask_b32 v12, v7, v12, vcc""")
        red63("v_add_u32", "v5", "v12")
        a(f"""v_readlane_b32 s96, v5, 63
        v_readlane_b32 s97, v12, 63
        s_and_b32 s53, s60, 31
        s_cmp_lg_u32 s53, s55
        s_cbranch_scc1 {X2}
        v_cvt_f32_i32 v4, s96
        v_cvt_f32_u32 v5, s61
        v_rcp_f32 v5, v5
        v_mul_f32 v4, v4, v5
        v_rndne_f32 v4, v4
        v_cvt_i32_f32 v4, v4
        v_add3_u32 v4, v4, s52, v{vTAG}
        s_lshl_b32 s53, s49, 7
        s_add_u32 s53, s53, {O_PG + 0x4000}
        s_mov_b64 exec, 1
        {'buffer_store_dword v4, v7, ' + WS + ', s53 offen sc1' if lvl2 else ''}
        s_mov_b64 exec, -1
        {X2}:
        s_lshl_b32 s96, s96, 6
        s_mul_i32 s97, s97, s61
        s_add_i32 s96, s96, s97
        s_mov_b32 s53, {len(levels)//2 + 1}""")
        for k, t in enumerate(thr):
            a(f"""s_mul_i32 s97, s61, {int(t*64)}
            s_cmp_gt_i32 s96, s97
            s_cselect_b32 s53, {len(levels)//2 + 2 + k}, s53
            s_sub_i32 s97, 0, s97
            s_cmp_lt_i32 s96, s97
            s_cselect_b32 s53, {len(levels)//2 - k}, s53""")
        a(f"v_mov_b32 v5, s53")
        one(f"ds_write_b32 v{vCNT}, v5 offset:{C_LVL}")
        a(f"{X1}:")
    def notice(base_expr, lanes, stride):
        a(base_expr)
        if lanes == 1:
            one(f"buffer_store_dword v{vTAG}, v7, {WS}, s53 offen sc0 sc1")
        else:
            a(f"v_mul_u32_u24 v5, {stride}, v1\ns_bfm_b64 exec, {lanes}, 0\nbuffer_store_dword v{vTAG}, v5, {WS}, s53 offen sc0 sc1\ns_mov_b64 exec, -1")
    def notice_load(n, sreg):
        a(f"v_lshlrev_b32 v5, 7, v1\ns_bfm_b64 exec, {n}, 0\nbuffer_load_dword v{vSA}, v5, {WS}, {sreg} offen sc0 sc1\ns_mov_b64 exec, -1")
    def notice_wait(n, sreg, issued, delay):
        L, C, D = a.label("nw"), a.label("nc"), a.label("nd")
        a(f"v_lshlrev_b32 v{vSA+1}, 7, v1\ns_bfm_b64 exec, {n}, 0")
        if issued: a(f"s_branch {C}")
        a(f"""{L}:
        buffer_load_dword v{vSA}, v{vSA+1}, {WS}, {sreg} offen sc0 sc1
        {C}:
        s_waitcnt vmcnt(0)
        v_cmp_ne_u32 vcc, v{vSA}, v{vTAG}
        s_cbranch_vccz {D}
        s_mov_b64 exec, vcc""")
        retry(L)
        a(f"{D}:\ns_mov_b64 exec, -1")
        if delay: a(f"s_sleep {delay}")
    def k_read(F):
        for i in range(4): a(f"v_add_u32 v{vA+i}, s59, v{vAK+i}")
        for T in range(2):
            for i in range(4): a(f"ds_read_b128 v[{F+16*T+4*i}:{F+16*T+4*i+3}], v{vA+i} offset:{4096*T}")
        a(f"s_add_u32 s60, s60, 1\nv_mov_b32 v4, s60\ns_waitcnt lgkmcnt(0)\nds_write_b32 v{vCON}, v4")
    def k_mfma(F, between=None):
        for i in range(4):
            for T in range(2):
                c = "0" if i == 0 else f"v[{vD+4*T}:{vD+4*T+3}]"
                a(f"v_mfma_f32_16x16x32_bf16 v[{vD+4*T}:{vD+4*T+3}], v[{F+16*T+4*i}:{F+16*T+4*i+3}], v[{vQ+4*i}:{vQ+4*i+3}], {c}")
        if between: between()
        for r in range(8): a(f"v_cndmask_b32 v{vSA+r}, v{vSA+r}, v{vD+r}, s[46:47]")
        a("s_lshl_b64 s[46:47], s[46:47], 2")
    def v_read(F):
        a(f"v_add_u32 v{vA}, s59, v{vAV}")
        for b in range(1, 8): a(f"v_xor_b32 v{vA+b}, {hex(32*b)}, v{vA}")
        for b in range(8):
            for T in range(2): a(f"ds_read_b64_tr_b16 v[{F+4*b+2*T}:{F+4*b+2*T+1}], v{vA+b} offset:{4096*T}")
        a(f"s_add_u32 s60, s60, 1\nv_mov_b32 v4, s60")
    def v_mfma(F, waits):
        for b in range(8):
            if waits: a(f"s_waitcnt lgkmcnt({14-2*b})")
            a(f"v_mfma_f32_16x16x32_bf16 v[{vO+4*b}:{vO+4*b+3}], v[{F+4*b}:{F+4*b+3}], v[{vP}:{vP+3}], v[{vO+4*b}:{vO+4*b+3}]")
    def p_shift():
        for r in range(4): a(f"v_mov_b32_dpp v{vP+r}, v{vP+r} row_shl:2 row_mask:0xf bank_mask:0xf")
    def make_p():
        for r in range(8): a(f"v_sub_f32 v{vSA+r}, v{vS+r}, v{vM}")
        for r in range(8): a(f"v_mul_f32 v{vSA+r}, {LOG2E}, v{vSA+r}")
        for r in range(8): a(f"v_exp_f32 v{vSA+r}, v{vSA+r}")
        for r in range(8): a(f"v_mul_f32 v{vSA+r}, v{vSA+r}, v{vL}")
        for r in range(4): a(f"v_cvt_pk_bf16_f32 v{vP+r}, v{vSA+2*r}, v{vSA+2*r+1}")
        for r in range(24): a(f"v_mov_b32 v{vS+r}, v{vS+8+r}")

    WQ, X4, X = 106, 124, 130
    a(f"""L_cons:
    s_sub_u32 s3, s3, 1
    s_lshr_b32 {sHK}, s2, 4
    v_lshlrev_b32 v4, 4, v1
    v_lshlrev_b32 v5, 1, v1
    v_lshlrev_b32 v6, 13, v2
    v_lshl_add_u32 v6, v3, 3, v6
    s_and_b32 s52, s2, 3
    s_mul_i32 s58, s52, 144
    s_mul_i32 s53, s3, 36
    s_add_u32 s58, s58, s53
    s_lshl_b32 s52, s58, 13
    s_lshr_b32 s53, s2, 2
    s_lshl_b32 s53, s53, 7
    s_add_u32 s59, s52, s53
    s_sub_u32 s60, {576*8192}, s59
    v_mov_b32 v7, 0
    s_waitcnt lgkmcnt(0)""")
    srd(32, 4, 5, "1152")
    srd(36, 10, 11, "s60", "s59")
    a(f"""buffer_load_dwordx4 v[{X4}:{X4+3}], v4, {XS}, 0 offen
    buffer_load_ushort v{X4+4}, v5, {XS}, 0 offen offset:1024
    s_mov_b32 s52, 0""")
    for k in range(9):
        a(f"buffer_load_dwordx2 v[{WQ+2*k}:{WQ+1+2*k}], v6, {WQS}, s52 offen nt")
        if k < 8: a("s_add_u32 s52, s52, 32768")
    srd(28, 26, 27, hex(WS_SZ))
    a(f"buffer_load_dword v{vTAG}, v7, {WS}, 0 offen offset:{O_E} sc0 sc1")
    roles()
    a(f"""v_mov_b32 v12, -1
    v_mov_b32 v13, -1
    v_mov_b32 v14, -1
    v_mov_b32 v15, -1
    s_mul_i32 s52, s3, {12*9216}
    s_lshl_b32 s53, s56, 6
    s_add_u32 s52, s52, s53
    s_add_u32 s52, s52, {O_P3 - 12*9216}
    s_cmp_ge_u32 s2, {ID_F}
    s_cselect_b32 s52, s52, {OOB}
    v_lshrrev_b32 v9, 2, v1
    v_mul_u32_u24 v9, 9216, v9
    v_and_b32 v8, 3, v1
    v_lshl_add_u32 v9, v8, 4, v9
    s_lshl_b32 s53, s2, 10
    s_add_u32 s53, s53, {O_OP}
    s_cmp_eq_u32 s3, 0
    s_cselect_b32 s52, s53, s52
    s_cselect_b64 vcc, -1, 0
    v_cndmask_b32 v9, v9, v4, vcc
    v_add_u32 v9, s52, v9
    s_bfm_b64 exec, 48, 0
    s_cselect_b64 exec, -1, exec
    buffer_store_dwordx4 v[12:15], v9, {WS}, 0 offen sc0 sc1
    s_mov_b64 exec, -1
    s_mul_i32 s52, s54, 2304
    s_lshl_b32 s53, s55, 8
    s_add_u32 s52, s52, s53
    s_mul_i32 s53, s3, {4*P2C}
    s_add_u32 s52, s52, s53
    s_add_u32 s52, s52, {O_P2}
    s_cmp_lt_u32 s2, {ID_O}
    s_cselect_b32 s52, s52, {OOB}
    s_cmp_lt_u32 s3, 2
    s_cselect_b32 s52, s52, {OOB}
    v_mul_u32_u24 v8, {P2C}, v2
    v_lshl_add_u32 v8, v3, 4, v8
    v_add_u32 v8, s52, v8
    buffer_store_dwordx4 v[12:15], v8, {WS}, 0 offen sc0 sc1""")
    LZ = a.label("nz")
    a(f"""v_lshlrev_b32 v{vLND}, 2, v1
    v_add_u32 v{vLND}, {L_LANDED}, v{vLND}
    s_cmp_lg_u32 s3, 0
    s_cbranch_scc1 {LZ}""")
    for i in range(6): a(f"ds_write_b32 v{vLND}, v7 offset:{256*i}")
    a(f"s_waitcnt lgkmcnt(0)\n{LZ}:\ns_barrier")
    srd(40, 22, 23, "1152")
    a(f"""s_lshl_b32 s52, s3, 8
    s_add_u32 s52, s52, 256
    v_add_u32 v{vCON}, s52, v{vLND}
    v_mov_b32 v{vCNT}, {L_CNT}
    v_mov_b32 v{vONE}, 1
    v_and_b32 v8, 1, v2
    v_lshlrev_b32 v8, 1, v8
    v_lshrrev_b32 v9, 1, v2
    v_or_b32 v8, v8, v9
    v_lshl_add_u32 v{vE}, v3, 2, v8
    s_mov_b32 s44, 0x000f000f
    s_mov_b32 s45, 0x000f000f
    v_and_b32 v8, 7, v3
    v_lshlrev_b32 v8, 1, v8
    v_xor_b32 v8, v8, v2
    v_lshlrev_b32 v8, 4, v8
    v_lshl_add_u32 v{vAK}, v3, 8, v8
    v_xor_b32 v{vAK+1}, 64, v{vAK}
    v_xor_b32 v{vAK+2}, 0x80, v{vAK}
    v_xor_b32 v{vAK+3}, 0xc0, v{vAK}
    v_lshrrev_b32 v8, 2, v1
    v_and_b32 v9, 7, v8
    v_lshlrev_b32 v9, 5, v9
    v_lshl_add_u32 v9, v8, 8, v9
    v_and_b32 v8, 3, v1
    v_lshl_add_u32 v{vAV}, v8, 3, v9""")
    a("s_waitcnt vmcnt(12)")
    stamp(1)
    for i in range(4):
        a(f"v_lshlrev_b32 v{X+2*i}, 16, v{X4+i}\nv_and_b32 v{X+2*i+1}, 0xffff0000, v{X4+i}")
    a(f"v_lshlrev_b32 v{X+8}, 16, v{X4+4}")
    pk(8, X, X+2); pk(10, X+4, X+6); pk(8, 8, 10)
    a(f"v_add_f32 v8, v8, v9\nv_add_f32 v8, v8, v{X+8}")
    red63("v_add_f32", "v8")
    a(f"v_readlane_b32 s52, v8, 63\nv_mov_b32 v8, {fhex(1/576)}\nv_mul_f32 v8, s52, v8")
    a(f"v_sub_f32 v10, v{X}, v8\nv_mul_f32 v9, v10, v10")
    for i in range(1, 9): a(f"v_sub_f32 v10, v{X+i}, v8\nv_fmac_f32 v9, v10, v10")
    red63("v_add_f32", "v9")
    a(f"v_readlane_b32 s52, v9, 63\nv_mov_b32 v9, {fhex(1/576)}\nv_mul_f32 v9, s52, v9")
    ln_scale("v8", "v9", "v10")
    for i in range(9): a(f"v_sub_f32 v{X+i}, v{X+i}, v8")
    for i in range(0, 8, 2): rnd2(f"v{X+i}", f"v{X+i+1}", "v10")
    rnd1(f"v{X+8}")
    for i in range(9): a(f"v_mul_f32 v{X+i}, v{X+i}, v9")
    for i in range(0, 8, 2): rnd2(f"v{X+i}", f"v{X+i+1}", "v10")
    rnd1(f"v{X+8}")
    a(f"""v_lshlrev_b32 v8, 5, v1
    v_add_u32 v8, {L_XN}, v8
    ds_write_b128 v8, v[{X}:{X+3}]
    ds_write_b128 v8, v[{X+4}:{X+7}] offset:16
    v_lshlrev_b32 v8, 2, v1
    v_add_u32 v8, {L_XN+2048}, v8
    ds_write_b32 v8, v{X+8}
    v_add_u32 v8, s58, v2
    v_lshlrev_b32 v8, 2, v8
    v_add_u32 v8, {L_XN}, v8
    s_waitcnt lgkmcnt(0)""")
    for k in range(9): a(f"ds_read_b32 v{X+k}, v8 offset:{16*k}")
    for i in range(4): a(f"v_mov_b32 v{12+i}, 0")
    a(f"""s_lshl_b32 s52, s3, 8
    s_add_u32 s52, s52, {L_QRED}
    v_lshl_add_u32 v6, v{vE}, 2, s52
    s_waitcnt lgkmcnt(0)""")
    for k in range(9):
        w = WQ + 2*k
        a(f"""s_waitcnt vmcnt({11-k})
        v_lshlrev_b32 v8, 16, v{w}
        v_and_b32 v9, 0xffff0000, v{w}
        v_lshlrev_b32 v10, 16, v{w+1}
        v_and_b32 v11, 0xffff0000, v{w+1}
        v_fmac_f32 v12, v8, v{X+k}
        v_fmac_f32 v13, v9, v{X+k}
        v_fmac_f32 v14, v10, v{X+k}
        v_fmac_f32 v15, v11, v{X+k}""")
    tr4(12)
    a(f"""ds_write_b32 v6, v12
    s_waitcnt vmcnt(2)
    v_add_u32 v{vTAG}, {hex(TAGC)}, v{vTAG}""")
    NL = a.label("qnl")
    arrive_last(C_Q, NL)
    a(f"""v_lshlrev_b32 v8, 2, v1
    v_add_u32 v8, {L_QRED}, v8
    ds_read_b32 v12, v8
    ds_read_b32 v13, v8 offset:256
    ds_read_b32 v14, v8 offset:512
    ds_read_b32 v15, v8 offset:768
    s_lshl_b32 s52, s2, 9
    s_add_u32 s52, s52, {O_QX}
    v_lshlrev_b32 v8, 3, v1
    s_waitcnt lgkmcnt(0)
    v_add_f32 v12, v12, v13
    v_add_f32 v14, v14, v15
    v_add_f32 v12, v12, v14
    v_mov_b32 v13, v{vTAG}
    buffer_store_dwordx2 v[12:13], v8, {WS}, s52 offen sc0 sc1""")
    a(f"{NL}:")
    stamp(2)
    a(f"""s_mov_b32 s58, s3
    s_lshl_b32 s59, s3, 13
    s_mov_b32 s60, 0
    s_mov_b32 s46, 0x00030003
    s_mov_b32 s47, 0x00030003
    v_mov_b32 v{vM}, {fhex(-3.0e38)}
    v_mov_b32 v{vL}, 0""")
    for F in PRE:
        wait_unit(); k_read(F); next_unit()
    LQ, LQD = a.label("qg"), a.label("qgd")
    a(f"""s_lshl_b32 s52, {sHK}, 13
    s_lshl_b32 s53, s3, 11
    s_add_u32 s61, s52, s53
    s_add_u32 s61, s61, {O_QX}
    v_lshlrev_b32 v8, 3, v1
    {LQ}:""")
    for k in range(4): a(f"buffer_load_dwordx2 v[{WQ+2*k}:{WQ+1+2*k}], v8, {WS}, s61 offen offset:{512*k} sc0 sc1")
    a(f"""s_waitcnt vmcnt(0)
    v_xor_b32 v12, v{WQ+1}, v{vTAG}
    v_xor_b32 v13, v{WQ+3}, v{vTAG}
    v_xor_b32 v14, v{WQ+5}, v{vTAG}
    v_xor_b32 v15, v{WQ+7}, v{vTAG}
    v_or3_b32 v12, v12, v13, v14
    v_or_b32 v12, v12, v15
    v_cmp_ne_u32 vcc, 0, v12
    s_cbranch_vccz {LQD}""")
    retry(LQ)
    a(f"""{LQD}:
    v_add_f32 v12, v{WQ}, v{WQ+2}
    v_add_f32 v13, v{WQ+4}, v{WQ+6}
    v_add_f32 v12, v12, v13
    v_cvt_pk_bf16_f32 v12, v12, v12
    s_lshl_b32 s52, s3, 7
    s_add_u32 s52, s52, {L_Q}
    v_lshl_add_u32 v8, v1, 1, s52
    ds_write_b16 v8, v12
    v_and_b32 v8, 1, v3
    v_lshlrev_b32 v8, 8, v8
    v_lshl_add_u32 v8, v2, 4, v8
    v_add_u32 v8, {L_Q}, v8""")
    barrier(C_Q2)
    for i in range(4): a(f"ds_read_b128 v[{vQ+4*i}:{vQ+4*i+3}], v8 offset:{64*i}")
    stamp(3)
    a(f"""s_mul_i32 s52, s3, 144
    v_add_u32 v8, s52, v{vE}
    v_lshlrev_b32 v8, 1, v8
    v_mov_b32 v9, {OOB}
    v_cndmask_b32 v10, v9, v8, s[44:45]
    buffer_load_ushort v{vXR}, v8, {XS}, 0 offen
    buffer_load_ushort v{vXR+1}, v8, {XS}, 0 offen offset:128
    buffer_load_ushort v{vXR+2}, v10, {XS}, 0 offen offset:256""")
    a(f"""s_sub_u32 s52, s2, {ID_O}
    s_lshl_b32 s52, s52, 4
    v_and_b32 v8, 15, v{vE}
    v_add_u32 v8, s52, v8
    v_lshlrev_b32 v8, 1, v8
    v_min_u32 v{vXO}, {OOB}, v8
    buffer_load_ushort v{vXF}, v{vXO}, {XS}, 0 offen
    s_waitcnt lgkmcnt(0)""")
    if levels:
        a(f"""s_getreg_b32 s49, hwreg(HW_REG_XCC_ID, 0, 3)
        s_lshl_b32 s48, s49, 10
        s_add_u32 s48, s48, {O_PG}
        s_lshl_b32 s50, s2, 2
        s_add_u32 s50, s50, s48
        v_and_b32 v8, 7, v1
        v_lshlrev_b32 v8, 7, v8
        v_add_u32 v{vPA}, {O_PG + 0x4000}, v8
        s_cmp_lt_u32 s2, {ID_O}
        s_cselect_b32 s97, {8 - obias}, 8
        s_cmp_ge_u32 s2, {ID_F}
        s_cselect_b32 s97, {8 - fbias}, s97
        s_bitcmp1_b32 s2, 0
        s_cselect_b64 s[98:99], -1, 0
        s_bitcmp1_b32 s2, 1
        s_cselect_b64 s[100:101], -1, 0""")
        for r in range(5): a(f"v_add_u32 v{vPG+r}, 0x1000, v{vTAG}")
    for F in PRE: k_mfma(F)
    LK, LKE = a.label("kl"), a.label("ke")
    a(f"{LK}:")
    wait_unit(); k_read(vF); k_mfma(vF, next_unit); progress()
    a(f"""s_and_b32 s52, s60, 7
    s_cbranch_scc1 {LK}
    s_mov_b32 s46, 0x00030003
    s_mov_b32 s47, 0x00030003""")
    for r in range(24): a(f"v_mov_b32 v{vS+r}, v{vS+8+r}")
    for r in range(0, 8, 2): rnd2(f"v{vSA+r}", f"v{vSA+r+1}", "v4")
    N = vS + 24
    for r in range(8): a(f"v_mul_f32 v{N+r}, {fhex(128**-0.5)}, v{vSA+r}")
    for r in range(0, 8, 2): rnd2(f"v{N+r}", f"v{N+r+1}", "v4")
    a(f"v_max3_f32 v8, v{vM}, v{N}, v{N+1}")
    for r in range(2, 8, 2): a(f"v_max3_f32 v8, v8, v{N+r}, v{N+r+1}")
    a(f"v_sub_f32 v9, v{vM}, v8\nv_mov_b32 v{vM}, v8")
    for r in range(8): a(f"v_sub_f32 v{vSA+r}, v{N+r}, v8")
    a(f"v_mul_f32 v9, {LOG2E}, v9")
    for r in range(8): a(f"v_mul_f32 v{vSA+r}, {LOG2E}, v{vSA+r}")
    a("v_exp_f32 v9, v9")
    for r in range(8): a(f"v_exp_f32 v{vSA+r}, v{vSA+r}")
    a(f"v_mul_f32 v{vL}, v{vL}, v9")
    pk(vSA, vSA, vSA+2); pk(vSA+4, vSA+4, vSA+6); pk(vSA, vSA, vSA+4)
    a(f"v_add_f32 v{vL}, v{vL}, v{vSA}\nv_add_f32 v{vL}, v{vL}, v{vSA+1}")
    a(f"s_cmp_lg_u32 s60, 32\ns_cbranch_scc1 {LK}")
    stamp(4)
    a(f"v_mov_b32 v8, v{vM}")
    red_par("v_max_f32", "v8", "v4")
    a(f"""v_sub_f32 v9, v{vM}, v8
    v_mul_f32 v9, {LOG2E}, v9
    v_exp_f32 v9, v9
    s_lshl_b32 s53, s3, 4
    s_add_u32 s53, s53, {L_ST}
    v_mul_f32 v9, v9, v{vL}""")
    red_par("v_add_f32", "v9", "v4")
    LM, LMD, NL = a.label("ml"), a.label("mld"), a.label("mnl")
    a(f"""v_lshlrev_b32 v6, 3, v1
    v_add_u32 v4, s53, v6
    s_mov_b64 exec, 3
    ds_write_b64 v4, v[8:9]""")
    arrive_last(C_R, NL)
    a(f"""v_add_u32 v4, {L_ST}, v6
    s_mov_b64 exec, 3""")
    for w in range(4): a(f"ds_read_b64 v[{vSA+2*w}:{vSA+2*w+1}], v4 offset:{16*w}")
    a(f"""s_lshl_b32 s53, s2, 5
    s_add_u32 s53, s53, {O_ML}
    v_lshlrev_b32 v6, 4, v1
    v_mov_b32 v14, v{vTAG}
    v_mov_b32 v15, v{vTAG}
    s_waitcnt lgkmcnt(0)
    v_max_f32 v12, v{vSA}, v{vSA+2}
    v_max3_f32 v12, v12, v{vSA+4}, v{vSA+6}""")
    for w in range(4): a(f"v_sub_f32 v{vSA+2*w}, v{vSA+2*w}, v12")
    for w in range(4): a(f"v_mul_f32 v{vSA+2*w}, {LOG2E}, v{vSA+2*w}")
    for w in range(4): a(f"v_exp_f32 v{vSA+2*w}, v{vSA+2*w}")
    a(f"v_mul_f32 v13, v{vSA}, v{vSA+1}")
    for w in range(1, 4): a(f"v_fmac_f32 v13, v{vSA+2*w}, v{vSA+2*w+1}")
    a(f"""buffer_store_dwordx4 v[12:15], v6, {WS}, s53 offen sc0 sc1
    s_mov_b64 exec, -1
    {NL}:""")
    for r in range(32): a(f"v_mov_b32 v{vO+r}, 0")
    per = 1152 // pfg
    npf = (9 * per + 63) // 64
    a(f"""s_lshr_b32 s52, s2, 3
    s_mul_i32 s52, s52, 18
    s_lshr_b32 s53, s3, 1
    s_mul_i32 s53, s53, 9
    s_add_u32 s52, s52, s53
    s_mul_i32 s52, s52, 9216
    s_and_b32 s53, s2, 7
    s_mul_i32 s53, s53, 1152
    s_add_u32 s52, s52, s53
    s_bitcmp1_b32 s3, 0
    s_cselect_b32 s34, s18, s16
    s_cselect_b32 s35, s19, s17""")
    srd(32, 34, 35, str(8*9216 + 1152), "s52")
    for F in PRE:
        wait_unit(); v_read(F); a(f"s_waitcnt lgkmcnt(0)\nds_write_b32 v{vCON}, v4"); next_unit()
    a(f"""v_and_b32 v6, 31, v1
    v_lshlrev_b32 v6, 4, v6
    s_lshl_b32 s53, {sHK}, 9
    s_add_u32 s53, s53, {O_ML}
    {LM}:
    buffer_load_dwordx4 v[12:15], v6, {WS}, s53 offen sc0 sc1
    s_waitcnt vmcnt(0)
    v_cmp_ne_u32 vcc, v14, v{vTAG}
    s_cbranch_vccz {LMD}
    s_mov_b64 exec, vcc""")
    retry(LM)
    a(f"{LMD}:\ns_mov_b64 exec, -1")
    stamp(5)
    a(f"v_mov_b32 v{vM}, v12")
    red_par("v_max_f32", f"v{vM}", "v4")
    a(f"""v_sub_f32 v12, v12, v{vM}
    v_mul_f32 v12, {LOG2E}, v12
    v_exp_f32 v12, v12
    v_mul_f32 v13, 0.5, v13
    v_mul_f32 v9, v13, v12""")
    red_par("v_add_f32", "v9", "v4")
    a(f"""v_rcp_f32 v10, v9
    v_fma_f32 v11, -v9, v10, 1.0
    v_fma_f32 v{vL}, v11, v10, v10""")
    stamp(6)
    LVG, LV, LVE, LNS = a.label("vg"), a.label("vl"), a.label("ve"), a.label("ns")
    make_p()
    for F in PRE: v_mfma(F, False); p_shift()
    a(f"s_branch {LV}\n{LVG}:")
    LR, LRD, LRX, LRY = a.label("rdy"), a.label("rdyd"), a.label("rdyx"), a.label("rdyy")
    a(f"""s_cmp_lg_u32 s60, 48
    s_cbranch_scc1 {LRX}
    s_cmp_lg_u32 s3, 1
    s_cbranch_scc1 {LRY}
    v_lshlrev_b32 v4, 5, v1
    s_mov_b32 s52, {O_ML}
    s_mov_b32 s53, {O_ML + 4096}
    {LR}:
    buffer_load_dword v12, v4, {WS}, s52 offen offset:8 sc0 sc1
    buffer_load_dword v13, v4, {WS}, s52 offen offset:2056 sc0 sc1
    buffer_load_dword v14, v4, {WS}, s53 offen offset:8 sc0 sc1
    buffer_load_dword v15, v4, {WS}, s53 offen offset:2056 sc0 sc1
    s_waitcnt vmcnt(0)
    v_xor_b32 v12, v12, v{vTAG}
    v_xor_b32 v13, v13, v{vTAG}
    v_xor_b32 v14, v14, v{vTAG}
    v_xor_b32 v15, v15, v{vTAG}
    v_or3_b32 v12, v12, v13, v14
    v_or_b32 v12, v12, v15
    v_cmp_ne_u32 vcc, 0, v12
    s_cbranch_vccz {LRD}""")
    retry(LR)
    a(f"{LRD}:")
    one(f"ds_write_b32 v{vCNT}, v{vONE} offset:{C_RD}")
    a(f"""s_cmp_lg_u32 s2, 0
    s_cbranch_scc1 {LRY}
    v_subrev_u32 v12, {hex(TAGC-1)}, v{vTAG}""")
    one(f"buffer_store_dword v12, v7, {WS}, 0 offen offset:{O_E} sc0 sc1")
    a(f"s_branch {LRY}\n{LRX}:\ns_cmp_lg_u32 s60, 56\ns_cbranch_scc1 {LRY}")
    spin_lds(f"v{vCNT}", "v5", "s52", 1, 1, off=C_RD)
    a(f"{LRY}:")
    make_p()
    a(f"{LV}:")
    wait_unit()
    def hu1_send():
        X = a.label("hu")
        a(f"s_cmp_lg_u32 s58, 255\ns_cbranch_scc1 {X}")
        notice(f"s_lshl_b32 s53, s2, 7\ns_add_u32 s53, s53, {O_H1}", 1, 0)
        a(f"{X}:")
    if hu and hu1 == 'land': hu1_send()
    v_read(vF)
    if hu and hu1 == 'read': hu1_send()
    v_mfma(vF, True)
    a(f"""ds_write_b32 v{vCON}, v4
    s_cmp_eq_u32 s60, 64
    s_cbranch_scc1 {LVE}""")
    next_unit(); p_shift(); progress()
    def prefetch():
        for i in range(npf):
            a(f"""v_add_u32 v8, {64*i}, v1
            v_mul_u32_u24 v9, {-(-65536 // per)}, v8
            v_lshrrev_b32 v9, 16, v9
            v_mul_u32_u24 v10, {per}, v9
            v_sub_u32 v10, v8, v10
            v_mul_u32_u24 v9, 9216, v9
            v_mul_u32_u24 v10, {pfg}, v10
            v_add_u32 v9, v9, v10
            buffer_load_dword v{vQ}, v9, s[32:35], 0 offen""")
    if pf_at and pf_at < 64:
        a(f"s_cmp_lg_u32 s60, {pf_at}\ns_cbranch_scc1 {LNS}")
        prefetch()
    a(f"""{LNS}:
    s_and_b32 s52, s60, 7
    s_cbranch_scc1 {LV}
    s_branch {LVG}
    {LVE}:""")
    stamp(7)
    a(f"""s_lshl_b32 s52, s3, 10
    s_add_u32 s52, s52, {L_ORED}
    v_lshlrev_b32 v8, 9, v3
    v_lshl_add_u32 v8, v2, 4, v8
    v_add_u32 v8, s52, v8
    s_mov_b32 s46, 0x00030003
    s_mov_b32 s47, 0x00030003
    v_lshlrev_b32 v10, 4, v1
    v_add_u32 v9, {L_ORED}, v10
    s_lshl_b32 s53, s2, 10
    s_add_u32 s53, s53, {O_OP}
    s_mov_b64 exec, s[46:47]""")
    for b in range(8): a(f"ds_write_b128 v8, v[{vO+4*b}:{vO+4*b+3}] offset:{64*b}")
    NL = a.label("onl")
    arrive_last(C_O, NL)
    for w in range(4): a(f"ds_read_b128 v[{vG+4*w}:{vG+4*w+3}], v9 offset:{1024*w}")
    a("s_waitcnt lgkmcnt(0)")
    sum4(12, [vG, vG+4, vG+8, vG+12])
    for r in range(4): a(f"v_min_u32 v{12+r}, -2, v{12+r}")
    a(f"buffer_store_dwordx4 v[12:15], v10, {WS}, s53 offen sc0 sc1")
    if hold: one(f"ds_write_b32 v{vCNT}, v{vONE} offset:{C_OP}")
    a(f"{NL}:")
    stamp(8)
    LNO, LNF = a.label("noO"), a.label("noF")
    a(f"""s_cmp_ge_u32 s2, {ID_F}
    s_cbranch_scc1 {LNO}
    s_cmp_ge_u32 s2, {ID_O}
    s_cbranch_scc1 {LNF}""")
    AO, BO, GO, SO = 176, 106, 58, 90
    a(f"""v_lshlrev_b32 v10, 12, v2
    v_lshl_add_u32 v10, v3, 4, v10
    s_lshl_b32 s58, s54, 15
    s_lshr_b32 s52, s3, 1
    s_lshl_b32 s52, s52, 14
    s_add_u32 s58, s58, s52
    s_and_b32 s52, s3, 1
    s_lshl_b32 s52, s52, 9
    s_add_u32 s58, s58, s52
    s_add_u32 s58, s58, {O_OP}
    v_lshrrev_b32 v8, 2, v3
    v_lshl_add_u32 v8, v2, 3, v8
    v_lshlrev_b32 v8, 7, v8
    v_and_b32 v9, 3, v3
    v_lshl_add_u32 v8, v9, 3, v8
    v_lshrrev_b32 v9, 3, v3
    v_lshlrev_b32 v12, 1, v2
    v_and_b32 v12, 2, v12
    v_or_b32 v9, v9, v12
    v_xor_b32 v9, s3, v9
    v_lshl_add_u32 v8, v9, 5, v8
    v_add_u32 v8, {WO_L}, v8
    s_lshl_b32 s52, s3, 8
    s_add_u32 s52, s52, {L_OB}
    v_lshl_add_u32 v6, v{vE}, 1, s52
    v_lshlrev_b32 v9, 4, v2
    v_add_u32 v11, {L_OB}, v9
    v_mul_u32_u24 v12, {P2C}, v3
    v_add_u32 v9, v9, v12
    s_mov_b32 s50, 0x00ff00ff
    s_mov_b32 s51, 0x00ff00ff
    s_mul_i32 s59, s54, 2304
    s_lshl_b32 s53, s55, 8
    s_add_u32 s59, s59, s53
    s_lshl_b32 s53, s3, 6
    s_add_u32 s59, s59, s53
    s_add_u32 s59, s59, {O_P2}
    s_movk_i32 s61, 257""")
    L1, L1D, L1W = a.label("h1"), a.label("h1d"), a.label("h1w")
    def h1_loads():
        for hh in range(2):
            for k in range(4): a(f"buffer_load_dwordx4 v[{GO+16*hh+4*k}:{GO+16*hh+4*k+3}], v10, {WS}, s58 offen offset:{1024*k + 256*hh} sc0 sc1")
    def frags_if(mark, done, body):
        X = a.label("fx")
        a(f"""s_cmp_lg_u32 {done}, 0
        s_cbranch_scc1 {X}
        ds_read_b32 v4, v{vLND}
        s_waitcnt lgkmcnt(0)
        v_readfirstlane_b32 s52, v4
        s_cmp_lt_i32 s52, {mark}
        s_cbranch_scc1 {X}
        s_mov_b64 s[46:47], exec
        s_mov_b64 exec, -1""")
        body()
        a(f"s_mov_b64 exec, s[46:47]\ns_mov_b32 {done}, 1\n{X}:")
    def frags_must(mark, done, body):
        X = a.label("fm")
        a(f"s_cmp_lg_u32 {done}, 0\ns_cbranch_scc1 {X}\ns_movk_i32 s61, {mark}")
        spin_lds(f"v{vLND}", "v4", "s52", "s61")
        body()
        a(f"{X}:")
    def wo_frags():
        for s_ in range(16):
            for h in range(2):
                r = AO + 4*s_ + 2*h
                a(f"ds_read_b64_tr_b16 v[{r}:{r+1}], v8 offset:{4096*s_ + 512*h}")
    if hu:
        a(f"s_lshl_b32 s60, s54, 12\ns_add_u32 s60, s60, {O_H1}")
        spin_lds(f"v{vCNT}", "v4", "s52", 1, off=C_IS)
        notice_load(32, "s60")
        spin_lds(f"v{vLND}", "v4", "s52", "s61")
        wo_frags()
        notice_wait(32, "s60", True, d1)
        stamp(11)
    else:
        spin_lds(f"v{vLND}", "v4", "s52", "s61")
        wo_frags()
    a(f"{L1}:")
    h1_loads()
    for hh in range(2):
        a(f"s_waitcnt vmcnt({4-4*hh})")
        sum4(SO + 4*hh, [GO + 16*hh + 4*k for k in range(4)])
    poison_check(GO, 32, [SO, SO+4], L1, L1D)
    stamp(9)
    if hu:
        X = a.label("hu")
        a(f"s_or_b32 s52, s55, s3\ns_cbranch_scc1 {X}")
        notice(f"s_lshl_b32 s53, s54, 7\ns_add_u32 s53, s53, {O_H2}", 8, 1024)
        a(f"{X}:")
    tr4(SO, SO+4)
    a(f"""v_cvt_pk_bf16_f32 v12, v{SO}, v{SO+4}
    ds_write_b16 v6, v12
    ds_write_b16_d16_hi v6, v12 offset:128""")
    barrier(C_P, True)
    for s_ in range(16): a(f"ds_read_b128 v[{BO+4*s_}:{BO+4*s_+3}], v11 offset:{64*s_}")
    for s_ in range(16):
        a(f"s_waitcnt lgkmcnt({15-s_})")
        d = 12 if s_ % 2 == 0 else SO
        c = "0" if s_ < 2 else f"v[{d}:{d+3}]"
        a(f"v_mfma_f32_16x16x32_bf16 v[{d}:{d+3}], v[{AO+4*s_}:{AO+4*s_+3}], v[{BO+4*s_}:{BO+4*s_+3}], {c}")
    a("s_mov_b64 exec, s[50:51]")
    pk(12, 12, SO); pk(14, 14, SO+2)
    for r in range(4): a(f"v_min_u32 v{12+r}, -2, v{12+r}")
    a(f"buffer_store_dwordx4 v[12:15], v9, {WS}, s59 offen sc0 sc1")
    stamp(10)
    a(f"s_branch L_fin")
    a(f"{LNF}:")
    if pf_at == 64: prefetch()
    L3, L3D, L4, L4D = a.label("h3"), a.label("h3d"), a.label("h4"), a.label("h4d")
    a(f"""s_cmp_ge_u32 s2, {ID_R}
    s_cbranch_scc1 L_fin
    s_cmp_lg_u32 s3, 0
    s_cbranch_scc1 L_fin
    s_sub_u32 s52, s2, {ID_O}
    s_mul_i32 s58, s52, 9216
    s_add_u32 s58, s58, {O_P3}
    s_lshl_b32 s59, s52, 6
    s_mul_i32 s52, s54, {P2C}
    s_add_u32 s59, s59, s52
    s_add_u32 s59, s59, {O_P2}
    v_lshrrev_b32 v6, 2, v1
    v_mul_u32_u24 v6, 2304, v6
    v_and_b32 v9, 3, v1
    v_lshl_add_u32 v6, v9, 4, v6
    v_mov_b32 v8, {OOB}
    v_cndmask_b32 v9, v8, v{vXO}, s[44:45]
    v_cmp_gt_u32 vcc, 32, v1
    v_lshlrev_b32 v{vXF}, 16, v{vXF}
    v_cndmask_b32 v6, v8, v6, vcc
    v_lshlrev_b32 v10, 4, v1
    s_lshl_b32 s60, s54, 10
    s_add_u32 s61, s60, {O_H3}
    s_add_u32 s60, s60, {O_H2}""")
    if hu: notice_wait(8, "s60", False, 4)
    a(f"""{L4}:
    buffer_load_dwordx4 v[12:15], v6, {WS}, s59 offen sc0 sc1
    s_waitcnt vmcnt(0)""")
    poison_check(12, 4, [12], L4, L4D)
    stamp(11)
    tr4(12)
    for m in ("row_ror:8", "row_ror:4"):
        a(f"v_add_f32_dpp v12, v12, v12 {m} row_mask:0xf bank_mask:0xf")
    rnd1("v12")
    a(f"v_add_f32 v11, v12, v{vXF}")
    rnd1("v11")
    a("s_add_u32 s59, s58, 4096\ns_add_u32 s60, s58, 8192")
    if hu: notice_wait(8, "s61", False, d3)
    stamp(13)
    a(f"{L3}:")
    for k in range(9):
        a(f"buffer_load_dwordx4 v[{vG+4*k}:{vG+4*k+3}], v10, {WS}, s{58 + k//4} offen offset:{1024*(k%4)} sc0 sc1")
    a("s_waitcnt vmcnt(7)")
    pk(12, vG, vG+4); pk(14, vG+2, vG+6)
    for k in range(2, 9):
        a(f"s_waitcnt vmcnt({8-k})")
        pk(12, 12, vG+4*k); pk(14, 14, vG+4*k+2)
    poison_check(vG, 36, [12], L3, L3D)
    stamp(14)
    tr4(12)
    for m in ("row_ror:8", "row_ror:4"):
        a(f"v_add_f32_dpp v12, v12, v12 {m} row_mask:0xf bank_mask:0xf")
    rnd1("v12")
    a(f"""v_add_f32 v12, v12, v11
    v_cvt_pk_bf16_f32 v12, v12, v12
    buffer_store_short v12, v9, {OUTS}, 0 offen
    s_branch L_fin""")
    a(f"{LNO}:")
    AG, AD, DD, SM = 184, 58, 94, 156
    a(f"""v_mul_u32_u24 v10, 2304, v2
    v_lshl_add_u32 v10, v3, 4, v10
    v_mov_b32 v9, {OOB}
    v_cndmask_b32 v11, v9, v10, s[44:45]
    s_mul_i32 s52, s3, 576
    s_mul_i32 s96, s54, {P2C}
    s_add_u32 s96, s96, s52
    s_add_u32 s96, s96, {O_P2}
    s_add_u32 s97, s96, 9216
    s_lshl_b32 s58, s56, 6
    s_mul_i32 s53, s3, {9*9216}
    s_add_u32 s58, s58, s53
    s_add_u32 s58, s58, {O_P3}
    s_mul_i32 s52, s3, 288
    v_lshl_add_u32 v{vA+1}, v{vE}, 1, s52
    v_add_u32 v{vA+1}, {L_HN}, v{vA+1}
    s_lshl_b32 s53, s3, 3
    s_add_u32 s53, s53, {L_ST}
    v_mov_b32 v{vA+2}, s53
    v_mov_b32 v{vA+3}, {L_ST}
    v_lshlrev_b32 v{vA+5}, 4, v2
    v_add_u32 v{vA+4}, {L_HN}, v{vA+5}
    v_mul_u32_u24 v{vA+7}, 9216, v3
    v_add_u32 v{vA+7}, v{vA+7}, v{vA+5}
    v_add_u32 v{vA+5}, {L_ACT}, v{vA+5}
    v_cmp_gt_u32 vcc, 9, v3
    v_lshrrev_b32 v12, 2, v3
    v_lshl_add_u32 v12, v2, 3, v12
    v_cndmask_b32 v{vA+7}, v9, v{vA+7}, vcc
    v_mul_u32_u24 v8, 1152, v12
    v_and_b32 v6, 3, v3
    v_lshl_add_u32 v8, v6, 3, v8
    v_add_u32 v8, {WD_L}, v8
    v_lshrrev_b32 v14, 3, v3
    v_lshlrev_b32 v15, 1, v2
    v_and_b32 v15, 2, v15
    v_or_b32 v14, v14, v15
    v_and_b32 v{vA+6}, 1, v2
    v_lshl_add_u32 v{vA+6}, v{vA+6}, 2, v6
    s_lshl_b32 s52, s3, 4
    s_add_u32 s53, s52, {L_ACT}
    v_lshl_add_u32 v{vA+6}, v{vA+6}, 1, s53
    v_lshlrev_b32 v12, 6, v12
    v_and_b32 v13, 1, v3
    v_lshl_add_u32 v12, v13, 3, v12
    v_and_b32 v15, 2, v3
    v_and_b32 v13, 1, v2
    v_or_b32 v13, v13, v15
    v_xor_b32 v13, s3, v13
    v_lshl_add_u32 v12, v13, 4, v12
    v_mul_u32_u24 v15, {(WU_L - WG_L)//2}, v15
    v_add_u32 v12, {WG_L}, v12
    v_add_u32 v6, v12, v15
    v_lshlrev_b32 v{vXR}, 16, v{vXR}
    v_lshlrev_b32 v{vXR+1}, 16, v{vXR+1}
    v_lshlrev_b32 v{vXR+2}, 16, v{vXR+2}""")
    if levels or pf_at: a("s_waitcnt vmcnt(0)")
    a(f"v_mov_b32 v{vPA}, v6\ns_mul_i32 s52, s3, 9")
    for bb in range(9):
        a(f"v_xor_b32 v13, s52, v14\nv_lshl_add_u32 v{vQ+bb}, v13, 5, v8")
        if bb < 8: a("s_add_u32 s52, s52, 1")
    def gu_frags():
        for s_ in range(18):
            for h in range(2):
                r = AG + 4*s_ + 2*h
                a(f"ds_read_b64_tr_b16 v[{r}:{r+1}], v{vPA} offset:{2048*s_ + 256*h}")
        stamp(9)
    def wd_frags():
        for bb in range(9):
            for h in range(2):
                r = AD + 4*bb + 2*h
                a(f"ds_read_b64_tr_b16 v[{r}:{r+1}], v{vQ+bb} offset:{4608*h}")
        stamp(10)
    L2, L2D = a.label("h2"), a.label("h2d")
    L2W = a.label("h2w")
    def h2_loads():
        for i in range(3):
            for j in range(2):
                r = vG + 8*i + 4*j
                a(f"buffer_load_dwordx4 v[{r}:{r+3}], v{10 + (i == 2)}, {WS}, s{96+j} offen offset:{256*i} sc0 sc1")
    a(f"s_lshl_b32 s60, s54, 10\ns_add_u32 s60, s60, {O_H2}")
    if defer:
        assert order == "gd"
        if hu:
            spin_lds(f"v{vCNT}", "v4", "s52", 1, off=C_IS)
            notice_load(8, "s60")
        a(f"s_movk_i32 s61, {MK_G}")
        spin_lds(f"v{vLND}", "v4", "s52", "s61")
        gu_frags()
    else:
        for k, o in enumerate(order):
            if k == 1 and hu:
                spin_lds(f"v{vCNT}", "v4", "s52", 1, off=C_IS)
                notice_load(8, "s60")
            a(f"s_movk_i32 s61, {258 + k}")
            spin_lds(f"v{vLND}", "v4", "s52", "s61")
            (gu_frags if o == "g" else wd_frags)()
    if hu: notice_wait(8, "s60", True, d2)
    a(f"{L2}:")
    h2_loads()
    for i in range(3):
        a(f"s_waitcnt vmcnt({4-2*i})")
        sum4(SM + 4*i, [vG + 8*i + 4*j for j in range(2)])
    poison_check(vG, 24, [SM, SM+4, SM+8], L2, L2D)
    stamp(11)
    if defer: one(f"ds_write_b32 v{vCNT}, v{vONE} offset:{C_WD}")
    tr4(SM, SM+4, SM+8)
    H0, H1, H2 = f"v{SM}", f"v{SM+4}", f"v{SM+8}"
    rnd2(H0, H1, "v4"); rnd1(H2)
    a(f"v_add_f32 {H0}, {H0}, v{vXR}\nv_add_f32 {H1}, {H1}, v{vXR+1}\nv_add_f32 {H2}, {H2}, v{vXR+2}")
    rnd2(H0, H1, "v4"); rnd1(H2)
    a(f"""v_readfirstlane_b32 s53, {H0}
    v_subrev_f32 v8, s53, {H0}
    v_subrev_f32 v9, s53, {H1}
    v_subrev_f32 v10, s53, {H2}
    v_mul_f32 v5, v8, v8
    v_add_f32 v4, v8, v9
    v_cndmask_b32 v10, v7, v10, s[44:45]
    v_fmac_f32 v5, v9, v9
    v_add_f32 v4, v4, v10
    v_fmac_f32 v5, v10, v10""")
    red63("v_add_f32", "v4", "v5")
    a(f"""v_readlane_b32 s46, v4, 63
    v_readlane_b32 s47, v5, 63
    v_mov_b32 v8, {fhex(1/144)}
    v_mul_f32 v8, s46, v8
    v_mov_b32 v9, s47
    v_fma_f32 v9, -v8, s46, v9
    v_add_f32 v8, s53, v8
    s_mov_b64 exec, 1
    ds_write_b64 v{vA+2}, v[8:9]""")
    barrier(C_ST, not defer)
    a(f"""ds_read_b128 v[{vG}:{vG+3}], v{vA+3}
    ds_read_b128 v[{vG+4}:{vG+7}], v{vA+3} offset:16
    s_waitcnt lgkmcnt(0)
    v_pk_add_f32 v[8:9], v[{vG}:{vG+1}], v[{vG+2}:{vG+3}]
    v_pk_add_f32 v[10:11], v[{vG+4}:{vG+5}], v[{vG+6}:{vG+7}]
    v_pk_add_f32 v[8:9], v[8:9], v[10:11]
    v_mul_f32 v8, 0x3e800000, v8
    v_sub_f32 v{vG}, v{vG}, v8
    v_sub_f32 v{vG+2}, v{vG+2}, v8
    v_sub_f32 v{vG+4}, v{vG+4}, v8
    v_sub_f32 v{vG+6}, v{vG+6}, v8
    v_mul_f32 v10, v{vG}, v{vG}
    v_fmac_f32 v10, v{vG+2}, v{vG+2}
    v_fmac_f32 v10, v{vG+4}, v{vG+4}
    v_fmac_f32 v10, v{vG+6}, v{vG+6}
    v_fmac_f32 v9, {fhex(144.0)}, v10
    v_mul_f32 v9, {fhex(1/576)}, v9""")
    ln_scale("v8", "v9", "v10")
    for H in (H0, H1, H2): a(f"v_sub_f32 {H}, {H}, v8")
    rnd2(H0, H1, "v4"); rnd1(H2)
    for H in (H0, H1, H2): a(f"v_mul_f32 {H}, {H}, v9")
    a(f"""v_cvt_pk_bf16_f32 v12, {H0}, {H1}
    v_cvt_pk_bf16_f32 v13, {H2}, {H2}
    ds_write_b16 v{vA+1}, v12
    ds_write_b16_d16_hi v{vA+1}, v12 offset:128
    s_mov_b64 exec, s[44:45]
    ds_write_b16 v{vA+1}, v13 offset:256
    s_mov_b32 s46, 0x22222222
    s_mov_b32 s47, 0x22222222
    s_mov_b32 s48, 0xcccccccc
    s_mov_b32 s49, 0xcccccccc
    s_mov_b32 s50, 0x88888888
    s_mov_b32 s51, 0x88888888
    s_mov_b64 exec, -1""")
    barrier(C_HN, not defer)
    stamp(12)
    BG = vG
    for s_ in range(18): a(f"ds_read_b128 v[{BG+4*s_}:{BG+4*s_+3}], v{vA+4} offset:{64*s_}")
    a(f"v_mov_b32 v6, {fhex(0.044715)}")
    for s_ in range(18):
        a(f"s_waitcnt lgkmcnt({min(15, 17-s_)})")
        d = 12 if s_ % 2 == 0 else 8
        c = "0" if s_ < 2 else f"v[{d}:{d+3}]"
        a(f"v_mfma_f32_16x16x32_bf16 v[{d}:{d+3}], v[{AG+4*s_}:{AG+4*s_+3}], v[{BG+4*s_}:{BG+4*s_+3}], {c}")
        if hu and s_ + 1 == hu3:
            X = a.label("hu")
            a(f"s_cmp_lg_u32 s55, 31\ns_cbranch_scc1 {X}\ns_cmp_lg_u32 s3, 0\ns_cbranch_scc1 {X}")
            notice(f"s_lshl_b32 s53, s54, 7\ns_add_u32 s53, s53, {O_H3}", 8, 1024)
            a(f"{X}:")
    K0 = (2/3.141592653589793)**0.5
    pk(12, 12, 8); pk(14, 14, 10)
    a(f"""v_cndmask_b32 v12, v12, v13, s[46:47]
    v_cndmask_b32 v14, v14, v15, s[50:51]
    v_cndmask_b32 v12, v12, v14, s[48:49]""")
    rnd1("v12")
    a(f"""v_mov_b32 v13, v12
    v_permlane32_swap_b32 v12, v13
    v_mul_f32 v8, v12, v12
    v_mul_f32 v8, v8, v12
    v_fma_f32 v8, v8, v6, v12
    v_mul_f32 v8, {fhex(-2*K0*1.4426950408889634)}, v8
    v_exp_f32 v8, v8
    v_add_f32 v8, 1.0, v8
    v_rcp_f32 v8, v8
    v_mul_f32 v12, v12, v8""")
    rnd1("v12")
    a(f"""v_mul_f32 v12, v12, v13
    v_cvt_pk_bf16_f32 v12, v12, v12
    s_mov_b64 exec, 0x000f000f
    ds_write_b16 v{vA+6}, v12
    s_mov_b32 s46, 0x00010001
    s_mov_b32 s47, 0x00010001
    s_mov_b64 exec, -1""")
    if defer:
        a(f"s_movk_i32 s61, {MK_D}")
        spin_lds(f"v{vLND}", "v4", "s52", "s61")
        wd_frags()
    barrier(C_ACT, True)
    stamp(13)
    a(f"ds_read_b128 v[12:15], v{vA+5}\ns_waitcnt lgkmcnt(0)")
    def onehot(bb):
        B = vG + 4*bb
        for r in range(4): a(f"v_cndmask_b32 v{B+r}, v7, v{12+r}, s[46:47]")
        if bb < 8: a("s_lshl_b64 s[46:47], s[46:47], 1")
    onehot(0)
    for bb in range(9):
        if bb < 8: onehot(bb + 1)
        B = vG + 4*bb
        c = "0" if bb == 0 else f"v[{DD}:{DD+3}]"
        a(f"v_mfma_f32_16x16x32_bf16 v[{DD}:{DD+3}], v[{AD+4*bb}:{AD+4*bb+3}], v[{B}:{B+3}], {c}")
    for r in range(4): a(f"v_min_u32 v{DD+r}, -2, v{DD+r}")
    a(f"buffer_store_dwordx4 v[{DD}:{DD+3}], v{vA+7}, {WS}, s58 offen sc0 sc1")
    stamp(14)
    a("L_fin:")
    if diag:
        stamp(15)
        a(f"""s_add_u32 s26, s26, 0x20000000
        s_addc_u32 s27, s27, 0
        v_lshrrev_b32 v2, 6, v0
        v_mov_b32 v3, s2
        v_mul_u32_u24 v3, 5, v3
        v_add_u32 v3, v3, v2
        v_lshlrev_b32 v3, 7, v3
        s_waitcnt lgkmcnt(0)
        s_mov_b64 exec, 1""")
        for i in range(NST):
            a(f"v_mov_b32 v4, s{ST0+2*i}\nv_mov_b32 v5, s{ST0+2*i+1}\nglobal_store_dwordx2 v3, v[4:5], s[26:27] offset:{8*i}\ns_nop 1")
    a(f"""L_end:
    s_endpgm
    .section .rodata,"a"
    .p2align 6
    .amdhsa_kernel {KN}_kernel
    .amdhsa_next_free_vgpr 256
    .amdhsa_next_free_sgpr 102
    .amdhsa_accum_offset 256
    .amdhsa_group_segment_fixed_size 0
    .amdhsa_kernarg_size 96
    .amdhsa_user_sgpr_count 2
    .amdhsa_user_sgpr_kernarg_segment_ptr 1
    .amdhsa_system_sgpr_workgroup_id_x 1
    .amdhsa_float_denorm_mode_32 3
    .end_amdhsa_kernel""")
    a.lines = [l.replace('sc0 sc1', sc) for l in a.lines]
    a.lines, n = pad(a.lines)
    return a.text()

if __name__ == "__main__":
    import ast
    out = sys.argv[1]
    kw = {}
    for x in sys.argv[2:]:
        k, v = x.split("="); kw[k] = ast.literal_eval(v)
    open(out, "w").write(gen(**kw))
```

```python
import struct, sys
from asmlib import Asm, pad
KN = "sequential_preLN__gqa_block_cached__geglu_ffn__decode"
def fhex(x): return "0x%08x" % struct.unpack("<I", struct.pack("<f", x))[0]

def gen(W=20, W2=20, diag=False, sleep=0, polK='nt', polV='nt', polW='', ldbar=False, pf_at=0, pfg=128, npre=3, pf_rows=9, order="gd", levels=None, thr=(1,), pgw=2, lvl2=False, sc='sc0 sc1', hold=0, fastfail=True, Wh=0, NH=0, spf=0, spw=6, WO2=None, rot=True, early=True, Wd=None, hu=False, hu1='land', hu3=18, d1=0, d2=0, d3=0, hwbar=True, defer=False, obias=0, fbias=0, l2mask=0, l2sm=1, l2gain=1, rloc=True, dR=6, ndef=0, spd=0, spdfirst=True, Uend=256, Wend=32, tk=0, par=None, ramp=None):
    NSLOT = 18
    UNIT = 8192
    RING = NSLOT * UNIT
    M = RING
    L_LANDED = M
    L_CONS = M + 256
    L_CNT = M + 1280
    C_Q, C_Q2, C_O, C_P, C_ST, C_HN, C_ACT, C_R, C_LVL, C_RD, C_OP, C_IS, C_WD, C_OD = [4*i for i in range(14)]
    L_XN = M + 1536
    L_QRED = L_XN + 2304
    L_Q = L_QRED + 1024
    L_ORED = L_Q + 512
    L_OB = L_ORED + 4096
    L_ST = L_OB + 1024
    L_HN = L_ST + 64
    L_H = L_HN + 1152
    L_ACT = L_H + 2304
    LDS = L_ACT + 64
    assert LDS <= 163840, LDS
    WO_L = 32768
    WG_L = 32768
    WU_L = WG_L + 36864
    WD_L = WU_L + 36864
    assert WD_L + 36864 <= RING
    def need_cnt(lo, hi):
        last = max(u for u in range(256 - NSLOT, 256) if lo // UNIT <= u % NSLOT <= (hi - 1) // UNIT)
        return (last >> 2) + 1
    O_PG = 0x120000
    O_E, O_QX, O_ML, O_OP, O_P2, O_P3 = 0, 0x10000, 0x40000, 0x50000, 0x90000, 0xC0000
    P2C = 8 * 2304
    O_H1, O_H2, O_H3 = 0x130000, 0x138000, 0x13A000
    WS_SZ = 0x140000
    TAGC = 0x9E3779B9
    OOB = 0x7ffffff0
    a = Asm()
    NST = 16
    ST0 = 64
    def stamp(i):
        if diag: a(f"s_memrealtime s[{ST0+2*i}:{ST0+2*i+1}]")
    sTO = "s62"
    def cnt0():
        if diag: a("s_mov_b32 s95, s62")
    def cnt1(i):
        if diag: a(f"s_sub_u32 s95, s95, s62\ns_mul_i32 s95, s95, 100\ns_add_u32 s{ST0+2*i}, s{ST0}, s95\ns_addc_u32 s{ST0+2*i+1}, s{ST0+1}, 0")
    def spin_lds(vaddr, vt, st, cmp_need, sl=0, off=0):
        L, D = a.label("spin"), a.label("done")
        a(f"""{L}:
        ds_read_b32 {vt}, {vaddr} offset:{off}
        s_waitcnt lgkmcnt(0)
        v_readfirstlane_b32 {st}, {vt}
        s_cmp_ge_i32 {st}, {cmp_need}
        s_cbranch_scc1 {D}
        s_sub_u32 {sTO}, {sTO}, 1
        s_cbranch_scc1 L_end""")
        if sl: a(f"s_sleep {sl}")
        a(f"s_branch {L}\n{D}:")
    def srd(r, lo, hi, nrec, addlo=None):
        if addlo is None:
            a(f"s_mov_b32 s{r}, s{lo}\ns_mov_b32 s{r+1}, s{hi}")
        else:
            a(f"s_add_u32 s{r}, s{lo}, {addlo}\ns_addc_u32 s{r+1}, s{hi}, 0")
        a(f"s_mov_b32 s{r+2}, {nrec}\ns_mov_b32 s{r+3}, 0x20000")

    a(f"; @launch grid=(256,1,1) block=(320,1,1) lds={LDS}")
    a(f""".amdgcn_target "amdgcn-amd-amdhsa--gfx950"
    .text
    .globl {KN}_kernel
    .p2align 8
    .type {KN}_kernel,@function
    {KN}_kernel:
    s_cmp_ge_u32 s2, 256
    s_cbranch_scc1 L_end
    s_load_dwordx16 s[4:19], s[0:1], 0
    s_load_dwordx8 s[20:27], s[0:1], 64""")
    if diag:
        for i in range(1, NST): a(f"s_mov_b64 s[{ST0+2*i}:{ST0+2*i+1}], 0")
    stamp(0)
    a(f"""v_lshrrev_b32 v2, 6, v0
    v_and_b32 v1, 63, v0
    v_readfirstlane_b32 s3, v2
    s_mov_b32 {sTO}, 0x40000
    v_lshrrev_b32 v2, 4, v1
    v_and_b32 v3, 15, v1
    s_cmp_lg_u32 s3, 0
    s_cbranch_scc1 L_cons""")
    ID_O, ID_R, ID_F = 72, 108, 112
    def roles():
        a("""s_and_b32 s54, s2, 7
        s_lshr_b32 s55, s2, 3
        s_mul_i32 s56, s54, 18
        s_add_u32 s56, s56, s55
        s_sub_u32 s56, s56, 14""")
    j0 = (W + 7) % 8
    lag = (W + 7 - j0) // 8
    a(f"""s_setprio 3
    v_lshlrev_b32 v4, 1, v2
    v_xor_b32 v4, v4, v3
    v_lshlrev_b32 v4, 4, v4
    v_lshl_add_u32 v4, v2, 8, v4
    v_xor_b32 v5, 0x80, v4
    s_lshl_b32 s57, s2, 20
    s_mov_b32 s58, 0
    s_mov_b32 s59, 4096
    s_mov_b32 m0, 0
    s_waitcnt lgkmcnt(0)""")
    srd(28, 6, 7, "0x100000", "s57")
    if ldbar: a("s_barrier")
    stamp(8)
    def unit_loads(sr, pub, waits=True, W=W):
        j0 = (W + 7) % 8
        for j in range(8):
            if j == 4: a("s_add_u32 m0, m0, 4096")
            if waits: a(f"s_waitcnt vmcnt({W-1})")
            a(f"buffer_load_dwordx4 v{4 + (j&1)}, s[{sr}:{sr+3}], s{58 + (j>>2)} offen offset:{(j&3)*1024} {polK if sr == 28 else polV} lds")
            if pub and j == j0:
                a("v_mov_b32 v7, s60\nds_write_b32 v6, v7")
        a("s_add_u32 s58, s58, 8192\ns_add_u32 s59, s59, 8192")
    unit_loads(28, False, False)
    a("s_add_u32 m0, m0, 4096")
    unit_loads(28, False, W <= 16)
    srd(32, 8, 9, "0x100000", "s57")
    roles()
    a(f"""s_mul_i32 s57, s54, {512*1152}
    s_lshl_b32 s61, s55, 7
    s_add_u32 s57, s57, s61
    s_sub_u32 s61, {4096*1152}, s57""")
    srd(36, 12, 13, "s61", "s57")
    a(f"""s_lshl_b32 s57, s56, 6
    s_sub_u32 s61, {576*9216}, s57""")
    srd(40, 16, 17, "s61", "s57")
    srd(44, 18, 19, "s61", "s57")
    a(f"s_mul_i32 s57, s56, {32*1152}")
    srd(48, 20, 21, str(32*1152), "s57")
    a(f"""v_lshrrev_b32 v8, 3, v1
    v_and_b32 v9, 2, v8
    v_mul_u32_u24 v8, 1152, v8
    v_and_b32 v10, 7, v1
    v_xor_b32 v9, v9, v10
    v_lshl_add_u32 v12, v9, 4, v8
    v_xor_b32 v9, 4, v9
    v_lshl_add_u32 v16, v9, 4, v8
    v_lshrrev_b32 v8, 2, v1
    v_lshrrev_b32 v9, 5, v1
    v_mul_u32_u24 v8, 9216, v8
    v_and_b32 v10, 3, v1
    v_xor_b32 v9, v9, v10
    v_lshl_add_u32 v13, v9, 4, v8
    v_xor_b32 v9, 2, v9
    v_lshl_add_u32 v17, v9, 4, v8""")
    for i in range(18):
        a(f"""v_add_u32 v8, {64*i}, v1
        v_mul_u32_u24 v9, 911, v8
        v_lshrrev_b32 v9, 16, v9
        v_mul_u32_u24 v10, 72, v9
        v_sub_u32 v10, v8, v10
        v_and_b32 v11, 2, v9
        v_xor_b32 v10, v10, v11
        v_lshrrev_b32 v11, 1, v9
        v_and_b32 v11, 4, v11
        v_xor_b32 v10, v10, v11
        v_mul_u32_u24 v9, 1152, v9
        v_lshl_add_u32 v{32+i}, v10, 4, v9""")
    a(f"""v_mov_b32 v14, 0
    v_lshlrev_b32 v6, 2, v1
    v_add_u32 v6, {L_LANDED}, v6
    v_mov_b32 v22, 0
    v_mov_b32 v23, 0
    v_mov_b32 v20, {L_CNT + C_LVL}
    v_mov_b32 v21, {L_CONS}
    s_mov_b32 s63, 2
    s_mov_b32 s60, {2 - lag + 1}
    s_mov_b32 s57, {2*UNIT}
    s_mov_b32 s61, 0""")
    if not ldbar: a("s_barrier")
    assert all((w + 7) // 8 == lag for w in (levels or ()))
    for ph, sr, uend in ((0, 28, 128), (1, 32, Uend), (2, 32, 256))[:3 if Uend < 256 else 2]:
        L, BK = a.label("ld"), a.label("ldback")
        if ph == 1:
            a("s_mov_b32 s58, 0\ns_mov_b32 s59, 4096")
            stamp(1)
        if ph == 2:
            a(f"s_sub_u32 s60, s60, {(Wend + 7) // 8 - lag}")
            W, lag = Wend, (Wend + 7) // 8
        a(f"""{L}:
        s_waitcnt lgkmcnt(0)
        v_readfirstlane_b32 s52, v22
        s_cmp_ge_i32 s52, s61
        s_cbranch_scc1 {BK}""")
        if diag: a(f"s_add_u32 s{ST0+2*(9+min(ph,1))}, s{ST0+2*(9+min(ph,1))}, 100")
        spin_lds("v21", "v22", "s52", "s61", 1)
        a(f"""{BK}:
        s_mov_b32 m0, s57
        s_sub_u32 s52, s63, {NSLOT-1}
        s_ashr_i32 s61, s52, 2
        s_add_u32 s61, s61, 1
        s_and_b32 s52, s52, 3
        s_lshl_b32 s52, s52, 8
        s_add_u32 s52, s52, {L_CONS}
        v_mov_b32 v21, s52
        ds_read_b32 v22, v21""")
        if ph == 2:
            unit_loads(sr, True, True, Wend)
        elif levels:
            J = a.label("lj")
            a(f"v_readfirstlane_b32 s52, v23\nds_read_b32 v23, v20")
            order_ = [i for i in range(len(levels)) if i != len(levels)//2]
            labs = {i: a.label("lv") for i in order_}
            for i in order_: a(f"s_cmp_eq_u32 s52, {i+1}\ns_cbranch_scc1 {labs[i]}")
            unit_loads(sr, True, True, levels[len(levels)//2])
            for i in order_:
                a(f"s_branch {J}\n{labs[i]}:")
                unit_loads(sr, True, True, levels[i])
            a(f"{J}:")
        else:
            unit_loads(sr, True)
        if diag and ph == 0:
            for k, u in enumerate((4, 12, 24, 48)):
                X_ = a.label("st")
                a(f"s_cmp_lg_u32 s63, {u}\ns_cbranch_scc1 {X_}"); stamp(11 + k); a(f"{X_}:")
        a(f"""s_add_u32 s57, s57, {UNIT}
        s_cmp_ge_u32 s57, {RING}
        s_cselect_b32 s57, 0, s57
        s_add_u32 s60, s60, 1
        s_add_u32 s63, s63, 1
        s_cmp_lt_u32 s63, {uend}
        s_cbranch_scc1 {L}""")
    stamp(2)
    if diag:
        for ph in range(2): a(f"s_add_u32 s{ST0+2*(9+ph)}, s{ST0+2*(9+ph)}, s{ST0}\ns_addc_u32 s{ST0+2*(9+ph)+1}, s{ST0+1}, 0")
    a(f"""v_mov_b32 v21, {L_CONS}""")
    def free_check(cnt):
        L, D = a.label("fc"), a.label("fcd")
        a(f"""{L}:
        ds_read_b32 v24, v21
        ds_read_b32 v25, v21 offset:256
        ds_read_b32 v26, v21 offset:512
        ds_read_b32 v27, v21 offset:768
        s_waitcnt lgkmcnt(0)
        v_min_i32 v24, v24, v25
        v_min3_i32 v24, v24, v26, v27
        v_readfirstlane_b32 s52, v24
        s_cmp_ge_i32 s52, {cnt}
        s_cbranch_scc1 {D}
        s_sub_u32 {sTO}, {sTO}, 1
        s_cbranch_scc1 L_end
        s_branch {L}
        {D}:""")
    def weights(doO, doF, r0=0):
        seq = []
        have = [0]
        def mat(base, n, vr, sr, step):
            for i in range(n):
                c = need_cnt(base + 1024*i, base + 1024*(i+1))
                if c > have[0]:
                    have[0] = c
                    seq.append(("check", c))
                seq.append(("load", base + 1024*i, vr(i), sr, step(i)))
        if doO:
            mat(WO_L, 64, lambda i: 12 + 4*(i & 1), 36, lambda i: i * 8 * 1152); seq.append(("mark", 257))
        if doF:
            mk = 258
            for o in order:
                if o == "g":
                    seq.append(("check", need_cnt(WG_L, WU_L + 36864))); have[0] = max(have[0], seq[-1][1])
                    for i in [(k + r0) % 36 for k in range(36)]:
                        seq.append(("load", WG_L + 1024*i, 13, 40, i * 16 * 9216)); seq.append(("load", WU_L + 1024*i, 17, 44, i * 16 * 9216))
                else:
                    mat(WD_L, 36, lambda i: 32 + i % 18, 48, lambda i: (i // 18) * 16 * 1152)
                    if ndef:
                        loads = [k for k, it in enumerate(seq) if it[0] == "load"]
                        k = loads[-ndef]
                        while seq[k-1][0] == "check": k -= 1
                        seq[k:k] = [("mark", mk), ("wait", C_WD)]; mk += 1
                seq.append(("mark", mk)); mk += 1
        if not doO and not doF and (spf or spd):
            a(f"""s_mul_i32 s57, s54, 1152
            s_sub_u32 s61, {576*9216}, s57""")
            srd(40, 16, 17, "s61", "s57")
            srd(44, 18, 19, "s61", "s57")
            a(f"""s_sub_u32 s59, s55, 9
            s_mul_i32 s59, s59, {7*9216}
            v_mul_u32_u24 v8, 7282, v1
            v_lshrrev_b32 v8, 16, v8
            v_mul_u32_u24 v9, 9, v8
            v_sub_u32 v9, v1, v9
            v_mul_u32_u24 v8, 9216, v8
            v_lshl_add_u32 v15, v9, 7, v8
            s_bfm_b64 exec, 63, 0""")
            dl = []
            if spd:
                a(f"""s_mul_i32 s57, s54, {18*32*1152}
                s_sub_u32 s53, s55, 9
                s_mul_i32 s53, s53, {17*63*128}
                s_add_u32 s57, s57, s53
                s_sub_u32 s61, {18*32*1152}, s53
                v_lshlrev_b32 v14, 7, v1""")
                srd(48, 20, 21, "s61", "s57")
                dl = [("load", None, 14, 48, t * 63 * 128) for t in range(spd)]
            if spdfirst: seq += dl
            for t in range(2 * spf):
                k = t >> 1
                top = (575 if k % 2 == 0 else 287) - 35 * (k >> 1) if rot else 575 - 35 * k
                seq.append(("load", None, 15, 40 + 4*(t & 1), (top - 6) * 9216))
            if not spdfirst: seq += dl
        ev = [(8*u + 7, u + 1) for u in range(256 - lag, 256)]
        n = 2048
        for it in seq:
            if it[0] == "load": n += 1
            elif it[0] == "mark": ev.append((n - 1, it[1]))
        ev.sort()
        n = 2048
        def publish(v):
            a(f"v_mov_b32 v7, {v}\nds_write_b32 v6, v7")
            if v >= 256: stamp(min(v, 259) - 256 + 4)
        for it in seq:
            if hold and it[0] == "load" and n == 2048 + hold:
                while ev and ev[0][1] <= 256:
                    idx, v = ev.pop(0)
                    a(f"s_waitcnt vmcnt({n - 1 - idx})"); publish(v)
                a(f"v_mov_b32 v24, {L_CNT + C_OP}")
                spin_lds("v24", "v25", "s52", 1)
            if it[0] == "wait":
                a(f"v_mov_b32 v24, {L_CNT + C_IS}\nv_mov_b32 v25, 1\ns_mov_b64 exec, 1\nds_write_b32 v24, v25\ns_mov_b64 exec, -1")
                while ev and ev[0][0] < n:
                    idx, v = ev.pop(0)
                    a(f"s_waitcnt vmcnt({n - 1 - idx})"); publish(v)
                a(f"v_mov_b32 v24, {L_CNT + it[1]}")
                spin_lds("v24", "v25", "s52", 1)
            if it[0] == "check":
                while ev and ev[0][1] <= 256 and ((ev[0][1] - 1) >> 2) + 1 <= it[1]:
                    idx, v = ev.pop(0)
                    a(f"s_waitcnt vmcnt({n - 1 - idx})"); publish(v)
                free_check(it[1])
            elif it[0] == "load":
                _, la, vr, sr, so = it
                w = W if n - W < 2047 else (WO2 if (doO and WO2) else W2)
                if doF and Wd and sr == 48 and n - W >= 2047: w = Wd
                if doF and Wh and n < 2048 + NH: w = Wh
                if doF and ramp:
                    w = [ww for nn, ww in ramp if n - 2048 >= nn][-1]
                if la is None:
                    t = n - 2048
                    w = max(0, W - 5 - 4*t) + t + 1 if W - 5 - 4*t > 0 else spw
                while ev and ev[0][0] < n - w:
                    idx, v = ev.pop(0)
                    a(f"s_waitcnt vmcnt({n - 1 - idx})"); publish(v)
                if la is None:
                    if sr == 48:
                        a(f"v_add_u32 v31, {so}, v{vr}\ns_waitcnt vmcnt({w-1})\nbuffer_load_dword v30, v31, s[{sr}:{sr+3}], 0 offen")
                    else:
                        a(f"s_sub_u32 s58, {so}, s59\ns_waitcnt vmcnt({w-1})\nbuffer_load_dword v30, v{vr}, s[{sr}:{sr+3}], s58 offen")
                else:
                    a(f"s_mov_b32 m0, {la}\ns_mov_b32 s58, {so}\ns_waitcnt vmcnt({w-1})")
                    a(f"buffer_load_dwordx4 v{vr}, s[{sr}:{sr+3}], s58 offen {polW} lds")
                last = None
                while ev and ev[0][0] <= n - w: last = ev.pop(0)[1]
                if last is not None: publish(last)
                n += 1
        if doO or doF:
            a(f"v_mov_b32 v24, {L_CNT + C_IS}\nv_mov_b32 v25, 1\ns_mov_b64 exec, 1\nds_write_b32 v24, v25\ns_mov_b64 exec, -1")
        while ev:
            idx, v = ev.pop(0)
            a(f"s_waitcnt vmcnt({n - 1 - idx})")
            publish(v)
        a("s_waitcnt lgkmcnt(0)")
        stamp(3)
        a("s_branch L_fin")
    LO, LF = a.label("wO"), a.label("wF")
    a(f"s_cmp_lt_u32 s2, {ID_O}\ns_cbranch_scc1 {LO}\ns_cmp_ge_u32 s2, {ID_F}\ns_cbranch_scc1 {LF}")
    weights(False, False)
    a(f"{LO}:"); weights(True, False)
    a(f"{LF}:")
    if rot:
        LF2 = a.label("wF2")
        a(f"s_bitcmp1_b32 s56, 0\ns_cbranch_scc1 {LF2}")
        weights(False, True)
        a(f"{LF2}:"); weights(False, True, 18)
    else:
        weights(False, True)
    MK_G = 258 + order.index("g")
    MK_D = 258 + order.index("d")

    vTAG, vE, vXR, vLND, vCON, vPF_, vQ, vAK, vAV, vCNT, vONE, vM, vL, vPG = 16, 17, 18, 21, 22, 23, 24, 40, 44, 45, 46, 47, 48, 248
    vA, vF, vD, vSA, vS, vP, vO = 50, 58, 90, 98, 106, 138, 142
    PRE = [178, 210, vF][3-npre:] if npre else []
    vG = 106
    vPA, vXF, vXO = 246, 247, 23
    sHK = "s57"
    WS, XS, WQS, OUTS = "s[28:31]", "s[32:35]", "s[36:39]", "s[40:43]"
    LOG2E = fhex(1.4426950408889634)
    def one(x): a(f"s_mov_b64 exec, 1\n{x}\ns_mov_b64 exec, -1")
    def arrive_last(cnt, notlast, n=4):
        a(f"s_mov_b64 exec, 1\nds_add_rtn_u32 v5, v{vCNT}, v{vONE} offset:{cnt}\ns_waitcnt lgkmcnt(0)\nv_readfirstlane_b32 s52, v5\ns_mov_b64 exec, -1")
        a(f"s_cmp_lg_u32 s52, {n-1}\ns_cbranch_scc1 {notlast}")
    def barrier(cnt, hw=False):
        if hw and hwbar:
            a("s_mov_b64 exec, -1\ns_waitcnt lgkmcnt(0)\ns_barrier")
            return
        G = a.label("go")
        a(f"s_mov_b64 exec, 1\nds_add_rtn_u32 v5, v{vCNT}, v{vONE} offset:{cnt}\ns_waitcnt lgkmcnt(0)\nv_readfirstlane_b32 s52, v5\ns_mov_b64 exec, -1")
        a(f"s_cmp_eq_u32 s52, 3\ns_cbranch_scc1 {G}")
        spin_lds(f"v{vCNT}", "v5", "s52", 4, off=cnt)
        a(f"{G}:")
    def red63(op, *vs):
        for m in ("row_ror:8", "row_ror:4", "row_ror:2", "row_ror:1"):
            for v in vs: a(f"{op}_dpp {v}, {v}, {v} {m} row_mask:0xf bank_mask:0xf")
        for v in vs: a(f"{op}_dpp {v}, {v}, {v} row_bcast:15 row_mask:0xa bank_mask:0xf")
        for v in vs: a(f"{op}_dpp {v}, {v}, {v} row_bcast:31 row_mask:0xc bank_mask:0xf")
    def red_par(op, v, t):
        for m in ("row_ror:8", "row_ror:4", "row_ror:2"):
            a(f"{op}_dpp {v}, {v}, {v} {m} row_mask:0xf bank_mask:0xf")
        a(f"v_mov_b32 {t}, {v}\nv_permlane16_swap_b32 {t}, {v}\n{op} {v}, {v}, {t}")
        a(f"v_mov_b32 {t}, {v}\nv_permlane32_swap_b32 {t}, {v}\n{op} {v}, {v}, {t}")
    def rnd2(x, y, t):
        a(f"v_cvt_pk_bf16_f32 {t}, {x}, {y}\nv_lshlrev_b32 {x}, 16, {t}\nv_and_b32 {y}, 0xffff0000, {t}")
    def rnd1(x):
        a(f"v_cvt_pk_bf16_f32 {x}, {x}, {x}\nv_and_b32 {x}, 0xffff0000, {x}")
    def tr4(*xs):
        for x in xs: a(f"v_permlane32_swap_b32 v{x}, v{x+1}\nv_permlane32_swap_b32 v{x+2}, v{x+3}")
        for x in xs: a(f"v_add_f32 v{x}, v{x}, v{x+1}\nv_add_f32 v{x+2}, v{x+2}, v{x+3}")
        for x in xs: a(f"v_permlane16_swap_b32 v{x}, v{x+2}")
        for x in xs: a(f"v_add_f32 v{x}, v{x}, v{x+2}")
    def ln_scale(mean, var, t):
        rnd2(mean, var, t)
        a(f"v_add_f32 {var}, {fhex(1e-5)}, {var}"); rnd1(var)
        a(f"v_sqrt_f32 {var}, {var}"); rnd1(var)
        a(f"v_rcp_f32 {var}, {var}")
    def retry(L):
        a(f"s_sub_u32 {sTO}, {sTO}, 1\ns_cbranch_scc1 L_end\ns_branch {L}")
    def pk(d, x, y): a(f"v_pk_add_f32 v[{d}:{d+1}], v[{x}:{x+1}], v[{y}:{y+1}]")
    def sum4(d, srcs):
        pk(d, srcs[0], srcs[1]); pk(d+2, srcs[0]+2, srcs[1]+2)
        for x in srcs[2:]: pk(d, d, x); pk(d+2, d+2, x+2)
    def poison_check(first, n, sums, L, OK):
        pk(4, sums[0], sums[0]+2)
        for x in sums[1:]: pk(4, 4, x); pk(4, 4, x+2)
        a(f"v_cmp_u_f32 vcc, v4, v5\ns_cbranch_vccz {OK}")
        if fastfail:
            a(f"s_mov_b64 exec, vcc\ns_sub_u32 {sTO}, {sTO}, 1\ns_cbranch_scc1 L_end\ns_and_b32 s52, {sTO}, 63\ns_cbranch_scc1 {L}")
        a(f"v_max_u32 v4, v{first}, v{first+1}")
        for i in range(2, n, 2): a(f"v_max3_u32 v4, v4, v{first+i}, v{first+i+1}")
        a(f"v_cmp_eq_u32 vcc, -1, v4\ns_cbranch_vccz {OK}\ns_mov_b64 exec, vcc")
        retry(L)
        a(f"{OK}:\ns_mov_b64 exec, -1")
    def next_unit():
        a(f"""s_add_u32 s58, s58, 4
        s_add_u32 s59, s59, {4*UNIT}
        s_cmp_ge_u32 s59, {RING}
        s_cselect_b32 s52, {RING}, 0
        s_sub_u32 s59, s59, s52""")
    def wait_unit():
        a("s_add_u32 s61, s58, 1")
        spin_lds(f"v{vLND}", "v4", "s52", "s61", sleep)
        if levels: a("s_mov_b32 s63, s52")
    def progress():
        if not levels: return
        X0, X1, X2 = a.label("pg"), a.label("pgx"), a.label("pgl")
        G = vPG
        a(f"""s_cmp_lg_u32 s3, 0
        s_cbranch_scc1 {X0}
        s_add_u32 s52, s63, s97
        v_add_u32 v5, s52, v{vTAG}
        s_mov_b64 exec, 1
        buffer_store_dword v5, v7, {WS}, s50 offen
        s_mov_b64 exec, -1
        s_branch {X1}
        {X0}:
        s_cmp_lg_u32 s3, {pgw}
        s_cbranch_scc1 {X1}
        s_waitcnt vmcnt(0)""")
        X3, X4 = a.label("pgr"), a.label("pgs")
        for r in range(6): a(f"v_sub_u32 v{8+r}, v{G+r}, v{vTAG}")
        a(f"""v_lshlrev_b32 v4, 4, v1
        buffer_load_dwordx4 v[{G}:{G+3}], v4, {WS}, s48 offen sc1
        buffer_load_dword v{G+4}, v7, {WS}, s50 offen sc1
        v_cndmask_b32 v4, v8, v9, s[98:99]
        v_cndmask_b32 v5, v10, v11, s[98:99]
        v_cndmask_b32 v4, v4, v5, s[100:101]
        v_readfirstlane_b32 s97, v12
        s_lshr_b32 s52, s2, 2
        v_readlane_b32 s52, v4, s52
        v_mov_b32 v5, 0
        s_mov_b32 s61, 0
        s_cmp_lt_u32 s97, 0x800
        s_cselect_b32 s97, s97, 0x400
        s_sub_u32 s97, s97, 0x400
        s_cmp_ge_u32 s52, 0x200
        s_cbranch_scc1 {X1}""")
        for r in range(4):
            a(f"""v_cmp_gt_u32 vcc, 0x200, v{8+r}
            v_subrev_u32 v{8+r}, s52, v{8+r}
            s_bcnt1_i32_b64 s96, vcc
            v_cndmask_b32 v{8+r}, v7, v{8+r}, vcc
            s_add_u32 s61, s61, s96
            v_add_u32 v5, v5, v{8+r}""")
        red63("v_add_u32", "v5")
        a(f"v_readlane_b32 s96, v5, 63")
        if lvl2:
            a(f"""s_cmp_eq_u32 s51, 0
            s_cbranch_scc1 {X3}
            s_mov_b32 s51, 0
            v_readlane_b32 s53, v13, s49
            v_cmp_gt_u32 vcc, 0x200, v13
            v_subrev_u32 v13, s53, v13
            s_cmp_ge_u32 s53, 0x200
            s_cbranch_scc1 {X3}
            v_cndmask_b32 v13, v7, v13, vcc""")
            for m in ("row_ror:8", "row_ror:4", "row_ror:2", "row_ror:1"):
                a(f"v_add_u32_dpp v13, v13, v13 {m} row_mask:0xf bank_mask:0xf")
            a(f"""v_readfirstlane_b32 s53, v13
            s_mul_i32 s53, s53, {8*l2gain}
            s_sub_i32 s53, s53, s97
            s_ashr_i32 s53, s53, {l2sm}
            s_add_i32 s53, s53, s97
            s_max_i32 s53, s53, -1000
            s_min_i32 s53, s53, 1000
            s_add_u32 s53, s53, 0x400
            v_add_u32 v4, s53, v{vTAG}
            s_mov_b64 exec, 1
            buffer_store_dword v4, v7, {WS}, s50 offen
            s_mov_b64 exec, -1
            {X3}:
            s_and_b32 s53, s55, {l2mask}
            s_cbranch_scc1 {X2}
            s_add_u32 s53, s60, 16
            s_and_b32 s53, s53, 31
            s_cmp_lg_u32 s53, s55
            s_cbranch_scc1 {X4}
            s_mov_b32 s51, 1
            s_mov_b64 exec, 0xff
            buffer_load_dword v{G+5}, v{vPA}, {WS}, 0 offen sc1
            s_mov_b64 exec, -1
            {X4}:
            s_and_b32 s53, s60, 31
            s_cmp_lg_u32 s53, s55
            s_cbranch_scc1 {X2}
            v_cvt_f32_i32 v4, s96
            v_cvt_f32_u32 v5, s61
            v_rcp_f32 v5, v5
            v_mul_f32 v4, v4, v5
            v_rndne_f32 v4, v4
            v_cvt_i32_f32 v4, v4
            v_add3_u32 v4, v4, s52, v{vTAG}
            s_lshl_b32 s53, s49, 7
            s_add_u32 s53, s53, {O_PG + 0x4000}
            s_mov_b64 exec, 1
            buffer_store_dword v4, v7, {WS}, s53 offen sc1
            s_mov_b64 exec, -1
            {X2}:""")
        a(f"""s_lshl_b32 s96, s96, 6
        s_mul_i32 s97, s97, s61
        s_add_i32 s96, s96, s97
        s_mov_b32 s53, {len(levels)//2 + 1}""")
        for k, t in enumerate(thr):
            a(f"""s_mul_i32 s97, s61, {int(t*64)}
            s_cmp_gt_i32 s96, s97
            s_cselect_b32 s53, {len(levels)//2 + 2 + k}, s53
            s_sub_i32 s97, 0, s97
            s_cmp_lt_i32 s96, s97
            s_cselect_b32 s53, {len(levels)//2 - k}, s53""")
        if par is not None:
            a(f"""s_and_b32 s52, s60, {par}
            s_and_b32 s96, s49, 1
            s_or_b32 s52, s52, s96
            s_cmp_eq_u32 s52, 0
            s_addc_u32 s53, s53, 0
            s_min_u32 s53, s53, {len(levels)}""")
        a(f"v_mov_b32 v5, s53")
        one(f"ds_write_b32 v{vCNT}, v5 offset:{C_LVL}")
        a(f"{X1}:")
    def notice(base_expr, lanes, stride):
        a(base_expr)
        if lanes == 1:
            one(f"buffer_store_dword v{vTAG}, v7, {WS}, s53 offen sc0 sc1")
        else:
            a(f"v_mul_u32_u24 v5, {stride}, v1\ns_bfm_b64 exec, {lanes}, 0\nbuffer_store_dword v{vTAG}, v5, {WS}, s53 offen sc0 sc1\ns_mov_b64 exec, -1")
    def notice_load(n, sreg):
        a(f"v_lshlrev_b32 v5, 7, v1\ns_bfm_b64 exec, {n}, 0\nbuffer_load_dword v{vSA}, v5, {WS}, {sreg} offen sc0 sc1\ns_mov_b64 exec, -1")
    def notice_wait(n, sreg, issued, delay):
        L, C, D = a.label("nw"), a.label("nc"), a.label("nd")
        a(f"v_lshlrev_b32 v{vSA+1}, 7, v1\ns_bfm_b64 exec, {n}, 0")
        if issued: a(f"s_branch {C}")
        a(f"""{L}:
        buffer_load_dword v{vSA}, v{vSA+1}, {WS}, {sreg} offen sc0 sc1
        {C}:
        s_waitcnt vmcnt(0)
        v_cmp_ne_u32 vcc, v{vSA}, v{vTAG}
        s_cbranch_vccz {D}
        s_mov_b64 exec, vcc""")
        retry(L)
        a(f"{D}:\ns_mov_b64 exec, -1")
        if delay: a(f"s_sleep {delay}")
    def k_read(F):
        for i in range(4): a(f"v_add_u32 v{vA+i}, s59, v{vAK+i}")
        for T in range(2):
            for i in range(4): a(f"ds_read_b128 v[{F+16*T+4*i}:{F+16*T+4*i+3}], v{vA+i} offset:{4096*T}")
        a(f"s_add_u32 s60, s60, 1\nv_mov_b32 v4, s60\ns_waitcnt lgkmcnt(0)\nds_write_b32 v{vCON}, v4")
    def k_mfma(F, between=None):
        for i in range(4):
            for T in range(2):
                c = "0" if i == 0 else f"v[{vD+4*T}:{vD+4*T+3}]"
                a(f"v_mfma_f32_16x16x32_bf16 v[{vD+4*T}:{vD+4*T+3}], v[{F+16*T+4*i}:{F+16*T+4*i+3}], v[{vQ+4*i}:{vQ+4*i+3}], {c}")
        if between: between()
        for r in range(8): a(f"v_cndmask_b32 v{vSA+r}, v{vSA+r}, v{vD+r}, s[46:47]")
        a("s_lshl_b64 s[46:47], s[46:47], 2")
    vB = vO + 4
    def v_addr():
        a(f"v_add_u32 v{vA}, s59, v{vAV}")
        for b in range(1, 8): a(f"v_xor_b32 v{vA+b}, {hex(32*b)}, v{vA}")
    def v_read(F):
        for b in range(8):
            for T in range(2): a(f"ds_read_b64_tr_b16 v[{F+4*b+2*T}:{F+4*b+2*T+1}], v{vA+b} offset:{4096*T}")
        a(f"s_add_u32 s60, s60, 1\nv_mov_b32 v4, s60")
    def v_mfma(F, waits):
        for b in range(8):
            if waits: a(f"s_waitcnt lgkmcnt({waits-2*b})")
            a(f"v_mfma_f32_16x16x32_bf16 v[{vO}:{vO+3}], v[{F+4*b}:{F+4*b+3}], v[{vB+4*b}:{vB+4*b+3}], v[{vO}:{vO+3}]")
    def p_spread():
        for r in range(4): a(f"v_cndmask_b32 v{vB+r}, v7, v{vP+r}, s[46:47]")
        for b in range(1, 8):
            for r in range(4): a(f"v_mov_b32_dpp v{vB+4*b+r}, v{vB+r} row_shr:{2*b} row_mask:0xf bank_mask:0xf bound_ctrl:0")
    def p_shift():
        for r in range(4): a(f"v_mov_b32_dpp v{vP+r}, v{vP+r} row_shl:2 row_mask:0xf bank_mask:0xf")
    def make_p():
        for r in range(8): a(f"v_sub_f32 v{vSA+r}, v{vS+r}, v{vM}")
        for r in range(8): a(f"v_mul_f32 v{vSA+r}, {LOG2E}, v{vSA+r}")
        for r in range(8): a(f"v_exp_f32 v{vSA+r}, v{vSA+r}")
        for r in range(8): a(f"v_mul_f32 v{vSA+r}, v{vSA+r}, v{vL}")
        for r in range(4): a(f"v_cvt_pk_bf16_f32 v{vP+r}, v{vSA+2*r}, v{vSA+2*r+1}")
        for r in range(24): a(f"v_mov_b32 v{vS+r}, v{vS+8+r}")

    WQ, X4, X = 106, 124, 130
    a(f"""L_cons:
    s_sub_u32 s3, s3, 1
    s_lshr_b32 {sHK}, s2, 4
    v_lshlrev_b32 v4, 4, v1
    v_lshlrev_b32 v5, 1, v1
    v_lshlrev_b32 v6, 13, v2
    v_lshl_add_u32 v6, v3, 3, v6
    s_and_b32 s52, s2, 3
    s_mul_i32 s58, s52, 144
    s_mul_i32 s53, s3, 36
    s_add_u32 s58, s58, s53
    s_lshl_b32 s52, s58, 13
    s_lshr_b32 s53, s2, 2
    s_lshl_b32 s53, s53, 7
    s_add_u32 s59, s52, s53
    s_sub_u32 s60, {576*8192}, s59
    v_mov_b32 v7, 0
    s_waitcnt lgkmcnt(0)""")
    srd(32, 4, 5, "1152")
    srd(36, 10, 11, "s60", "s59")
    a(f"""buffer_load_dwordx4 v[{X4}:{X4+3}], v4, {XS}, 0 offen
    buffer_load_ushort v{X4+4}, v5, {XS}, 0 offen offset:1024
    s_mov_b32 s52, 0""")
    for k in range(9):
        a(f"buffer_load_dwordx2 v[{WQ+2*k}:{WQ+1+2*k}], v6, {WQS}, s52 offen nt")
        if k < 8: a("s_add_u32 s52, s52, 32768")
    srd(28, 26, 27, hex(WS_SZ))
    a(f"buffer_load_dword v{vTAG}, v7, {WS}, 0 offen offset:{O_E} sc0 sc1")
    roles()
    a(f"""v_mov_b32 v12, -1
    v_mov_b32 v13, -1
    v_mov_b32 v14, -1
    v_mov_b32 v15, -1
    s_mul_i32 s52, s3, {12*9216}
    s_lshl_b32 s53, s56, 6
    s_add_u32 s52, s52, s53
    s_add_u32 s52, s52, {O_P3 - 12*9216}
    s_cmp_ge_u32 s2, {ID_F}
    s_cselect_b32 s52, s52, {OOB}
    v_lshrrev_b32 v9, 2, v1
    v_mul_u32_u24 v9, 9216, v9
    v_and_b32 v8, 3, v1
    v_lshl_add_u32 v9, v8, 4, v9
    s_lshl_b32 s53, s2, 10
    s_add_u32 s53, s53, {O_OP}
    s_cmp_eq_u32 s3, 0
    s_cselect_b32 s52, s53, s52
    s_cselect_b64 vcc, -1, 0
    v_cndmask_b32 v9, v9, v4, vcc
    v_add_u32 v9, s52, v9
    s_bfm_b64 exec, 48, 0
    s_cselect_b64 exec, -1, exec
    buffer_store_dwordx4 v[12:15], v9, {WS}, 0 offen sc0 sc1
    s_mov_b64 exec, -1
    s_mul_i32 s52, s54, 2304
    s_lshl_b32 s53, s55, 8
    s_add_u32 s52, s52, s53
    s_mul_i32 s53, s3, {4*P2C}
    s_add_u32 s52, s52, s53
    s_add_u32 s52, s52, {O_P2}
    s_cmp_lt_u32 s2, {ID_O}
    s_cselect_b32 s52, s52, {OOB}
    s_cmp_lt_u32 s3, 2
    s_cselect_b32 s52, s52, {OOB}
    v_mul_u32_u24 v8, {P2C}, v2
    v_lshl_add_u32 v8, v3, 4, v8
    v_add_u32 v8, s52, v8
    buffer_store_dwordx4 v[12:15], v8, {WS}, 0 offen sc0 sc1""")
    LZ = a.label("nz")
    a(f"""v_lshlrev_b32 v{vLND}, 2, v1
    v_add_u32 v{vLND}, {L_LANDED}, v{vLND}
    s_cmp_lg_u32 s3, 0
    s_cbranch_scc1 {LZ}""")
    for i in range(6): a(f"ds_write_b32 v{vLND}, v7 offset:{256*i}")
    a(f"s_waitcnt lgkmcnt(0)\n{LZ}:\ns_barrier")
    srd(40, 22, 23, "1152")
    a(f"""s_lshl_b32 s52, s3, 8
    s_add_u32 s52, s52, 256
    v_add_u32 v{vCON}, s52, v{vLND}
    v_mov_b32 v{vCNT}, {L_CNT}
    v_mov_b32 v{vONE}, 1
    v_and_b32 v8, 1, v2
    v_lshlrev_b32 v8, 1, v8
    v_lshrrev_b32 v9, 1, v2
    v_or_b32 v8, v8, v9
    v_lshl_add_u32 v{vE}, v3, 2, v8
    s_mov_b32 s44, 0x000f000f
    s_mov_b32 s45, 0x000f000f
    v_and_b32 v8, 7, v3
    v_lshlrev_b32 v8, 1, v8
    v_xor_b32 v8, v8, v2
    v_lshlrev_b32 v8, 4, v8
    v_lshl_add_u32 v{vAK}, v3, 8, v8
    v_xor_b32 v{vAK+1}, 64, v{vAK}
    v_xor_b32 v{vAK+2}, 0x80, v{vAK}
    v_xor_b32 v{vAK+3}, 0xc0, v{vAK}
    v_lshrrev_b32 v8, 2, v1
    v_and_b32 v9, 7, v8
    v_lshlrev_b32 v9, 5, v9
    v_lshl_add_u32 v9, v8, 8, v9
    v_and_b32 v8, 3, v1
    v_lshl_add_u32 v{vAV}, v8, 3, v9""")
    a("s_waitcnt vmcnt(12)")
    stamp(1)
    for i in range(4):
        a(f"v_lshlrev_b32 v{X+2*i}, 16, v{X4+i}\nv_and_b32 v{X+2*i+1}, 0xffff0000, v{X4+i}")
    a(f"v_lshlrev_b32 v{X+8}, 16, v{X4+4}")
    pk(8, X, X+2); pk(10, X+4, X+6); pk(8, 8, 10)
    a(f"v_add_f32 v8, v8, v9\nv_add_f32 v8, v8, v{X+8}")
    red63("v_add_f32", "v8")
    a(f"v_readlane_b32 s52, v8, 63\nv_mov_b32 v8, {fhex(1/576)}\nv_mul_f32 v8, s52, v8")
    a(f"v_sub_f32 v10, v{X}, v8\nv_mul_f32 v9, v10, v10")
    for i in range(1, 9): a(f"v_sub_f32 v10, v{X+i}, v8\nv_fmac_f32 v9, v10, v10")
    red63("v_add_f32", "v9")
    a(f"v_readlane_b32 s52, v9, 63\nv_mov_b32 v9, {fhex(1/576)}\nv_mul_f32 v9, s52, v9")
    ln_scale("v8", "v9", "v10")
    for i in range(9): a(f"v_sub_f32 v{X+i}, v{X+i}, v8")
    for i in range(0, 8, 2): rnd2(f"v{X+i}", f"v{X+i+1}", "v10")
    rnd1(f"v{X+8}")
    for i in range(9): a(f"v_mul_f32 v{X+i}, v{X+i}, v9")
    for i in range(0, 8, 2): rnd2(f"v{X+i}", f"v{X+i+1}", "v10")
    rnd1(f"v{X+8}")
    a(f"""v_lshlrev_b32 v8, 5, v1
    v_add_u32 v8, {L_XN}, v8
    ds_write_b128 v8, v[{X}:{X+3}]
    ds_write_b128 v8, v[{X+4}:{X+7}] offset:16
    v_lshlrev_b32 v8, 2, v1
    v_add_u32 v8, {L_XN+2048}, v8
    ds_write_b32 v8, v{X+8}
    v_add_u32 v8, s58, v2
    v_lshlrev_b32 v8, 2, v8
    v_add_u32 v8, {L_XN}, v8
    s_waitcnt lgkmcnt(0)""")
    for k in range(9): a(f"ds_read_b32 v{X+k}, v8 offset:{16*k}")
    for i in range(4): a(f"v_mov_b32 v{12+i}, 0")
    a(f"""s_lshl_b32 s52, s3, 8
    s_add_u32 s52, s52, {L_QRED}
    v_lshl_add_u32 v6, v{vE}, 2, s52
    s_waitcnt lgkmcnt(0)""")
    for k in range(9):
        w = WQ + 2*k
        a(f"""s_waitcnt vmcnt({11-k})
        v_lshlrev_b32 v8, 16, v{w}
        v_and_b32 v9, 0xffff0000, v{w}
        v_lshlrev_b32 v10, 16, v{w+1}
        v_and_b32 v11, 0xffff0000, v{w+1}
        v_fmac_f32 v12, v8, v{X+k}
        v_fmac_f32 v13, v9, v{X+k}
        v_fmac_f32 v14, v10, v{X+k}
        v_fmac_f32 v15, v11, v{X+k}""")
    tr4(12)
    a(f"""ds_write_b32 v6, v12
    s_waitcnt vmcnt(2)
    v_add_u32 v{vTAG}, {hex(TAGC)}, v{vTAG}""")
    NL = a.label("qnl")
    arrive_last(C_Q, NL)
    a(f"""v_lshlrev_b32 v8, 2, v1
    v_add_u32 v8, {L_QRED}, v8
    ds_read_b32 v12, v8
    ds_read_b32 v13, v8 offset:256
    ds_read_b32 v14, v8 offset:512
    ds_read_b32 v15, v8 offset:768
    s_lshl_b32 s52, s2, 9
    s_add_u32 s52, s52, {O_QX}
    v_lshlrev_b32 v8, 3, v1
    s_waitcnt lgkmcnt(0)
    v_add_f32 v12, v12, v13
    v_add_f32 v14, v14, v15
    v_add_f32 v12, v12, v14
    v_mov_b32 v13, v{vTAG}
    buffer_store_dwordx2 v[12:13], v8, {WS}, s52 offen sc0 sc1""")
    a(f"{NL}:")
    stamp(2)
    a(f"""s_mov_b32 s58, s3
    s_lshl_b32 s59, s3, 13
    s_mov_b32 s60, 0
    s_mov_b32 s46, 0x00030003
    s_mov_b32 s47, 0x00030003
    v_mov_b32 v{vM}, {fhex(-3.0e38)}
    v_mov_b32 v{vL}, 0""")
    for F in PRE:
        wait_unit(); k_read(F); next_unit()
    LQ, LQD = a.label("qg"), a.label("qgd")
    a(f"""s_lshl_b32 s52, {sHK}, 13
    s_lshl_b32 s53, s3, 11
    s_add_u32 s61, s52, s53
    s_add_u32 s61, s61, {O_QX}
    v_lshlrev_b32 v8, 3, v1
    {LQ}:""")
    for k in range(4): a(f"buffer_load_dwordx2 v[{WQ+2*k}:{WQ+1+2*k}], v8, {WS}, s61 offen offset:{512*k} sc0 sc1")
    a(f"""s_waitcnt vmcnt(0)
    v_xor_b32 v12, v{WQ+1}, v{vTAG}
    v_xor_b32 v13, v{WQ+3}, v{vTAG}
    v_xor_b32 v14, v{WQ+5}, v{vTAG}
    v_xor_b32 v15, v{WQ+7}, v{vTAG}
    v_or3_b32 v12, v12, v13, v14
    v_or_b32 v12, v12, v15
    v_cmp_ne_u32 vcc, 0, v12
    s_cbranch_vccz {LQD}""")
    retry(LQ)
    a(f"""{LQD}:
    v_add_f32 v12, v{WQ}, v{WQ+2}
    v_add_f32 v13, v{WQ+4}, v{WQ+6}
    v_add_f32 v12, v12, v13
    v_cvt_pk_bf16_f32 v12, v12, v12
    s_lshl_b32 s52, s3, 7
    s_add_u32 s52, s52, {L_Q}
    v_lshl_add_u32 v8, v1, 1, s52
    ds_write_b16 v8, v12
    v_and_b32 v8, 1, v3
    v_lshlrev_b32 v8, 8, v8
    v_lshl_add_u32 v8, v2, 4, v8
    v_add_u32 v8, {L_Q}, v8""")
    barrier(C_Q2)
    for i in range(4): a(f"ds_read_b128 v[{vQ+4*i}:{vQ+4*i+3}], v8 offset:{64*i}")
    stamp(3)
    a(f"""s_mul_i32 s52, s3, 144
    v_add_u32 v8, s52, v{vE}
    v_lshlrev_b32 v8, 1, v8
    v_mov_b32 v9, {OOB}
    v_cndmask_b32 v10, v9, v8, s[44:45]
    buffer_load_ushort v{vXR}, v8, {XS}, 0 offen
    buffer_load_ushort v{vXR+1}, v8, {XS}, 0 offen offset:128
    buffer_load_ushort v{vXR+2}, v10, {XS}, 0 offen offset:256""")
    a(f"""s_sub_u32 s52, s2, {ID_O}
    s_lshl_b32 s52, s52, 4
    v_and_b32 v8, 15, v{vE}
    v_add_u32 v8, s52, v8
    v_lshlrev_b32 v8, 1, v8
    v_min_u32 v{vXO}, {OOB}, v8
    buffer_load_ushort v{vXF}, v{vXO}, {XS}, 0 offen
    s_waitcnt lgkmcnt(0)""")
    if levels:
        a(f"""s_getreg_b32 s49, hwreg(HW_REG_XCC_ID, 0, 3)
        s_lshl_b32 s48, s49, 10
        s_add_u32 s48, s48, {O_PG}
        s_lshl_b32 s50, s2, 2
        s_add_u32 s50, s50, s48
        s_lshl_b32 s52, s49, 7
        s_add_u32 s52, s52, {O_PG + 0x5000}
        s_cmp_eq_u32 s3, 0
        s_cselect_b32 s50, s50, s52
        s_mov_b32 s51, 0
        v_and_b32 v8, 7, v1
        v_lshlrev_b32 v8, 7, v8
        v_add_u32 v{vPA}, {O_PG + 0x4000}, v8
        s_cmp_lt_u32 s2, {ID_O}
        s_cselect_b32 s97, {8 - obias}, 8
        s_cmp_ge_u32 s2, {ID_F}
        s_cselect_b32 s97, {8 - fbias}, s97
        s_bitcmp1_b32 s2, 0
        s_cselect_b64 s[98:99], -1, 0
        s_bitcmp1_b32 s2, 1
        s_cselect_b64 s[100:101], -1, 0""")
        for r in range(6): a(f"v_add_u32 v{vPG+r}, 0x800, v{vTAG}")
    for F in PRE: k_mfma(F)
    LK, LKE = a.label("kl"), a.label("ke")
    a(f"{LK}:")
    wait_unit(); k_read(vF); k_mfma(vF, next_unit); progress()
    a(f"""s_and_b32 s52, s60, 7
    s_cbranch_scc1 {LK}
    s_mov_b32 s46, 0x00030003
    s_mov_b32 s47, 0x00030003""")
    for r in range(24): a(f"v_mov_b32 v{vS+r}, v{vS+8+r}")
    for r in range(0, 8, 2): rnd2(f"v{vSA+r}", f"v{vSA+r+1}", "v4")
    N = vS + 24
    for r in range(8): a(f"v_mul_f32 v{N+r}, {fhex(128**-0.5)}, v{vSA+r}")
    for r in range(0, 8, 2): rnd2(f"v{N+r}", f"v{N+r+1}", "v4")
    a(f"v_max3_f32 v8, v{vM}, v{N}, v{N+1}")
    for r in range(2, 8, 2): a(f"v_max3_f32 v8, v8, v{N+r}, v{N+r+1}")
    a(f"v_sub_f32 v9, v{vM}, v8\nv_mov_b32 v{vM}, v8")
    for r in range(8): a(f"v_sub_f32 v{vSA+r}, v{N+r}, v8")
    a(f"v_mul_f32 v9, {LOG2E}, v9")
    for r in range(8): a(f"v_mul_f32 v{vSA+r}, {LOG2E}, v{vSA+r}")
    a("v_exp_f32 v9, v9")
    for r in range(8): a(f"v_exp_f32 v{vSA+r}, v{vSA+r}")
    a(f"v_mul_f32 v{vL}, v{vL}, v9")
    pk(vSA, vSA, vSA+2); pk(vSA+4, vSA+4, vSA+6); pk(vSA, vSA, vSA+4)
    a(f"v_add_f32 v{vL}, v{vL}, v{vSA}\nv_add_f32 v{vL}, v{vL}, v{vSA+1}")
    a(f"s_cmp_lg_u32 s60, 32\ns_cbranch_scc1 {LK}")
    stamp(4)
    a(f"v_mov_b32 v8, v{vM}")
    red_par("v_max_f32", "v8", "v4")
    a(f"""v_sub_f32 v9, v{vM}, v8
    v_mul_f32 v9, {LOG2E}, v9
    v_exp_f32 v9, v9
    s_lshl_b32 s53, s3, 4
    s_add_u32 s53, s53, {L_ST}
    v_mul_f32 v9, v9, v{vL}""")
    red_par("v_add_f32", "v9", "v4")
    LM, LMD, NL = a.label("ml"), a.label("mld"), a.label("mnl")
    a(f"""v_lshlrev_b32 v6, 3, v1
    v_add_u32 v4, s53, v6
    s_mov_b64 exec, 3
    ds_write_b64 v4, v[8:9]""")
    arrive_last(C_R, NL)
    a(f"""v_add_u32 v4, {L_ST}, v6
    s_mov_b64 exec, 3""")
    for w in range(4): a(f"ds_read_b64 v[{vSA+2*w}:{vSA+2*w+1}], v4 offset:{16*w}")
    a(f"""s_lshl_b32 s53, s2, 5
    s_add_u32 s53, s53, {O_ML}
    v_lshlrev_b32 v6, 4, v1
    v_mov_b32 v14, v{vTAG}
    v_mov_b32 v15, v{vTAG}
    s_waitcnt lgkmcnt(0)
    v_max_f32 v12, v{vSA}, v{vSA+2}
    v_max3_f32 v12, v12, v{vSA+4}, v{vSA+6}""")
    for w in range(4): a(f"v_sub_f32 v{vSA+2*w}, v{vSA+2*w}, v12")
    for w in range(4): a(f"v_mul_f32 v{vSA+2*w}, {LOG2E}, v{vSA+2*w}")
    for w in range(4): a(f"v_exp_f32 v{vSA+2*w}, v{vSA+2*w}")
    a(f"v_mul_f32 v13, v{vSA}, v{vSA+1}")
    for w in range(1, 4): a(f"v_fmac_f32 v13, v{vSA+2*w}, v{vSA+2*w+1}")
    a(f"""buffer_store_dwordx4 v[12:15], v6, {WS}, s53 offen sc0 sc1
    s_mov_b64 exec, -1
    {NL}:""")
    for r in range(4): a(f"v_mov_b32 v{vO+r}, 0")
    per = 1152 // pfg
    npf = (9 * per + 63) // 64
    a(f"""s_lshr_b32 s52, s2, 3
    s_mul_i32 s52, s52, 18
    s_lshr_b32 s53, s3, 1
    s_mul_i32 s53, s53, 9
    s_add_u32 s52, s52, s53
    s_mul_i32 s52, s52, 9216
    s_and_b32 s53, s2, 7
    s_mul_i32 s53, s53, 1152
    s_add_u32 s52, s52, s53
    s_bitcmp1_b32 s3, 0
    s_cselect_b32 s34, s18, s16
    s_cselect_b32 s35, s19, s17""")
    srd(32, 34, 35, str(8*9216 + 1152), "s52")
    for F in PRE:
        v_addr(); wait_unit(); v_read(F); a(f"s_waitcnt lgkmcnt(0)\nds_write_b32 v{vCON}, v4"); next_unit()
    a(f"""v_and_b32 v6, 31, v1
    v_lshlrev_b32 v6, 4, v6
    s_lshl_b32 s53, {sHK}, 9
    s_add_u32 s53, s53, {O_ML}
    {LM}:
    buffer_load_dwordx4 v[12:15], v6, {WS}, s53 offen sc0 sc1
    s_waitcnt vmcnt(0)
    v_cmp_ne_u32 vcc, v14, v{vTAG}
    s_cbranch_vccz {LMD}
    s_mov_b64 exec, vcc""")
    retry(LM)
    a(f"{LMD}:\ns_mov_b64 exec, -1")
    stamp(5)
    a(f"v_mov_b32 v{vM}, v12")
    red_par("v_max_f32", f"v{vM}", "v4")
    a(f"""v_sub_f32 v12, v12, v{vM}
    v_mul_f32 v12, {LOG2E}, v12
    v_exp_f32 v12, v12
    v_mul_f32 v13, 0.5, v13
    v_mul_f32 v9, v13, v12""")
    red_par("v_add_f32", "v9", "v4")
    a(f"""v_rcp_f32 v10, v9
    v_fma_f32 v11, -v9, v10, 1.0
    v_fma_f32 v{vL}, v11, v10, v10""")
    stamp(6)
    LVG, LV, LVE, LNS = a.label("vg"), a.label("vl"), a.label("ve"), a.label("ns")
    a(f"""s_mov_b32 s46, 0x00030003
    s_mov_b32 s47, 0x00030003
    v_and_b32 v8, 1, v3
    v_lshlrev_b32 v8, 9, v8
    v_lshrrev_b32 v9, 1, v3
    v_lshl_add_u32 v8, v9, 6, v8
    v_lshl_add_u32 v{vQ+14}, v2, 4, v8
    v_add_u32 v8, {L_ORED}, v{vQ+14}""")
    for k in range(4):
        a(f"s_xor_b32 s52, s3, {k}\ns_lshl_b32 s52, s52, 10\nv_add_u32 v{vQ+10+k}, s52, v8")
    make_p()
    for F in PRE: p_spread(); v_mfma(F, 0); p_shift()
    a(f"s_branch {LV}\n{LVG}:")
    LR, LRD, LRX, LRY = a.label("rdy"), a.label("rdyd"), a.label("rdyx"), a.label("rdyy")
    a(f"""s_cmp_lg_u32 s60, 48
    s_cbranch_scc1 {LRX}
    s_cmp_lg_u32 s3, 1
    s_cbranch_scc1 {LRY}
    v_lshlrev_b32 v4, 5, v1
    s_mov_b32 s52, {O_ML}
    s_mov_b32 s53, {O_ML + 4096}
    {LR}:
    buffer_load_dword v12, v4, {WS}, s52 offen offset:8 sc0 sc1
    buffer_load_dword v13, v4, {WS}, s52 offen offset:2056 sc0 sc1
    buffer_load_dword v14, v4, {WS}, s53 offen offset:8 sc0 sc1
    buffer_load_dword v15, v4, {WS}, s53 offen offset:2056 sc0 sc1
    s_waitcnt vmcnt(0)
    v_xor_b32 v12, v12, v{vTAG}
    v_xor_b32 v13, v13, v{vTAG}
    v_xor_b32 v14, v14, v{vTAG}
    v_xor_b32 v15, v15, v{vTAG}
    v_or3_b32 v12, v12, v13, v14
    v_or_b32 v12, v12, v15
    v_cmp_ne_u32 vcc, 0, v12
    s_cbranch_vccz {LRD}""")
    retry(LR)
    a(f"{LRD}:")
    one(f"ds_write_b32 v{vCNT}, v{vONE} offset:{C_RD}")
    a(f"""s_cmp_lg_u32 s2, 0
    s_cbranch_scc1 {LRY}
    v_subrev_u32 v12, {hex(TAGC-0x1000)}, v{vTAG}""")
    one(f"buffer_store_dword v12, v7, {WS}, 0 offen offset:{O_E} sc0 sc1")
    a(f"s_branch {LRY}\n{LRX}:\ns_cmp_lg_u32 s60, 56\ns_cbranch_scc1 {LRY}")
    spin_lds(f"v{vCNT}", "v5", "s52", 1, 1, off=C_RD)
    a(f"{LRY}:")
    make_p()
    a(f"{LV}:")
    p_spread(); v_addr()
    a(f"s_cmp_eq_u32 s60, 63\ns_cbranch_scc1 {LVE}")
    wait_unit(); v_read(vF); v_mfma(vF, 14)
    a(f"ds_write_b32 v{vCON}, v4")
    next_unit(); p_shift(); progress()
    if tk:
        X = a.label("tk")
        a(f"s_cmp_lg_u32 s60, {tk}\ns_cbranch_scc1 {X}\ns_cmp_lg_u32 s3, 1\ns_cbranch_scc1 {X}")
        srd(36, 24, 25, "256")
        a(f"v_mov_b32 v{vQ+12}, 1")
        one(f"buffer_atomic_add v{vQ+12}, v7, s[36:39], 0 offen sc0 sc1")
        a(f"{X}:")
    def prefetch():
        for i in range(npf):
            a(f"""v_add_u32 v8, {64*i}, v1
            v_mul_u32_u24 v9, {-(-65536 // per)}, v8
            v_lshrrev_b32 v9, 16, v9
            v_mul_u32_u24 v10, {per}, v9
            v_sub_u32 v10, v8, v10
            v_mul_u32_u24 v9, 9216, v9
            v_mul_u32_u24 v10, {pfg}, v10
            v_add_u32 v9, v9, v10
            buffer_load_dword v{vQ}, v9, s[32:35], 0 offen""")
    if pf_at and pf_at < 64:
        a(f"s_cmp_lg_u32 s60, {pf_at}\ns_cbranch_scc1 {LNS}")
        prefetch()
    a(f"""{LNS}:
    s_and_b32 s52, s60, 7
    s_cbranch_scc1 {LV}
    s_branch {LVG}
    {LVE}:""")
    NL, NW, ND, NX = a.label("onl"), a.label("ow"), a.label("od"), a.label("ox")
    a(f"""s_lshl_b32 s96, s2, 10
    s_add_u32 s96, s96, {O_OP}""")
    wait_unit()
    a(f"s_mov_b64 exec, 1\nds_add_rtn_u32 v5, v{vCNT}, v{vONE} offset:{C_O}\ns_mov_b64 exec, -1")
    v_read(vF)
    a(f"""s_waitcnt lgkmcnt(14)
    v_readfirstlane_b32 s53, v5
    s_cmp_lg_u32 s53, 3
    s_cbranch_scc1 {NL}""")
    def o_reads():
        a(f"ds_read_b32 v5, v{vCNT} offset:{C_OD}")
        for w in range(3): a(f"ds_read_b128 v[{vG+4*w}:{vG+4*w+3}], v{vQ+11+w}")
    for b in range(8):
        a(f"s_waitcnt lgkmcnt({min(15, 14 - 2*b + (4 if b >= 4 else 0))})")
        a(f"v_mfma_f32_16x16x32_bf16 v[{vO}:{vO+3}], v[{vF+4*b}:{vF+4*b+3}], v[{vB+4*b}:{vB+4*b+3}], v[{vO}:{vO+3}]")
        if b == 3: o_reads()
    stamp(7)
    a(f"""{NW}:
    s_waitcnt lgkmcnt(0)
    v_readfirstlane_b32 s52, v5
    s_cmp_eq_u32 s52, 3
    s_cbranch_scc1 {ND}
    s_sub_u32 {sTO}, {sTO}, 1
    s_cbranch_scc1 L_end""")
    o_reads()
    a(f"s_branch {NW}\n{ND}:")
    pk(vG+4, vG+4, vG+8); pk(vG+6, vG+6, vG+10); pk(vG, vG, vO); pk(vG+2, vG+2, vO+2); pk(12, vG, vG+4); pk(14, vG+2, vG+6)
    for r in range(4): a(f"v_min_u32 v{12+r}, -2, v{12+r}")
    a(f"buffer_store_dwordx4 v[12:15], v{vQ+14}, {WS}, s96 offen sc0 sc1")
    if hold: one(f"ds_write_b32 v{vCNT}, v{vONE} offset:{C_OP}")
    a(f"ds_write_b32 v{vCON}, v4\ns_branch {NX}\n{NL}:")
    v_mfma(vF, 14)
    stamp(7)
    a(f"ds_write_b32 v{vCON}, v4\nds_write_b128 v{vQ+10}, v[{vO}:{vO+3}]")
    one(f"ds_add_u32 v{vCNT}, v{vONE} offset:{C_OD}")
    a(f"{NX}:")
    stamp(8)
    LNO, LNF = a.label("noO"), a.label("noF")
    a(f"""s_cmp_ge_u32 s2, {ID_F}
    s_cbranch_scc1 {LNO}
    s_cmp_ge_u32 s2, {ID_O}
    s_cbranch_scc1 {LNF}""")
    AO, BO, GO, SO = 176, 106, 58, 90
    a(f"""v_lshlrev_b32 v10, 12, v2
    v_lshl_add_u32 v10, v3, 4, v10
    s_lshl_b32 s58, s54, 15
    s_lshr_b32 s52, s3, 1
    s_lshl_b32 s52, s52, 14
    s_add_u32 s58, s58, s52
    s_and_b32 s52, s3, 1
    s_lshl_b32 s52, s52, 9
    s_add_u32 s58, s58, s52
    s_add_u32 s58, s58, {O_OP}
    v_lshrrev_b32 v8, 2, v3
    v_lshl_add_u32 v8, v2, 3, v8
    v_lshlrev_b32 v8, 7, v8
    v_and_b32 v9, 3, v3
    v_lshl_add_u32 v8, v9, 3, v8
    v_lshrrev_b32 v9, 3, v3
    v_lshlrev_b32 v12, 1, v2
    v_and_b32 v12, 2, v12
    v_or_b32 v9, v9, v12
    v_xor_b32 v9, s3, v9
    v_lshl_add_u32 v8, v9, 5, v8
    v_add_u32 v8, {WO_L}, v8
    s_lshl_b32 s52, s3, 8
    s_add_u32 s52, s52, {L_OB}
    v_lshl_add_u32 v6, v{vE}, 1, s52
    v_lshlrev_b32 v9, 4, v2
    v_add_u32 v11, {L_OB}, v9
    v_mul_u32_u24 v12, {P2C}, v3
    v_add_u32 v9, v9, v12
    s_mov_b32 s50, 0x00ff00ff
    s_mov_b32 s51, 0x00ff00ff
    s_mul_i32 s59, s54, 2304
    s_lshl_b32 s53, s55, 8
    s_add_u32 s59, s59, s53
    s_lshl_b32 s53, s3, 6
    s_add_u32 s59, s59, s53
    s_add_u32 s59, s59, {O_P2}
    s_movk_i32 s61, 257""")
    L1, L1D, L1W = a.label("h1"), a.label("h1d"), a.label("h1w")
    def h1_loads():
        for hh in range(2):
            for k in range(4): a(f"buffer_load_dwordx4 v[{GO+16*hh+4*k}:{GO+16*hh+4*k+3}], v10, {WS}, s58 offen offset:{1024*k + 256*hh} sc0 sc1")
    def frags_if(mark, done, body):
        X = a.label("fx")
        a(f"""s_cmp_lg_u32 {done}, 0
        s_cbranch_scc1 {X}
        ds_read_b32 v4, v{vLND}
        s_waitcnt lgkmcnt(0)
        v_readfirstlane_b32 s52, v4
        s_cmp_lt_i32 s52, {mark}
        s_cbranch_scc1 {X}
        s_mov_b64 s[46:47], exec
        s_mov_b64 exec, -1""")
        body()
        a(f"s_mov_b64 exec, s[46:47]\ns_mov_b32 {done}, 1\n{X}:")
    def frags_must(mark, done, body):
        X = a.label("fm")
        a(f"s_cmp_lg_u32 {done}, 0\ns_cbranch_scc1 {X}\ns_movk_i32 s61, {mark}")
        spin_lds(f"v{vLND}", "v4", "s52", "s61")
        body()
        a(f"{X}:")
    def wo_frags():
        for s_ in range(16):
            for h in range(2):
                r = AO + 4*s_ + 2*h
                a(f"ds_read_b64_tr_b16 v[{r}:{r+1}], v8 offset:{4096*s_ + 512*h}")
    if hu:
        a(f"s_lshl_b32 s60, s54, 12\ns_add_u32 s60, s60, {O_H1}")
        spin_lds(f"v{vCNT}", "v4", "s52", 1, off=C_IS)
        notice_load(32, "s60")
        spin_lds(f"v{vLND}", "v4", "s52", "s61")
        wo_frags()
        notice_wait(32, "s60", True, d1)
        stamp(11)
    else:
        spin_lds(f"v{vLND}", "v4", "s52", "s61")
        stamp(11); cnt0()
        h1_loads()
        wo_frags()
        a(f"s_branch {L1W}")
    a(f"{L1}:")
    h1_loads()
    a(f"{L1W}:")
    for hh in range(2):
        a(f"s_waitcnt vmcnt({4-4*hh})")
        sum4(SO + 4*hh, [GO + 16*hh + 4*k for k in range(4)])
    poison_check(GO, 32, [SO, SO+4], L1, L1D)
    stamp(9); cnt1(12)
    if hu:
        X = a.label("hu")
        a(f"s_or_b32 s52, s55, s3\ns_cbranch_scc1 {X}")
        notice(f"s_lshl_b32 s53, s54, 7\ns_add_u32 s53, s53, {O_H2}", 8, 1024)
        a(f"{X}:")
    tr4(SO, SO+4)
    a(f"""v_cvt_pk_bf16_f32 v12, v{SO}, v{SO+4}
    ds_write_b16 v6, v12
    ds_write_b16_d16_hi v6, v12 offset:128""")
    barrier(C_P, True)
    for s_ in range(16): a(f"ds_read_b128 v[{BO+4*s_}:{BO+4*s_+3}], v11 offset:{64*s_}")
    for s_ in range(16):
        a(f"s_waitcnt lgkmcnt({15-s_})")
        d = 12 if s_ % 2 == 0 else SO
        c = "0" if s_ < 2 else f"v[{d}:{d+3}]"
        a(f"v_mfma_f32_16x16x32_bf16 v[{d}:{d+3}], v[{AO+4*s_}:{AO+4*s_+3}], v[{BO+4*s_}:{BO+4*s_+3}], {c}")
    a("s_mov_b64 exec, s[50:51]")
    pk(12, 12, SO); pk(14, 14, SO+2)
    for r in range(4): a(f"v_min_u32 v{12+r}, -2, v{12+r}")
    a(f"buffer_store_dwordx4 v[12:15], v9, {WS}, s59 offen sc0 sc1")
    stamp(10)
    a(f"s_branch L_fin")
    a(f"{LNF}:")
    if pf_at == 64: prefetch()
    L3, L3D, L4, L4D = a.label("h3"), a.label("h3d"), a.label("h4"), a.label("h4d")
    a(f"""s_cmp_ge_u32 s2, {ID_R}
    s_cbranch_scc1 L_fin
    s_cmp_lg_u32 s3, 0
    s_cbranch_scc1 L_fin
    s_sub_u32 s52, s2, {ID_O}
    s_mul_i32 s58, s52, 9216
    s_add_u32 s58, s58, {O_P3}
    s_lshl_b32 s59, s52, 6
    s_mul_i32 s52, s54, {P2C}
    s_add_u32 s59, s59, s52
    s_add_u32 s59, s59, {O_P2}
    v_lshrrev_b32 v6, 2, v1
    v_mul_u32_u24 v6, 2304, v6
    v_and_b32 v9, 3, v1
    v_lshl_add_u32 v6, v9, 4, v6
    v_mov_b32 v8, {OOB}
    v_cndmask_b32 v9, v8, v{vXO}, s[44:45]
    v_cmp_gt_u32 vcc, 32, v1
    v_lshlrev_b32 v{vXF}, 16, v{vXF}
    v_cndmask_b32 v6, v8, v6, vcc
    v_lshlrev_b32 v10, 4, v1
    s_lshl_b32 s60, s54, 10
    s_add_u32 s61, s60, {O_H3}
    s_add_u32 s60, s60, {O_H2}""")
    a("s_add_u32 s96, s58, 4096\ns_add_u32 s97, s58, 8192")
    def h3_loads():
        for k in range(9):
            a(f"buffer_load_dwordx4 v[{vG+4*k}:{vG+4*k+3}], v10, {WS}, {['s58', 's96', 's97'][k//4]} offen offset:{1024*(k%4)} sc0 sc1")
    L3W = a.label("h3w")
    if rloc:
        LH, LHD = a.label("lh"), a.label("lhd")
        a(f"""s_getreg_b32 s60, hwreg(HW_REG_XCC_ID, 0, 3)
        s_lshl_b32 s60, s60, 7
        s_add_u32 s60, s60, {O_H3}
        s_movk_i32 s61, 200
        {LH}:
        buffer_load_dword v12, v7, {WS}, s60 offen sc1
        s_sub_u32 s61, s61, 1
        s_cbranch_scc1 {LHD}
        s_waitcnt vmcnt(0)
        v_cmp_ne_u32 vcc, v12, v{vTAG}
        s_cbranch_vccnz {LH}
        {LHD}:
        s_waitcnt vmcnt(0)""")
        if dR: a(f"s_sleep {dR}")
        stamp(13)
        L4W = a.label("h4w")
        a(f"buffer_load_dwordx4 v[12:15], v6, {WS}, s59 offen sc0 sc1")
        h3_loads()
        a(f"s_waitcnt vmcnt(9)\ns_branch {L4W}")
    a(f"""{L4}:
    buffer_load_dwordx4 v[12:15], v6, {WS}, s59 offen sc0 sc1
    s_waitcnt vmcnt(0)""")
    if rloc: a(f"{L4W}:")
    poison_check(12, 4, [12], L4, L4D)
    stamp(11)
    tr4(12)
    for m in ("row_ror:8", "row_ror:4"):
        a(f"v_add_f32_dpp v12, v12, v12 {m} row_mask:0xf bank_mask:0xf")
    rnd1("v12")
    a(f"v_add_f32 v11, v12, v{vXF}")
    rnd1("v11")
    cnt0()
    if rloc: a(f"s_branch {L3W}")
    a(f"{L3}:")
    h3_loads()
    a(f"{L3W}:")
    a("s_waitcnt vmcnt(7)")
    pk(12, vG, vG+4); pk(14, vG+2, vG+6)
    for k in range(2, 9):
        a(f"s_waitcnt vmcnt({8-k})")
        pk(12, 12, vG+4*k); pk(14, 14, vG+4*k+2)
    poison_check(vG, 36, [12], L3, L3D)
    stamp(14); cnt1(12)
    tr4(12)
    for m in ("row_ror:8", "row_ror:4"):
        a(f"v_add_f32_dpp v12, v12, v12 {m} row_mask:0xf bank_mask:0xf")
    rnd1("v12")
    a(f"""v_add_f32 v12, v12, v11
    v_cvt_pk_bf16_f32 v12, v12, v12
    buffer_store_short v12, v9, {OUTS}, 0 offen
    s_branch L_fin""")
    a(f"{LNO}:")
    AG, AD, DD, SM = 184, 58, 94, 156
    a(f"""v_mul_u32_u24 v10, 2304, v2
    v_lshl_add_u32 v10, v3, 4, v10
    v_mov_b32 v9, {OOB}
    v_cndmask_b32 v11, v9, v10, s[44:45]
    s_mul_i32 s52, s3, 576
    s_mul_i32 s96, s54, {P2C}
    s_add_u32 s96, s96, s52
    s_add_u32 s96, s96, {O_P2}
    s_add_u32 s97, s96, 9216
    s_lshl_b32 s58, s56, 6
    s_mul_i32 s53, s3, {9*9216}
    s_add_u32 s58, s58, s53
    s_add_u32 s58, s58, {O_P3}
    s_mul_i32 s52, s3, 288
    v_lshl_add_u32 v{vA+1}, v{vE}, 1, s52
    v_add_u32 v{vA+1}, {L_HN}, v{vA+1}
    s_lshl_b32 s53, s3, 3
    s_add_u32 s53, s53, {L_ST}
    v_mov_b32 v{vA+2}, s53
    v_mov_b32 v{vA+3}, {L_ST}
    v_lshlrev_b32 v{vA+5}, 4, v2
    v_add_u32 v{vA+4}, {L_HN}, v{vA+5}
    v_mul_u32_u24 v{vA+7}, 9216, v3
    v_add_u32 v{vA+7}, v{vA+7}, v{vA+5}
    v_add_u32 v{vA+5}, {L_ACT}, v{vA+5}
    v_cmp_gt_u32 vcc, 9, v3
    v_lshrrev_b32 v12, 2, v3
    v_lshl_add_u32 v12, v2, 3, v12
    v_cndmask_b32 v{vA+7}, v9, v{vA+7}, vcc
    v_mul_u32_u24 v8, 1152, v12
    v_and_b32 v6, 3, v3
    v_lshl_add_u32 v8, v6, 3, v8
    v_add_u32 v8, {WD_L}, v8
    v_lshrrev_b32 v14, 3, v3
    v_lshlrev_b32 v15, 1, v2
    v_and_b32 v15, 2, v15
    v_or_b32 v14, v14, v15
    v_and_b32 v{vA+6}, 1, v2
    v_lshl_add_u32 v{vA+6}, v{vA+6}, 2, v6
    s_lshl_b32 s52, s3, 4
    s_add_u32 s53, s52, {L_ACT}
    v_lshl_add_u32 v{vA+6}, v{vA+6}, 1, s53
    v_lshlrev_b32 v12, 6, v12
    v_and_b32 v13, 1, v3
    v_lshl_add_u32 v12, v13, 3, v12
    v_and_b32 v15, 2, v3
    v_and_b32 v13, 1, v2
    v_or_b32 v13, v13, v15
    v_xor_b32 v13, s3, v13
    v_lshl_add_u32 v12, v13, 4, v12
    v_mul_u32_u24 v15, {(WU_L - WG_L)//2}, v15
    v_add_u32 v12, {WG_L}, v12
    v_add_u32 v6, v12, v15
    v_lshlrev_b32 v{vXR}, 16, v{vXR}
    v_lshlrev_b32 v{vXR+1}, 16, v{vXR+1}
    v_lshlrev_b32 v{vXR+2}, 16, v{vXR+2}""")
    if levels or pf_at: a("s_waitcnt vmcnt(0)")
    a(f"v_mov_b32 v{vA}, v6\ns_mul_i32 s52, s3, 9")
    for bb in range(9):
        a(f"v_xor_b32 v13, s52, v14\nv_lshl_add_u32 v{vQ+bb}, v13, 5, v8")
        if bb < 8: a("s_add_u32 s52, s52, 1")
    def gu_frags():
        for s_ in range(18):
            for h in range(2):
                r = AG + 4*s_ + 2*h
                a(f"ds_read_b64_tr_b16 v[{r}:{r+1}], v{vA} offset:{2048*s_ + 256*h}")
        stamp(9)
    def wd_frags():
        for bb in range(9):
            for h in range(2):
                r = AD + 4*bb + 2*h
                a(f"ds_read_b64_tr_b16 v[{r}:{r+1}], v{vQ+bb} offset:{4608*h}")
        stamp(10)
    L2, L2D = a.label("h2"), a.label("h2d")
    L2W = a.label("h2w")
    def h2_loads():
        for i in range(3):
            for j in range(2):
                r = vG + 8*i + 4*j
                a(f"buffer_load_dwordx4 v[{r}:{r+3}], v{10 + (i == 2)}, {WS}, s{96+j} offen offset:{256*i} sc0 sc1")
    a(f"s_lshl_b32 s60, s54, 10\ns_add_u32 s60, s60, {O_H2}")
    assert order == "gd" and not hu
    a(f"s_movk_i32 s61, {MK_G}")
    spin_lds(f"v{vLND}", "v4", "s52", "s61")
    if ndef < 36:
        gu_frags()
        a(f"s_movk_i32 s61, {MK_D}")
        spin_lds(f"v{vLND}", "v4", "s52", "s61")
        cnt0()
        h2_loads()
        if ndef == 0: wd_frags()
    else:
        h2_loads()
        gu_frags()
    a(f"s_branch {L2W}\n{L2}:")
    h2_loads()
    a(f"{L2W}:")
    for i in range(3):
        a(f"s_waitcnt vmcnt({4-2*i})")
        sum4(SM + 4*i, [vG + 8*i + 4*j for j in range(2)])
    poison_check(vG, 24, [SM, SM+4, SM+8], L2, L2D)
    stamp(11); cnt1(1)
    tr4(SM, SM+4, SM+8)
    H0, H1, H2 = f"v{SM}", f"v{SM+4}", f"v{SM+8}"
    rnd2(H0, H1, "v4"); rnd1(H2)
    a(f"v_add_f32 {H0}, {H0}, v{vXR}\nv_add_f32 {H1}, {H1}, v{vXR+1}\nv_add_f32 {H2}, {H2}, v{vXR+2}")
    rnd2(H0, H1, "v4"); rnd1(H2)
    a(f"""v_readfirstlane_b32 s53, {H0}
    v_subrev_f32 v8, s53, {H0}
    v_subrev_f32 v9, s53, {H1}
    v_subrev_f32 v10, s53, {H2}
    v_mul_f32 v5, v8, v8
    v_add_f32 v4, v8, v9
    v_cndmask_b32 v10, v7, v10, s[44:45]
    v_fmac_f32 v5, v9, v9
    v_add_f32 v4, v4, v10
    v_fmac_f32 v5, v10, v10""")
    red63("v_add_f32", "v4", "v5")
    a(f"""v_readlane_b32 s46, v4, 63
    v_readlane_b32 s47, v5, 63
    v_mov_b32 v8, {fhex(1/144)}
    v_mul_f32 v8, s46, v8
    v_mov_b32 v9, s47
    v_fma_f32 v9, -v8, s46, v9
    v_add_f32 v8, s53, v8
    s_mov_b64 exec, 1
    ds_write_b64 v{vA+2}, v[8:9]""")
    barrier(C_ST, not ndef)
    if ndef: one(f"ds_write_b32 v{vCNT}, v{vONE} offset:{C_WD}")
    a(f"""ds_read_b128 v[{vG}:{vG+3}], v{vA+3}
    ds_read_b128 v[{vG+4}:{vG+7}], v{vA+3} offset:16
    s_waitcnt lgkmcnt(0)
    v_pk_add_f32 v[8:9], v[{vG}:{vG+1}], v[{vG+2}:{vG+3}]
    v_pk_add_f32 v[10:11], v[{vG+4}:{vG+5}], v[{vG+6}:{vG+7}]
    v_pk_add_f32 v[8:9], v[8:9], v[10:11]
    v_mul_f32 v8, 0x3e800000, v8
    v_sub_f32 v{vG}, v{vG}, v8
    v_sub_f32 v{vG+2}, v{vG+2}, v8
    v_sub_f32 v{vG+4}, v{vG+4}, v8
    v_sub_f32 v{vG+6}, v{vG+6}, v8
    v_mul_f32 v10, v{vG}, v{vG}
    v_fmac_f32 v10, v{vG+2}, v{vG+2}
    v_fmac_f32 v10, v{vG+4}, v{vG+4}
    v_fmac_f32 v10, v{vG+6}, v{vG+6}
    v_fmac_f32 v9, {fhex(144.0)}, v10
    v_mul_f32 v9, {fhex(1/576)}, v9""")
    ln_scale("v8", "v9", "v10")
    for H in (H0, H1, H2): a(f"v_sub_f32 {H}, {H}, v8")
    rnd2(H0, H1, "v4"); rnd1(H2)
    for H in (H0, H1, H2): a(f"v_mul_f32 {H}, {H}, v9")
    a(f"""v_cvt_pk_bf16_f32 v12, {H0}, {H1}
    v_cvt_pk_bf16_f32 v13, {H2}, {H2}
    ds_write_b16 v{vA+1}, v12
    ds_write_b16_d16_hi v{vA+1}, v12 offset:128
    s_mov_b64 exec, s[44:45]
    ds_write_b16 v{vA+1}, v13 offset:256
    s_mov_b32 s46, 0x22222222
    s_mov_b32 s47, 0x22222222
    s_mov_b32 s48, 0xcccccccc
    s_mov_b32 s49, 0xcccccccc
    s_mov_b32 s50, 0x88888888
    s_mov_b32 s51, 0x88888888
    s_mov_b64 exec, -1""")
    barrier(C_HN, not ndef)
    stamp(12)
    BG = vG
    for s_ in range(18): a(f"ds_read_b128 v[{BG+4*s_}:{BG+4*s_+3}], v{vA+4} offset:{64*s_}")
    a(f"v_mov_b32 v6, {fhex(0.044715)}")
    for s_ in range(18):
        a(f"s_waitcnt lgkmcnt({min(15, 17-s_)})")
        d = 12 if s_ % 2 == 0 else 8
        c = "0" if s_ < 2 else f"v[{d}:{d+3}]"
        a(f"v_mfma_f32_16x16x32_bf16 v[{d}:{d+3}], v[{AG+4*s_}:{AG+4*s_+3}], v[{BG+4*s_}:{BG+4*s_+3}], {c}")
        if hu and s_ + 1 == hu3:
            X = a.label("hu")
            a(f"s_cmp_lg_u32 s55, 31\ns_cbranch_scc1 {X}\ns_cmp_lg_u32 s3, 0\ns_cbranch_scc1 {X}")
            notice(f"s_lshl_b32 s53, s54, 7\ns_add_u32 s53, s53, {O_H3}", 8, 1024)
            a(f"{X}:")
    K0 = (2/3.141592653589793)**0.5
    pk(12, 12, 8); pk(14, 14, 10)
    a(f"""v_cndmask_b32 v12, v12, v13, s[46:47]
    v_cndmask_b32 v14, v14, v15, s[50:51]
    v_cndmask_b32 v12, v12, v14, s[48:49]""")
    rnd1("v12")
    a(f"""v_mov_b32 v13, v12
    v_permlane32_swap_b32 v12, v13
    v_mul_f32 v8, v12, v12
    v_mul_f32 v8, v8, v12
    v_fma_f32 v8, v8, v6, v12
    v_mul_f32 v8, {fhex(-2*K0*1.4426950408889634)}, v8
    v_exp_f32 v8, v8
    v_add_f32 v8, 1.0, v8
    v_rcp_f32 v8, v8
    v_mul_f32 v12, v12, v8""")
    rnd1("v12")
    a(f"""v_mul_f32 v12, v12, v13
    v_cvt_pk_bf16_f32 v12, v12, v12
    s_mov_b64 exec, 0x000f000f
    ds_write_b16 v{vA+6}, v12
    s_mov_b32 s46, 0x00010001
    s_mov_b32 s47, 0x00010001
    s_mov_b64 exec, -1""")
    if ndef:
        a(f"s_movk_i32 s61, 260")
        spin_lds(f"v{vLND}", "v4", "s52", "s61")
        wd_frags()
    barrier(C_ACT, True)
    stamp(13)
    a(f"ds_read_b128 v[12:15], v{vA+5}\ns_waitcnt lgkmcnt(0)")
    def onehot(bb):
        B = vG + 4*bb
        for r in range(4): a(f"v_cndmask_b32 v{B+r}, v7, v{12+r}, s[46:47]")
        if bb < 8: a("s_lshl_b64 s[46:47], s[46:47], 1")
    onehot(0)
    for bb in range(9):
        if bb < 8: onehot(bb + 1)
        B = vG + 4*bb
        c = "0" if bb == 0 else f"v[{DD}:{DD+3}]"
        a(f"v_mfma_f32_16x16x32_bf16 v[{DD}:{DD+3}], v[{AD+4*bb}:{AD+4*bb+3}], v[{B}:{B+3}], {c}")
    for r in range(4): a(f"v_min_u32 v{DD+r}, -2, v{DD+r}")
    a(f"buffer_store_dwordx4 v[{DD}:{DD+3}], v{vA+7}, {WS}, s58 offen sc0 sc1")
    stamp(14)
    if rloc:
        a(f"""s_cmp_lg_u32 s3, 0
        s_cbranch_scc1 L_fin
        s_getreg_b32 s52, hwreg(HW_REG_XCC_ID, 0, 3)
        s_lshl_b32 s52, s52, 7
        s_add_u32 s52, s52, {O_H3}
        s_mov_b64 exec, 1
        buffer_store_dword v{vTAG}, v7, {WS}, s52 offen""")
    a("L_fin:")
    if diag:
        stamp(15)
        a(f"""s_add_u32 s26, s26, 0x20000000
        s_addc_u32 s27, s27, 0
        v_lshrrev_b32 v2, 6, v0
        v_mov_b32 v3, s2
        v_mul_u32_u24 v3, 5, v3
        v_add_u32 v3, v3, v2
        v_lshlrev_b32 v3, 7, v3
        s_waitcnt lgkmcnt(0)
        s_mov_b64 exec, 1""")
        for i in range(NST):
            a(f"v_mov_b32 v4, s{ST0+2*i}\nv_mov_b32 v5, s{ST0+2*i+1}\nglobal_store_dwordx2 v3, v[4:5], s[26:27] offset:{8*i}\ns_nop 1")
    a(f"""L_end:
    s_endpgm
    .section .rodata,"a"
    .p2align 6
    .amdhsa_kernel {KN}_kernel
    .amdhsa_next_free_vgpr 256
    .amdhsa_next_free_sgpr 102
    .amdhsa_accum_offset 256
    .amdhsa_group_segment_fixed_size 0
    .amdhsa_kernarg_size 96
    .amdhsa_user_sgpr_count 2
    .amdhsa_user_sgpr_kernarg_segment_ptr 1
    .amdhsa_system_sgpr_workgroup_id_x 1
    .amdhsa_float_denorm_mode_32 3
    .end_amdhsa_kernel""")
    a.lines = [l.replace('sc0 sc1', sc) for l in a.lines]
    a.lines, n = pad(a.lines)
    return a.text()

if __name__ == "__main__":
    import ast
    out = sys.argv[1]
    kw = {}
    for x in sys.argv[2:]:
        k, v = x.split("="); kw[k] = ast.literal_eval(v)
    open(out, "w").write(gen(**kw))
```

```python
import re
class Asm:
    def __init__(self):
        self.lines = []
        self.uid = 0
    def __call__(self, s):
        for l in s.strip("\n").split("\n"):
            l = l.strip()
            if l: self.lines.append(l)
    def label(self, base):
        self.uid += 1
        return f"{base}_{self.uid}"
    def text(self):
        return "\n".join(("" if (l.endswith(":") or l.startswith(".") or l.startswith(";")) else "  ") + l for l in self.lines) + "\n"

REG = re.compile(r"\b([vsa])\[(\d+):(\d+)\]|\b([vsa])(\d+)\b|\b(vcc|exec|m0|scc)(?:_lo|_hi)?\b")
def regs(tok):
    out = set()
    for m in REG.finditer(tok):
        if m.group(1):
            for i in range(int(m.group(2)), int(m.group(3))+1): out.add(m.group(1)+str(i))
        elif m.group(4): out.add(m.group(4)+m.group(5))
        else: out.add(m.group(6))
    return out
TRANS = ("v_exp_f32","v_log_f32","v_rcp_f32","v_rsq_f32","v_sqrt_f32","v_sin_f32","v_cos_f32","v_rcp_iflag_f32")
class Ins:
    def __init__(self, text):
        self.text = text
        t = text.split(";")[0].strip()
        p = t.split(None, 1)
        self.op = p[0]
        ops = [x.strip() for x in re.split(r",(?![^\[]*\])", p[1])] if len(p) > 1 else []
        self.ops = ops
        op = self.op
        self.valu = op.startswith("v_") and not op.startswith("v_mfma")
        self.mfma = op.startswith("v_mfma")
        self.vmem = op.startswith(("buffer_", "global_", "flat_"))
        self.ds = op.startswith("ds_")
        self.salu = op.startswith("s_")
        self.dpp = "_dpp" in op or " row_" in t or "quad_perm" in t
        self.perm = op.startswith("v_permlane")
        self.trans = op.startswith(TRANS)
        self.lane = op.startswith(("v_readlane", "v_readfirstlane", "v_writelane"))
        self.ldsdma = self.vmem and (t.endswith(" lds") or " lds " in t or op.startswith("global_load_lds"))
        self.wr = set(); self.rd = set(); self.cs = set()
        self.states = 1
        if op == "s_nop": self.states = int(ops[0], 0) + 1
        if self.mfma:
            self.wr = regs(ops[0]); self.rd = regs(ops[1]) | regs(ops[2]); self.cs = regs(ops[3])
            self.passes = 8 if "32x32" in op else 4
        elif self.valu:
            if op.startswith("v_cmp"):
                self.wr = regs(ops[0]); self.rd = set().union(*[regs(x) for x in ops[1:]])
            elif self.perm and "swap" in op:
                self.wr = regs(ops[0]) | regs(ops[1]); self.rd = set(self.wr)
            elif op.startswith(("v_add_co", "v_sub_co", "v_addc_co", "v_subb_co", "v_div_scale")):
                self.wr = regs(ops[0]) | regs(ops[1]); self.rd = set().union(*[regs(x) for x in ops[2:]])
            else:
                self.wr = regs(ops[0]); self.rd = set().union(*[regs(x) for x in ops[1:]]) if len(ops) > 1 else set()
                if op.startswith(("v_fmac", "v_writelane", "v_dot2c")) or self.dpp: self.rd |= self.wr
                if op.startswith("v_cndmask") and len(ops) == 3: self.rd.add("vcc")
        elif self.vmem:
            allr = set().union(*[regs(x) for x in ops]) if ops else set()
            if "load" in op and not self.ldsdma:
                self.wr = regs(ops[0]); self.rd = set().union(*[regs(x) for x in ops[1:]])
            elif "atomic" in op and " sc0" in t:
                self.wr = regs(ops[0]); self.rd = allr
            else:
                self.rd = allr
            self.sdata = set()
            if "store" in op and ("x3" in op or "x4" in op):
                self.sdata = regs(ops[0]) if op.startswith("buffer") else regs(ops[1])
        elif self.ds:
            if op.startswith("ds_read") or "rtn" in op or "permute" in op or "swizzle" in op:
                self.wr = regs(ops[0]); self.rd = set().union(*[regs(x) for x in ops[1:]])
            else:
                self.rd = set().union(*[regs(x) for x in ops])
        elif self.salu:
            nodst = ("s_cmp", "s_waitcnt", "s_nop", "s_branch", "s_cbranch", "s_sleep", "s_barrier", "s_endpgm", "s_setprio", "s_bitcmp", "s_setreg")
            if not op.startswith(nodst) and ops:
                self.wr = regs(ops[0]); self.rd = set().union(*[regs(x) for x in ops[1:]]) if len(ops) > 1 else set()
                if "saveexec" in op: self.wr.add("exec")
            else:
                self.rd = set().union(*[regs(x) for x in ops]) if ops else set()
        self.branch = op.startswith(("s_branch", "s_cbranch"))
        self.uncond = op in ("s_branch", "s_endpgm")
        self.target = ops[0] if self.branch else None
def vg(s): return {r for r in s if r[0] in "va" and r != "vcc"}
def sg(s): return {r for r in s if r[0] == "s" or r == "vcc"}
def need(p, c):
    n = 0
    if p.valu:
        w = vg(p.wr)
        if c.lane and (w & c.rd): n = max(n, 1)
        if c.dpp and (w & c.rd): n = max(n, 2)
        if c.perm and (w & c.rd): n = max(n, 2)
        if c.mfma and (w & (c.rd | c.cs)): n = max(n, 2)
        if p.trans and (c.valu and not c.trans) and (w & c.rd): n = max(n, 1)
        if p.trans and (c.vmem or c.ds) and (w & c.rd): n = max(n, 1)
        sw = sg(p.wr)
        if sw:
            if c.lane and (sw & c.rd): n = max(n, 4)
            if (c.valu or c.mfma) and (sw & c.rd): n = max(n, 2)
            if c.vmem and (sw & c.rd): n = max(n, 5)
            if c.salu and (sw & c.rd): n = max(n, 1)
        if "exec" in p.wr: n = max(n, 5)
    if p.mfma:
        d = p.wr
        big = 8 if p.passes == 4 else 12
        if c.mfma:
            if d & c.rd: n = max(n, big)
            if (d & c.cs) and d != c.cs: n = max(n, big - 2)
            if (d & c.wr) and not (d == c.cs): n = max(n, big)
        elif (c.valu or c.vmem or c.ds) and (d & (c.rd | c.wr)): n = max(n, big)
        if c.valu and (p.cs & c.wr): n = max(n, 3 if p.passes == 4 else 7)
    if p.salu and "m0" in p.wr and c.ldsdma: n = max(n, 1)
    if p.vmem and getattr(p, "sdata", None) and (c.valu or c.ds or c.vmem or c.mfma) and (p.sdata & c.wr): n = max(n, 2)
    return n
def pad(lines, maxd=12):
    items = []
    for l in lines:
        if l.endswith(":") or l.startswith(".") or l.startswith(";"): items.append(l)
        else: items.append(Ins(l))
    added = 0
    while True:
        lab = {}
        for i, it in enumerate(items):
            if isinstance(it, str) and it.endswith(":"): lab[it[:-1]] = i
        srcs = {}
        for i, it in enumerate(items):
            if isinstance(it, Ins) and it.branch and it.target in lab: srcs.setdefault(lab[it.target], []).append(i)
        P = [None] * len(items)
        cur = []
        for i, it in enumerate(items):
            if isinstance(it, Ins):
                P[i] = cur
                cur = [] if it.uncond else [i]
            elif i in srcs:
                cur = cur + srcs[i]
        extra = {}
        for i, c in enumerate(items):
            if not isinstance(c, Ins): continue
            deficit = 0
            stack = [(j, 0) for j in P[i]]
            seen = {}
            while stack:
                j, dist = stack.pop()
                if dist >= maxd or seen.get(j, 99) <= dist: continue
                seen[j] = dist
                p = items[j]
                d = need(p, c) - dist
                if d > deficit: deficit = d
                nd = dist + p.states + (extra.get(j, 0) if j < i else 0)
                for k in P[j]: stack.append((k, nd))
            if deficit > 0: extra[i] = deficit
        if not extra: break
        out = []
        for i, it in enumerate(items):
            if i in extra:
                out.append(Ins(f"s_nop {extra[i]-1}")); added += 1
            out.append(it)
        items = out
    return [it if isinstance(it, str) else it.text for it in items], added
```

```python
import struct, sys
from asmlib import Asm, pad
KN = "sequential_preLN__gqa_block_cached__geglu_ffn__decode"
def fhex(x): return "0x%08x" % struct.unpack("<I", struct.pack("<f", x))[0]

def gen(W=20, W2=20, diag=False, sleep=0, polK='nt', polV='nt', polW='', ldbar=False, pf_at=0, pfg=128, npre=3, pf_rows=9, order="gd", levels=None, thr=(1,), pgw=2, lvl2=False, sc='sc0 sc1', hold=0, fastfail=True, Wh=0, NH=0, spf=0, spw=6, WO2=None, rot=True, early=True, Wd=None, hu=False, hu1='land', hu3=18, d1=0, d2=0, d3=0, hwbar=True, defer=False, obias=0, fbias=0, l2mask=0, l2sm=1, l2gain=1, rloc=True, dR=6, ndef=0, spd=0, spdfirst=True, Uend=256, Wend=32, tk=0, par=None, ramp=None, npro=3, poison=1, touch=0, loc2=None, d2l=0, need2=9, cpf=None, wpf=4, Wd0=20, nowq=False, polQ='nt', noqg=False, noqs=False, ksleep=0, q1=None, need3=1, sel=False, e2=False, e1=False, isback=0, diagm=0, xm=None, rotm=None, ilv=0, ig=14, pb=0, place=None, gmode=0):
    NSLOT = 18
    UNIT = 8192
    RING = NSLOT * UNIT
    M = RING
    L_LANDED = M
    L_CONS = M + 256
    L_CNT = M + 1280
    C_Q, C_Q2, C_O, C_P, C_ST, C_HN, C_ACT, C_R, C_LVL, C_RD, C_OP, C_IS, C_WD, C_OD = [4*i for i in range(14)]
    L_XN = M + 1536
    L_QRED = L_XN + 2304
    L_Q = L_QRED + 1024
    L_ORED = L_Q + 512
    L_OB = L_ORED + 4096
    L_ST = L_OB + 1024
    L_HN = L_ST + 64
    L_H = L_HN + 1152
    L_ACT = L_H + 2304
    LDS = L_ACT + 64
    assert LDS <= 163840, LDS
    WO_L = 32768
    WG_L = 32768
    WU_L = WG_L + 36864
    WD_L = WU_L + 36864
    if order == "dg": WD_L, WG_L, WU_L = 32768, 32768 + 36864, 32768 + 2 * 36864
    assert max(WD_L, WU_L) + 36864 <= RING
    def need_cnt(lo, hi):
        last = max(u for u in range(256 - NSLOT, 256) if lo // UNIT <= u % NSLOT <= (hi - 1) // UNIT)
        return (last >> 2) + 1
    O_PG = 0x120000
    O_E, O_QX, O_ML, O_OP, O_P2, O_P3 = 0, 0x10000, 0x40000, 0x50000, 0x90000, 0xB4000
    P2C = 8 * 2304
    O_H1, O_H2, O_H3 = 0x130000, 0x138000, 0x13A000
    WS_SZ = 0x140000
    TAGC = 0x9E3779B9
    OOB = 0x7ffffff0
    a = Asm()
    NST = 16
    ST0 = 64
    def stamp(i):
        if diag: a(f"s_memrealtime s[{ST0+2*i}:{ST0+2*i+1}]")
    sTO = "s62"
    def cnt0():
        if diag: a("s_mov_b32 s95, s62")
    def cnt1(i):
        if diag: a(f"s_sub_u32 s95, s95, s62\ns_mul_i32 s95, s95, 100\ns_add_u32 s{ST0+2*i}, s{ST0}, s95\ns_addc_u32 s{ST0+2*i+1}, s{ST0+1}, 0")
    def spin_lds(vaddr, vt, st, cmp_need, sl=0, off=0):
        L, D = a.label("spin"), a.label("done")
        a(f"""{L}:
        ds_read_b32 {vt}, {vaddr} offset:{off}
        s_waitcnt lgkmcnt(0)
        v_readfirstlane_b32 {st}, {vt}
        s_cmp_ge_i32 {st}, {cmp_need}
        s_cbranch_scc1 {D}
        s_sub_u32 {sTO}, {sTO}, 1
        s_cbranch_scc1 L_end""")
        if sl: a(f"s_sleep {sl}")
        a(f"s_branch {L}\n{D}:")
    def srd(r, lo, hi, nrec, addlo=None):
        if addlo is None:
            a(f"s_mov_b32 s{r}, s{lo}\ns_mov_b32 s{r+1}, s{hi}")
        else:
            a(f"s_add_u32 s{r}, s{lo}, {addlo}\ns_addc_u32 s{r+1}, s{hi}, 0")
        a(f"s_mov_b32 s{r+2}, {nrec}\ns_mov_b32 s{r+3}, 0x20000")

    a(f"; @launch grid=(256,1,1) block=(320,1,1) lds={LDS}")
    a(f""".amdgcn_target "amdgcn-amd-amdhsa--gfx950"
    .text
    .globl {KN}_kernel
    .p2align 8
    .type {KN}_kernel,@function
    {KN}_kernel:
    s_cmp_ge_u32 s2, 256
    s_cbranch_scc1 L_end
    s_load_dwordx16 s[4:19], s[0:1], 0
    s_load_dwordx8 s[20:27], s[0:1], 64""")
    if diag:
        for i in range(1, NST): a(f"s_mov_b64 s[{ST0+2*i}:{ST0+2*i+1}], 0")
    stamp(0)
    a(f"""v_lshrrev_b32 v2, 6, v0
    v_and_b32 v1, 63, v0
    v_readfirstlane_b32 s3, v2
    s_mov_b32 {sTO}, 0x100000
    v_lshrrev_b32 v2, 4, v1
    v_and_b32 v3, 15, v1""")
    if gmode == 0: a("s_mov_b32 s1, s2")
    elif gmode == 1: a("s_and_b32 s52, s2, 7\ns_lshl_b32 s52, s52, 5\ns_lshr_b32 s53, s2, 3\ns_or_b32 s53, s53, s52")
    elif gmode == 2: a("s_and_b32 s52, s2, 7\ns_lshl_b32 s52, s52, 5\ns_bfe_u32 s53, s2, 0x10003\ns_lshl_b32 s53, s53, 4\ns_or_b32 s52, s52, s53\ns_lshr_b32 s53, s2, 4\ns_or_b32 s53, s53, s52")
    elif gmode == 3:
        a("s_and_b32 s52, s2, 3\ns_bfe_u32 s53, s2, 0x20003\ns_lshl_b32 s53, s53, 2\ns_or_b32 s52, s52, s53\ns_bfe_u32 s53, s2, 0x10002\ns_lshl_b32 s53, s53, 7\ns_or_b32 s52, s52, s53\ns_lshr_b32 s53, s2, 5\ns_lshl_b32 s53, s53, 4\ns_or_b32 s53, s53, s52")
    elif gmode == 4:
        a("s_and_b32 s52, s2, 1\ns_bfe_u32 s53, s2, 0x30003\ns_lshl_b32 s53, s53, 1\ns_or_b32 s52, s52, s53\ns_bfe_u32 s53, s2, 0x20001\ns_lshl_b32 s53, s53, 6\ns_or_b32 s52, s52, s53\ns_lshr_b32 s53, s2, 6\ns_lshl_b32 s53, s53, 4\ns_or_b32 s53, s53, s52")
    if gmode: a("s_mov_b32 s1, s53")
    a("s_cmp_lg_u32 s3, 0\ns_cbranch_scc1 L_cons")
    ID_O, ID_R, ID_F = 72, 108, 112
    def roles():
        a("""s_and_b32 s54, s2, 7
        s_lshr_b32 s55, s2, 3
        s_mul_i32 s56, s54, 18
        s_add_u32 s56, s56, s55
        s_sub_u32 s56, s56, 14""")
    blk = {0: "s_lshl_b32 s57, s2, 20",
           1: "s_lshr_b32 s57, s2, 3\ns_add_u32 s57, s57, s2\ns_and_b32 s57, s57, 7\ns_and_b32 s58, s2, 0xf8\ns_or_b32 s57, s57, s58\ns_lshl_b32 s57, s57, 20",
           2: "s_lshr_b32 s57, s2, 4\ns_xor_b32 s57, s57, s2\ns_and_b32 s57, s57, 15\ns_and_b32 s58, s2, 0xf0\ns_or_b32 s57, s57, s58\ns_lshl_b32 s57, s57, 20",
           3: "s_lshr_b32 s57, s2, 4\ns_mul_i32 s57, s57, 5\ns_add_u32 s57, s57, s2\ns_and_b32 s57, s57, 15\ns_and_b32 s58, s2, 0xf0\ns_or_b32 s57, s57, s58\ns_lshl_b32 s57, s57, 20",
           4: "s_bfe_u32 s57, s2, 0x10003\ns_and_b32 s58, s2, 7\ns_lshl_b32 s58, s58, 1\ns_or_b32 s57, s57, s58\ns_and_b32 s58, s2, 0xf0\ns_or_b32 s57, s57, s58\ns_lshl_b32 s57, s57, 20",
           5: "s_lshr_b32 s57, s2, 5\ns_xor_b32 s57, s57, s2\ns_and_b32 s57, s57, 7\ns_and_b32 s58, s2, 0xf8\ns_or_b32 s57, s57, s58\ns_lshl_b32 s57, s57, 20",
          }[diagm]
    if xm is not None:
        blk = "s_and_b32 s57, s2, 15"
        if pb:
            blk += f"\ns_bfe_u32 s58, s2, {hex(0x10000 | pb)}\ns_and_b32 s59, s2, {(1 << pb) - 1}\ns_lshl_b32 s59, s59, 1\ns_or_b32 s58, s58, s59\ns_and_b32 s57, s57, {15 & ~((2 << pb) - 1)}\ns_or_b32 s57, s57, s58"
        for b, m in enumerate(xm):
            if m: blk += f"\ns_bitcmp1_b32 s2, {4+b}\ns_cselect_b32 s58, {m}, 0\ns_xor_b32 s57, s57, s58"
        if ilv:
            blk += f"\ns_and_b32 s58, s57, {(1 << ilv) - 1}\ns_lshl_b32 s58, s58, {ig}\ns_lshr_b32 s57, s57, {ilv}\ns_lshl_b32 s57, s57, {20 + ilv}\ns_or_b32 s57, s57, s58"
        else:
            blk += "\ns_lshl_b32 s57, s57, 20"
        blk += "\ns_lshr_b32 s58, s2, 4\ns_lshl_b32 s58, s58, 24\ns_or_b32 s57, s57, s58"
    SPAN = (1 << (20 + ilv)) - (((1 << ilv) - 1) << ig)
    assert place or not gmode
    if place:
        assert len(set(place)) == 4 and all(13 <= p <= 23 for p in place) and not ilv and rotm is None
        SM = sum(1 << b for b in range(13, 24) if b not in place)
        SPAN = SM + 8192
        blk = "s_and_b32 s59, s1, 15"
        for b, m in enumerate(xm or ()):
            if m: blk += f"\ns_bitcmp1_b32 s1, {4+b}\ns_cselect_b32 s58, {m}, 0\ns_xor_b32 s59, s59, s58"
        blk += "\ns_lshr_b32 s57, s1, 4\ns_lshl_b32 s57, s57, 24"
        for k, p in enumerate(place):
            blk += f"\ns_bitcmp1_b32 s59, {k}\ns_cselect_b32 s58, {hex(1 << p)}, 0\ns_or_b32 s57, s57, s58"
    def start_off():
        if rotm is None: a("s_mov_b32 s58, 0\ns_mov_b32 s59, 4096")
        else: a(f"s_mul_i32 s58, s2, {rotm[0]}\ns_lshr_b32 s58, s58, {rotm[1]}\ns_and_b32 s58, s58, 63\ns_lshl_b32 s58, s58, {14 + ilv}\ns_add_u32 s59, s58, 4096")
    j0 = (W + 7) % 8
    lag = (W + 7 - j0) // 8
    a(f"""s_setprio 3
    v_lshlrev_b32 v4, 1, v2
    v_xor_b32 v4, v4, v3
    v_lshlrev_b32 v4, 4, v4
    v_lshl_add_u32 v4, v2, 8, v4
    v_xor_b32 v5, 0x80, v4
    {blk}
    s_mov_b32 m0, 0""")
    start_off()
    a("s_waitcnt lgkmcnt(0)")
    srd(28, 6, 7, hex(SPAN), "s57")
    if ldbar: a("s_barrier")
    stamp(8)
    def unit_loads(sr, pub, waits=True, W=W):
        j0 = (W + 7) % 8
        for j in range(8):
            if j == 4: a("s_add_u32 m0, m0, 4096")
            if waits: a(f"s_waitcnt vmcnt({W-1})")
            a(f"buffer_load_dwordx4 v{4 + (j&1)}, s[{sr}:{sr+3}], s{58 + (j>>2)} offen offset:{(j&3)*1024} {polK if sr == 28 else polV} lds")
            if pub and j == j0:
                a("v_mov_b32 v7, s60\nds_write_b32 v6, v7")
        if place: a(f"s_or_b32 s58, s58, {hex(~SM & 0xffffe000)}\ns_add_u32 s58, s58, 8192\ns_and_b32 s58, s58, {hex(SM)}")
        elif ilv and ig == 13: a(f"s_add_u32 s58, s58, {8192 << ilv}")
        elif ilv: a(f"s_add_u32 s58, s58, 8192\ns_and_b32 s96, s58, {(1 << ig) - 1}\ns_cselect_b32 s96, 0, {((1 << ilv) - 1) << ig}\ns_add_u32 s58, s58, s96")
        else: a("s_add_u32 s58, s58, 8192")
        if rotm is not None: a(f"s_and_b32 s58, s58, {hex((1 << (20 + ilv)) - 1)}")
        a("s_add_u32 s59, s58, 4096")
    unit_loads(28, False, False)
    for _ in range(npro - 1):
        a("s_add_u32 m0, m0, 4096")
        unit_loads(28, False, False)
    srd(32, 8, 9, hex(SPAN), "s57")
    roles()
    a(f"""s_mul_i32 s57, s54, {512*1152}
    s_lshl_b32 s61, s55, 7
    s_add_u32 s57, s57, s61
    s_sub_u32 s61, {4096*1152}, s57""")
    srd(36, 12, 13, "s61", "s57")
    a(f"""s_lshl_b32 s57, s56, 6
    s_sub_u32 s61, {576*9216}, s57""")
    srd(40, 16, 17, "s61", "s57")
    srd(44, 18, 19, "s61", "s57")
    a(f"s_mul_i32 s57, s56, {32*1152}")
    srd(48, 20, 21, str(32*1152), "s57")
    if touch:
        T1, T2 = a.label("tf"), a.label("te")
        a(f"""v_mul_u32_u24 v8, {touch}, v1
        s_mov_b64 exec, 1
        buffer_load_dword v31, v8, s[32:35], 0 offen nt
        s_mov_b64 exec, -1
        s_cmp_ge_u32 s2, {ID_F}
        s_cbranch_scc1 {T1}
        s_cmp_ge_u32 s2, {ID_O}
        s_cbranch_scc1 {T2}
        s_bfm_b64 exec, {512*1152 // touch + 1}, 0
        buffer_load_dword v31, v8, s[36:39], 0 offen nt
        s_branch {T2}
        {T1}:
        buffer_load_dword v31, v8, s[40:43], 0 offen nt
        buffer_load_dword v31, v8, s[44:47], 0 offen nt
        buffer_load_dword v31, v8, s[48:51], 0 offen nt
        {T2}:
        s_mov_b64 exec, -1""")
    a(f"""v_lshrrev_b32 v8, 3, v1
    v_and_b32 v9, 2, v8
    v_mul_u32_u24 v8, 1152, v8
    v_and_b32 v10, 7, v1
    v_xor_b32 v9, v9, v10
    v_lshl_add_u32 v12, v9, 4, v8
    v_xor_b32 v9, 4, v9
    v_lshl_add_u32 v16, v9, 4, v8
    v_lshrrev_b32 v8, 2, v1
    v_lshrrev_b32 v9, 5, v1
    v_mul_u32_u24 v8, 9216, v8
    v_and_b32 v10, 3, v1
    v_xor_b32 v9, v9, v10
    v_lshl_add_u32 v13, v9, 4, v8
    v_xor_b32 v9, 2, v9
    v_lshl_add_u32 v17, v9, 4, v8""")
    for i in range(18):
        a(f"""v_add_u32 v8, {64*i}, v1
        v_mul_u32_u24 v9, 911, v8
        v_lshrrev_b32 v9, 16, v9
        v_mul_u32_u24 v10, 72, v9
        v_sub_u32 v10, v8, v10
        v_and_b32 v11, 2, v9
        v_xor_b32 v10, v10, v11
        v_lshrrev_b32 v11, 1, v9
        v_and_b32 v11, 4, v11
        v_xor_b32 v10, v10, v11
        v_mul_u32_u24 v9, 1152, v9
        v_lshl_add_u32 v{32+i}, v10, 4, v9""")
    a(f"""v_mov_b32 v14, 0
    v_lshlrev_b32 v6, 2, v1
    v_add_u32 v6, {L_LANDED}, v6
    v_mov_b32 v22, 0
    v_mov_b32 v23, 0
    v_mov_b32 v20, {L_CNT + C_LVL}
    v_mov_b32 v21, {L_CONS}
    s_mov_b32 s63, {npro}
    s_mov_b32 s60, {npro - lag + 1}
    s_mov_b32 s57, {npro*UNIT}
    s_mov_b32 s61, 0""")
    if not ldbar: a("s_barrier")
    assert all((w + 7) // 8 == lag for w in (levels or ()))
    for ph, sr, uend in ((0, 28, 128), (1, 32, Uend), (2, 32, 256))[:3 if Uend < 256 else 2]:
        L, BK = a.label("ld"), a.label("ldback")
        if ph == 1:
            start_off()
            stamp(1)
        if ph == 2:
            a(f"s_sub_u32 s60, s60, {(Wend + 7) // 8 - lag}")
            W, lag = Wend, (Wend + 7) // 8
        a(f"""{L}:
        s_waitcnt lgkmcnt(0)
        v_readfirstlane_b32 s52, v22
        s_cmp_ge_i32 s52, s61
        s_cbranch_scc1 {BK}""")
        if diag: a(f"s_add_u32 s{ST0+2*(9+min(ph,1))}, s{ST0+2*(9+min(ph,1))}, 100")
        spin_lds("v21", "v22", "s52", "s61", 1)
        a(f"""{BK}:
        s_mov_b32 m0, s57
        s_sub_u32 s52, s63, {NSLOT-1}
        s_ashr_i32 s61, s52, 2
        s_add_u32 s61, s61, 1
        s_and_b32 s52, s52, 3
        s_lshl_b32 s52, s52, 8
        s_add_u32 s52, s52, {L_CONS}
        v_mov_b32 v21, s52
        ds_read_b32 v22, v21""")
        if ph == 2:
            unit_loads(sr, True, True, Wend)
        elif levels:
            J = a.label("lj")
            a(f"v_readfirstlane_b32 s52, v23\nds_read_b32 v23, v20")
            order_ = [i for i in range(len(levels)) if i != len(levels)//2]
            labs = {i: a.label("lv") for i in order_}
            for i in order_: a(f"s_cmp_eq_u32 s52, {i+1}\ns_cbranch_scc1 {labs[i]}")
            unit_loads(sr, True, True, levels[len(levels)//2])
            for i in order_:
                a(f"s_branch {J}\n{labs[i]}:")
                unit_loads(sr, True, True, levels[i])
            a(f"{J}:")
        else:
            unit_loads(sr, True)
        if diag and ph == 0:
            for k, u in enumerate((8, 16, 24, 32)):
                X_ = a.label("st")
                a(f"s_cmp_lg_u32 s63, {u}\ns_cbranch_scc1 {X_}"); stamp(11 + k); a(f"{X_}:")
        a(f"""s_add_u32 s57, s57, {UNIT}
        s_cmp_ge_u32 s57, {RING}
        s_cselect_b32 s57, 0, s57
        s_add_u32 s60, s60, 1
        s_add_u32 s63, s63, 1
        s_cmp_lt_u32 s63, {uend}
        s_cbranch_scc1 {L}""")
    stamp(2)
    if diag:
        for ph in range(2): a(f"s_add_u32 s{ST0+2*(9+ph)}, s{ST0+2*(9+ph)}, s{ST0}\ns_addc_u32 s{ST0+2*(9+ph)+1}, s{ST0+1}, 0")
    a(f"""v_mov_b32 v21, {L_CONS}""")
    def free_check(cnt):
        L, D = a.label("fc"), a.label("fcd")
        a(f"""{L}:
        ds_read_b32 v24, v21
        ds_read_b32 v25, v21 offset:256
        ds_read_b32 v26, v21 offset:512
        ds_read_b32 v27, v21 offset:768
        s_waitcnt lgkmcnt(0)
        v_min_i32 v24, v24, v25
        v_min3_i32 v24, v24, v26, v27
        v_readfirstlane_b32 s52, v24
        s_cmp_ge_i32 s52, {cnt}
        s_cbranch_scc1 {D}
        s_sub_u32 {sTO}, {sTO}, 1
        s_cbranch_scc1 L_end
        s_branch {L}
        {D}:""")
    def weights(doO, doF, r0=0):
        seq = []
        have = [0]; npf = [0]; ngu = [0]
        def mat(base, n, vr, sr, step):
            for i in range(n):
                c = need_cnt(base + 1024*i, base + 1024*(i+1))
                if c > have[0]:
                    have[0] = c
                    seq.append(("check", c))
                seq.append(("load", base + 1024*i, vr(i), sr, step(i)))
        if doO:
            mat(WO_L, 64, lambda i: 12 + 4*(i & 1), 36, lambda i: i * 8 * 1152); seq.append(("mark", 257))
        if doF:
            mk = 258
            for o in order:
                if o == "g" and cpf:
                    a(f"""s_mul_i32 s57, s56, {cpf[0]*8192 - 64}
                    v_lshlrev_b32 v14, 7, v1
                    v_add_u32 v14, s57, v14""")
                    for t in range(2 * cpf[0]): seq.append(("load", None, 14, 40 + 4*(t & 1), -(t >> 1) * 8192 - 1))
                if o == "g":
                    seq.append(("check", need_cnt(WG_L, WU_L + 36864))); have[0] = max(have[0], seq[-1][1])
                    for i in [(k + r0) % 36 for k in range(36)]:
                        seq.append(("load", WG_L + 1024*i, 13, 40, i * 16 * 9216)); seq.append(("load", WU_L + 1024*i, 17, 44, i * 16 * 9216))
                else:
                    mat(WD_L, 36, lambda i: 32 + i % 18, 48, lambda i: (i // 18) * 16 * 1152)
                    if ndef:
                        loads = [k for k, it in enumerate(seq) if it[0] == "load"]
                        k = loads[-ndef]
                        while seq[k-1][0] == "check": k -= 1
                        seq[k:k] = [("mark", mk), ("wait", C_WD)]; mk += 1
                seq.append(("mark", mk)); mk += 1
        if not doO and not doF and cpf:
            srd(40, 16, 17, str(576*9216))
            srd(44, 18, 19, str(576*9216))
            a(f"""s_sub_u32 s57, s2, {ID_O}
            s_mul_i32 s57, s57, {cpf[1]*8192}
            s_add_u32 s57, s57, {144*cpf[0]*8192}
            v_lshlrev_b32 v14, 7, v1
            v_add_u32 v14, s57, v14""")
            for t in range(2 * cpf[1]): seq.append(("load", None, 14, 40 + 4*(t & 1), -(t >> 1) * 8192 - 1))
        elif not doO and not doF and (spf or spd):
            a(f"""s_mul_i32 s57, s54, 1152
            s_sub_u32 s61, {576*9216}, s57""")
            srd(40, 16, 17, "s61", "s57")
            srd(44, 18, 19, "s61", "s57")
            a(f"""s_sub_u32 s59, s55, 9
            s_mul_i32 s59, s59, {7*9216}
            v_mul_u32_u24 v8, 7282, v1
            v_lshrrev_b32 v8, 16, v8
            v_mul_u32_u24 v9, 9, v8
            v_sub_u32 v9, v1, v9
            v_mul_u32_u24 v8, 9216, v8
            v_lshl_add_u32 v15, v9, 7, v8
            s_bfm_b64 exec, 63, 0""")
            dl = []
            if spd:
                a(f"""s_mul_i32 s57, s54, {18*32*1152}
                s_sub_u32 s53, s55, 9
                s_mul_i32 s53, s53, {17*63*128}
                s_add_u32 s57, s57, s53
                s_sub_u32 s61, {18*32*1152}, s53
                v_lshlrev_b32 v14, 7, v1""")
                srd(48, 20, 21, "s61", "s57")
                dl = [("load", None, 14, 48, t * 63 * 128) for t in range(spd)]
            if spdfirst: seq += dl
            for t in range(2 * spf):
                k = t >> 1
                top = (575 if k % 2 == 0 else 287) - 35 * (k >> 1) if rot else 575 - 35 * k
                seq.append(("load", None, 15, 40 + 4*(t & 1), (top - 6) * 9216))
            if not spdfirst: seq += dl
        ev = [(8*u + 7, u + 1) for u in range(256 - lag, 256)]
        n = 2048
        for it in seq:
            if it[0] == "load": n += 1
            elif it[0] == "mark": ev.append((n - 1, it[1]))
        ev.sort()
        n = 2048
        def publish(v):
            a(f"v_mov_b32 v7, {v}\nds_write_b32 v6, v7")
            if v >= 256: stamp(min(v, 259) - 256 + 4)
        for it in seq:
            if hold and it[0] == "load" and n == 2048 + hold:
                while ev and ev[0][1] <= 256:
                    idx, v = ev.pop(0)
                    a(f"s_waitcnt vmcnt({n - 1 - idx})"); publish(v)
                a(f"v_mov_b32 v24, {L_CNT + C_OP}")
                spin_lds("v24", "v25", "s52", 1)
            if it[0] == "wait":
                a(f"v_mov_b32 v24, {L_CNT + C_IS}\nv_mov_b32 v25, 1\ns_mov_b64 exec, 1\nds_write_b32 v24, v25\ns_mov_b64 exec, -1")
                while ev and ev[0][0] < n:
                    idx, v = ev.pop(0)
                    a(f"s_waitcnt vmcnt({n - 1 - idx})"); publish(v)
                a(f"v_mov_b32 v24, {L_CNT + it[1]}")
                spin_lds("v24", "v25", "s52", 1)
            if it[0] == "check":
                while ev and ev[0][1] <= 256 and ((ev[0][1] - 1) >> 2) + 1 <= it[1]:
                    idx, v = ev.pop(0)
                    a(f"s_waitcnt vmcnt({n - 1 - idx})"); publish(v)
                free_check(it[1])
            elif it[0] == "load":
                _, la, vr, sr, so = it
                w = W if n - W < 2047 else (WO2 if (doO and WO2) else W2)
                if doF and Wd and sr == 48 and n - W >= 2047: w = Wd
                if doF and Wh and n < 2048 + NH: w = Wh
                if doF and ramp:
                    w = [ww for nn, ww in ramp if n - 2048 >= nn][-1]
                if doF and cpf:
                    if sr == 48: w = W if n - W < 2047 else Wd0
                    elif la is None:
                        npf[0] += 1
                        w = max(Wd0 - 6 * npf[0], 0) + npf[0] if Wd0 - 6 * npf[0] > 0 else wpf
                    else:
                        ngu[0] += 1
                        w = min(63, wpf + ngu[0]) if ngu[0] < W2 else W2
                elif la is None:
                    t = n - 2048
                    w = max(0, W - 5 - 4*t) + t + 1 if W - 5 - 4*t > 0 else spw
                while ev and ev[0][0] < n - w:
                    idx, v = ev.pop(0)
                    a(f"s_waitcnt vmcnt({n - 1 - idx})"); publish(v)
                if la is None:
                    if so < 0:
                        a(f"v_add_u32 v31, {-so - 1}, v{vr}\ns_waitcnt vmcnt({w-1})\nbuffer_load_dword v30, v31, s[{sr}:{sr+3}], 0 offen")
                    elif sr == 48:
                        a(f"v_add_u32 v31, {so}, v{vr}\ns_waitcnt vmcnt({w-1})\nbuffer_load_dword v30, v31, s[{sr}:{sr+3}], 0 offen")
                    else:
                        a(f"s_sub_u32 s58, {so}, s59\ns_waitcnt vmcnt({w-1})\nbuffer_load_dword v30, v{vr}, s[{sr}:{sr+3}], s58 offen")
                else:
                    a(f"s_mov_b32 m0, {la}\ns_mov_b32 s58, {so}\ns_waitcnt vmcnt({w-1})")
                    a(f"buffer_load_dwordx4 v{vr}, s[{sr}:{sr+3}], s58 offen {polW} lds")
                last = None
                while ev and ev[0][0] <= n - w: last = ev.pop(0)[1]
                if last is not None: publish(last)
                n += 1
        if doO or doF:
            if isback:
                while ev and ev[0][0] < n - isback:
                    idx, v = ev.pop(0)
                    a(f"s_waitcnt vmcnt({n - 1 - idx})"); publish(v)
                a(f"s_waitcnt vmcnt({isback})")
            a(f"v_mov_b32 v24, {L_CNT + C_IS}\nv_mov_b32 v25, 1\ns_mov_b64 exec, 1\nds_write_b32 v24, v25\ns_mov_b64 exec, -1")
        while ev:
            idx, v = ev.pop(0)
            a(f"s_waitcnt vmcnt({n - 1 - idx})")
            publish(v)
        a("s_waitcnt lgkmcnt(0)")
        stamp(3)
        a("s_branch L_fin")
    LO, LF = a.label("wO"), a.label("wF")
    a(f"s_cmp_lt_u32 s2, {ID_O}\ns_cbranch_scc1 {LO}\ns_cmp_ge_u32 s2, {ID_F}\ns_cbranch_scc1 {LF}")
    weights(False, False)
    a(f"{LO}:"); weights(True, False)
    a(f"{LF}:")
    if rot:
        LF2 = a.label("wF2")
        a(f"s_bitcmp1_b32 s56, 0\ns_cbranch_scc1 {LF2}")
        weights(False, True)
        a(f"{LF2}:"); weights(False, True, 18)
    else:
        weights(False, True)
    MK_G = 258 + order.index("g")
    MK_D = 258 + order.index("d")

    vTAG, vE, vXR, vLND, vCON, vPF_, vQ, vAK, vAV, vCNT, vONE, vM, vL, vPG = 16, 17, 18, 21, 22, 23, 24, 40, 44, 45, 46, 47, 48, 248
    vA, vF, vD, vSA, vS, vP, vO = 50, 58, 90, 98, 106, 138, 142
    PRE = [178, 210, vF][3-npre:] if npre else []
    vG = 106
    vPA, vXF, vXO = 246, 247, 23
    sHK = "s57"
    WS, XS, WQS, OUTS = "s[28:31]", "s[32:35]", "s[36:39]", "s[40:43]"
    LOG2E = fhex(1.4426950408889634)
    def one(x): a(f"s_mov_b64 exec, 1\n{x}\ns_mov_b64 exec, -1")
    def arrive_last(cnt, notlast, n=4):
        a(f"s_mov_b64 exec, 1\nds_add_rtn_u32 v5, v{vCNT}, v{vONE} offset:{cnt}\ns_waitcnt lgkmcnt(0)\nv_readfirstlane_b32 s52, v5\ns_mov_b64 exec, -1")
        a(f"s_cmp_lg_u32 s52, {n-1}\ns_cbranch_scc1 {notlast}")
    def barrier(cnt, hw=False):
        if hw and hwbar:
            a("s_mov_b64 exec, -1\ns_waitcnt lgkmcnt(0)\ns_barrier")
            return
        G = a.label("go")
        a(f"s_mov_b64 exec, 1\nds_add_rtn_u32 v5, v{vCNT}, v{vONE} offset:{cnt}\ns_waitcnt lgkmcnt(0)\nv_readfirstlane_b32 s52, v5\ns_mov_b64 exec, -1")
        a(f"s_cmp_eq_u32 s52, 3\ns_cbranch_scc1 {G}")
        spin_lds(f"v{vCNT}", "v5", "s52", 4, off=cnt)
        a(f"{G}:")
    def red63(op, *vs):
        for m in ("row_ror:8", "row_ror:4", "row_ror:2", "row_ror:1"):
            for v in vs: a(f"{op}_dpp {v}, {v}, {v} {m} row_mask:0xf bank_mask:0xf")
        for v in vs: a(f"{op}_dpp {v}, {v}, {v} row_bcast:15 row_mask:0xa bank_mask:0xf")
        for v in vs: a(f"{op}_dpp {v}, {v}, {v} row_bcast:31 row_mask:0xc bank_mask:0xf")
    def red_par(op, v, t):
        for m in ("row_ror:8", "row_ror:4", "row_ror:2"):
            a(f"{op}_dpp {v}, {v}, {v} {m} row_mask:0xf bank_mask:0xf")
        a(f"v_mov_b32 {t}, {v}\nv_permlane16_swap_b32 {t}, {v}\n{op} {v}, {v}, {t}")
        a(f"v_mov_b32 {t}, {v}\nv_permlane32_swap_b32 {t}, {v}\n{op} {v}, {v}, {t}")
    def rnd2(x, y, t):
        a(f"v_cvt_pk_bf16_f32 {t}, {x}, {y}\nv_lshlrev_b32 {x}, 16, {t}\nv_and_b32 {y}, 0xffff0000, {t}")
    def rnd1(x):
        a(f"v_cvt_pk_bf16_f32 {x}, {x}, {x}\nv_and_b32 {x}, 0xffff0000, {x}")
    def tr4(*xs):
        for x in xs: a(f"v_permlane32_swap_b32 v{x}, v{x+1}\nv_permlane32_swap_b32 v{x+2}, v{x+3}")
        for x in xs: a(f"v_add_f32 v{x}, v{x}, v{x+1}\nv_add_f32 v{x+2}, v{x+2}, v{x+3}")
        for x in xs: a(f"v_permlane16_swap_b32 v{x}, v{x+2}")
        for x in xs: a(f"v_add_f32 v{x}, v{x}, v{x+2}")
    def ln_scale(mean, var, t):
        rnd2(mean, var, t)
        a(f"v_add_f32 {var}, {fhex(1e-5)}, {var}"); rnd1(var)
        a(f"v_sqrt_f32 {var}, {var}"); rnd1(var)
        a(f"v_rcp_f32 {var}, {var}")
    def retry(L):
        a(f"s_sub_u32 {sTO}, {sTO}, 1\ns_cbranch_scc1 L_end\ns_branch {L}")
    def pk(d, x, y): a(f"v_pk_add_f32 v[{d}:{d+1}], v[{x}:{x+1}], v[{y}:{y+1}]")
    def sum4(d, srcs):
        pk(d, srcs[0], srcs[1]); pk(d+2, srcs[0]+2, srcs[1]+2)
        for x in srcs[2:]: pk(d, d, x); pk(d+2, d+2, x+2)
    def poison_check(first, n, sums, L, OK):
        pk(4, sums[0], sums[0]+2)
        for x in sums[1:]: pk(4, 4, x); pk(4, 4, x+2)
        a(f"v_cmp_u_f32 vcc, v4, v5\ns_cbranch_vccz {OK}")
        if fastfail:
            a(f"s_mov_b64 exec, vcc\ns_sub_u32 {sTO}, {sTO}, 1\ns_cbranch_scc1 L_end\ns_and_b32 s52, {sTO}, 63\ns_cbranch_scc1 {L}")
        a(f"v_max_u32 v4, v{first}, v{first+1}")
        for i in range(2, n, 2): a(f"v_max3_u32 v4, v4, v{first+i}, v{first+i+1}")
        a(f"v_cmp_eq_u32 vcc, -1, v4\ns_cbranch_vccz {OK}\ns_mov_b64 exec, vcc")
        retry(L)
        a(f"{OK}:\ns_mov_b64 exec, -1")
    def next_unit():
        a(f"""s_add_u32 s58, s58, 4
        s_add_u32 s59, s59, {4*UNIT}
        s_cmp_ge_u32 s59, {RING}
        s_cselect_b32 s52, {RING}, 0
        s_sub_u32 s59, s59, s52""")
    def wait_unit():
        a("s_add_u32 s61, s58, 1")
        spin_lds(f"v{vLND}", "v4", "s52", "s61", sleep)
        if levels: a("s_mov_b32 s63, s52")
    def progress():
        if not levels: return
        X0, X1, X2 = a.label("pg"), a.label("pgx"), a.label("pgl")
        G = vPG
        a(f"""s_cmp_lg_u32 s3, 0
        s_cbranch_scc1 {X0}
        s_add_u32 s52, s63, s97
        v_add_u32 v5, s52, v{vTAG}
        s_mov_b64 exec, 1
        buffer_store_dword v5, v7, {WS}, s50 offen
        s_mov_b64 exec, -1
        s_branch {X1}
        {X0}:
        s_cmp_lg_u32 s3, {pgw}
        s_cbranch_scc1 {X1}
        s_waitcnt vmcnt(0)""")
        X3, X4 = a.label("pgr"), a.label("pgs")
        for r in range(6): a(f"v_sub_u32 v{8+r}, v{G+r}, v{vTAG}")
        a(f"""v_lshlrev_b32 v4, 4, v1
        buffer_load_dwordx4 v[{G}:{G+3}], v4, {WS}, s48 offen sc1
        buffer_load_dword v{G+4}, v7, {WS}, s50 offen sc1
        v_cndmask_b32 v4, v8, v9, s[98:99]
        v_cndmask_b32 v5, v10, v11, s[98:99]
        v_cndmask_b32 v4, v4, v5, s[100:101]
        v_readfirstlane_b32 s97, v12
        s_lshr_b32 s52, s2, 2
        v_readlane_b32 s52, v4, s52
        v_mov_b32 v5, 0
        s_mov_b32 s61, 0
        s_cmp_lt_u32 s97, 0x800
        s_cselect_b32 s97, s97, 0x400
        s_sub_u32 s97, s97, 0x400
        s_cmp_ge_u32 s52, 0x200
        s_cbranch_scc1 {X1}""")
        for r in range(4):
            a(f"""v_cmp_gt_u32 vcc, 0x200, v{8+r}
            v_subrev_u32 v{8+r}, s52, v{8+r}
            s_bcnt1_i32_b64 s96, vcc
            v_cndmask_b32 v{8+r}, v7, v{8+r}, vcc
            s_add_u32 s61, s61, s96
            v_add_u32 v5, v5, v{8+r}""")
        red63("v_add_u32", "v5")
        a(f"v_readlane_b32 s96, v5, 63")
        if lvl2:
            a(f"""s_cmp_eq_u32 s51, 0
            s_cbranch_scc1 {X3}
            s_mov_b32 s51, 0
            v_readlane_b32 s53, v13, s49
            v_cmp_gt_u32 vcc, 0x200, v13
            v_subrev_u32 v13, s53, v13
            s_cmp_ge_u32 s53, 0x200
            s_cbranch_scc1 {X3}
            v_cndmask_b32 v13, v7, v13, vcc""")
            for m in ("row_ror:8", "row_ror:4", "row_ror:2", "row_ror:1"):
                a(f"v_add_u32_dpp v13, v13, v13 {m} row_mask:0xf bank_mask:0xf")
            a(f"""v_readfirstlane_b32 s53, v13
            s_mul_i32 s53, s53, {8*l2gain}
            s_sub_i32 s53, s53, s97
            s_ashr_i32 s53, s53, {l2sm}
            s_add_i32 s53, s53, s97
            s_max_i32 s53, s53, -1000
            s_min_i32 s53, s53, 1000
            s_add_u32 s53, s53, 0x400
            v_add_u32 v4, s53, v{vTAG}
            s_mov_b64 exec, 1
            buffer_store_dword v4, v7, {WS}, s50 offen
            s_mov_b64 exec, -1
            {X3}:
            s_and_b32 s53, s55, {l2mask}
            s_cbranch_scc1 {X2}
            s_add_u32 s53, s60, 16
            s_and_b32 s53, s53, 31
            s_cmp_lg_u32 s53, s55
            s_cbranch_scc1 {X4}
            s_mov_b32 s51, 1
            s_mov_b64 exec, 0xff
            buffer_load_dword v{G+5}, v{vPA}, {WS}, 0 offen sc1
            s_mov_b64 exec, -1
            {X4}:
            s_and_b32 s53, s60, 31
            s_cmp_lg_u32 s53, s55
            s_cbranch_scc1 {X2}
            v_cvt_f32_i32 v4, s96
            v_cvt_f32_u32 v5, s61
            v_rcp_f32 v5, v5
            v_mul_f32 v4, v4, v5
            v_rndne_f32 v4, v4
            v_cvt_i32_f32 v4, v4
            v_add3_u32 v4, v4, s52, v{vTAG}
            s_lshl_b32 s53, s49, 7
            s_add_u32 s53, s53, {O_PG + 0x4000}
            s_mov_b64 exec, 1
            buffer_store_dword v4, v7, {WS}, s53 offen sc1
            s_mov_b64 exec, -1
            {X2}:""")
        a(f"""s_lshl_b32 s96, s96, 6
        s_mul_i32 s97, s97, s61
        s_add_i32 s96, s96, s97
        s_mov_b32 s53, {len(levels)//2 + 1}""")
        for k, t in enumerate(thr):
            a(f"""s_mul_i32 s97, s61, {int(t*64)}
            s_cmp_gt_i32 s96, s97
            s_cselect_b32 s53, {len(levels)//2 + 2 + k}, s53
            s_sub_i32 s97, 0, s97
            s_cmp_lt_i32 s96, s97
            s_cselect_b32 s53, {len(levels)//2 - k}, s53""")
        if par is not None:
            a(f"""s_and_b32 s52, s60, {par}
            s_and_b32 s96, s49, 1
            s_or_b32 s52, s52, s96
            s_cmp_eq_u32 s52, 0
            s_addc_u32 s53, s53, 0
            s_min_u32 s53, s53, {len(levels)}""")
        a(f"v_mov_b32 v5, s53")
        one(f"ds_write_b32 v{vCNT}, v5 offset:{C_LVL}")
        a(f"{X1}:")
    def notice(base_expr, lanes, stride):
        a(base_expr)
        if lanes == 1:
            one(f"buffer_store_dword v{vTAG}, v7, {WS}, s53 offen sc0 sc1")
        else:
            a(f"v_mul_u32_u24 v5, {stride}, v1\ns_bfm_b64 exec, {lanes}, 0\nbuffer_store_dword v{vTAG}, v5, {WS}, s53 offen sc0 sc1\ns_mov_b64 exec, -1")
    def notice_load(n, sreg):
        a(f"v_lshlrev_b32 v5, 7, v1\ns_bfm_b64 exec, {n}, 0\nbuffer_load_dword v{vSA}, v5, {WS}, {sreg} offen sc0 sc1\ns_mov_b64 exec, -1")
    def notice_wait(n, sreg, issued, delay):
        L, C, D = a.label("nw"), a.label("nc"), a.label("nd")
        a(f"v_lshlrev_b32 v{vSA+1}, 7, v1\ns_bfm_b64 exec, {n}, 0")
        if issued: a(f"s_branch {C}")
        a(f"""{L}:
        buffer_load_dword v{vSA}, v{vSA+1}, {WS}, {sreg} offen sc0 sc1
        {C}:
        s_waitcnt vmcnt(0)
        v_cmp_ne_u32 vcc, v{vSA}, v{vTAG}
        s_cbranch_vccz {D}
        s_mov_b64 exec, vcc""")
        retry(L)
        a(f"{D}:\ns_mov_b64 exec, -1")
        if delay: a(f"s_sleep {delay}")
    def k_read(F):
        for i in range(4): a(f"v_add_u32 v{vA+i}, s59, v{vAK+i}")
        for T in range(2):
            for i in range(4): a(f"ds_read_b128 v[{F+16*T+4*i}:{F+16*T+4*i+3}], v{vA+i} offset:{4096*T}")
        a(f"s_add_u32 s60, s60, 1\nv_mov_b32 v4, s60\ns_waitcnt lgkmcnt(0)\nds_write_b32 v{vCON}, v4")
    def k_mfma(F, between=None):
        for i in range(4):
            for T in range(2):
                c = "0" if i == 0 else f"v[{vD+4*T}:{vD+4*T+3}]"
                a(f"v_mfma_f32_16x16x32_bf16 v[{vD+4*T}:{vD+4*T+3}], v[{F+16*T+4*i}:{F+16*T+4*i+3}], v[{vQ+4*i}:{vQ+4*i+3}], {c}")
        if between: between()
        for r in range(8): a(f"v_cndmask_b32 v{vSA+r}, v{vSA+r}, v{vD+r}, s[46:47]")
        a("s_lshl_b64 s[46:47], s[46:47], 2")
    vB = vO + 4
    def v_addr():
        a(f"v_add_u32 v{vA}, s59, v{vAV}")
        for b in range(1, 8): a(f"v_xor_b32 v{vA+b}, {hex(32*b)}, v{vA}")
    def v_read(F):
        for b in range(8):
            for T in range(2): a(f"ds_read_b64_tr_b16 v[{F+4*b+2*T}:{F+4*b+2*T+1}], v{vA+b} offset:{4096*T}")
        a(f"s_add_u32 s60, s60, 1\nv_mov_b32 v4, s60")
    def v_mfma(F, waits):
        for b in range(8):
            if waits: a(f"s_waitcnt lgkmcnt({waits-2*b})")
            a(f"v_mfma_f32_16x16x32_bf16 v[{vO}:{vO+3}], v[{F+4*b}:{F+4*b+3}], v[{vB+4*b}:{vB+4*b+3}], v[{vO}:{vO+3}]")
    def p_spread():
        for r in range(4): a(f"v_cndmask_b32 v{vB+r}, v7, v{vP+r}, s[46:47]")
        for b in range(1, 8):
            for r in range(4): a(f"v_mov_b32_dpp v{vB+4*b+r}, v{vB+r} row_shr:{2*b} row_mask:0xf bank_mask:0xf bound_ctrl:0")
    def p_shift():
        for r in range(4): a(f"v_mov_b32_dpp v{vP+r}, v{vP+r} row_shl:2 row_mask:0xf bank_mask:0xf")
    def make_p():
        for r in range(8): a(f"v_sub_f32 v{vSA+r}, v{vS+r}, v{vM}")
        for r in range(8): a(f"v_mul_f32 v{vSA+r}, {LOG2E}, v{vSA+r}")
        for r in range(8): a(f"v_exp_f32 v{vSA+r}, v{vSA+r}")
        for r in range(8): a(f"v_mul_f32 v{vSA+r}, v{vSA+r}, v{vL}")
        for r in range(4): a(f"v_cvt_pk_bf16_f32 v{vP+r}, v{vSA+2*r}, v{vSA+2*r+1}")
        for r in range(24): a(f"v_mov_b32 v{vS+r}, v{vS+8+r}")

    WQ, X4, X = 106, 124, 130
    a(f"""L_cons:
    s_sub_u32 s3, s3, 1
    s_lshr_b32 {sHK}, s1, 4
    v_lshlrev_b32 v4, 4, v1
    v_lshlrev_b32 v5, 1, v1
    v_lshlrev_b32 v6, 13, v2
    v_lshl_add_u32 v6, v3, 3, v6
    s_and_b32 s52, s1, 3
    s_mul_i32 s58, s52, 144
    s_mul_i32 s53, s3, 36
    s_add_u32 s58, s58, s53
    s_lshl_b32 s52, s58, 13
    s_lshr_b32 s53, s1, 2
    s_lshl_b32 s53, s53, 7
    s_add_u32 s59, s52, s53
    s_sub_u32 s60, {576*8192}, s59
    v_mov_b32 v7, 0
    s_waitcnt lgkmcnt(0)""")
    srd(32, 4, 5, "1152")
    srd(36, 10, 11, "0" if nowq else "s60", "s59")
    a(f"""buffer_load_dwordx4 v[{X4}:{X4+3}], v4, {XS}, 0 offen
    buffer_load_ushort v{X4+4}, v5, {XS}, 0 offen offset:1024
    s_mov_b32 s52, 0""")
    for k in range(9):
        a(f"buffer_load_dwordx2 v[{WQ+2*k}:{WQ+1+2*k}], v6, {WQS}, s52 offen {polQ}")
        if k < 8: a("s_add_u32 s52, s52, 32768")
    srd(28, 26, 27, hex(WS_SZ))
    a(f"buffer_load_dword v{vTAG}, v7, {WS}, 0 offen offset:{O_E} sc0 sc1")
    roles()
    RST = -(-(O_P3 + 144*2304 - O_OP) // 256 // 128) * 128
    assert O_P2 + 8 * P2C == O_P3 and RST <= 3072 and O_OP + 256 * RST <= O_PG
    a(f"""v_mov_b32 v12, -1
    v_mov_b32 v13, -1
    v_mov_b32 v14, -1
    v_mov_b32 v15, -1
    s_lshl_b32 s53, s3, 10
    v_add_u32 v9, s53, v4
    s_mul_i32 s52, s2, {RST}
    s_add_u32 s52, s52, {O_OP}
    v_cmp_gt_u32 vcc, {RST if poison else 0}, v9
    v_add_u32 v9, s52, v9
    v_mov_b32 v8, {OOB}
    v_cndmask_b32 v9, v8, v9, vcc
    buffer_store_dwordx4 v[12:15], v9, {WS}, 0 offen sc0 sc1""")
    LZ = a.label("nz")
    a(f"""v_lshlrev_b32 v{vLND}, 2, v1
    v_add_u32 v{vLND}, {L_LANDED}, v{vLND}
    s_cmp_lg_u32 s3, 0
    s_cbranch_scc1 {LZ}""")
    for i in range(6): a(f"ds_write_b32 v{vLND}, v7 offset:{256*i}")
    a(f"s_waitcnt lgkmcnt(0)\n{LZ}:\ns_barrier")
    srd(40, 22, 23, "1152")
    a(f"""s_lshl_b32 s52, s3, 8
    s_add_u32 s52, s52, 256
    v_add_u32 v{vCON}, s52, v{vLND}
    v_mov_b32 v{vCNT}, {L_CNT}
    v_mov_b32 v{vONE}, 1
    v_and_b32 v8, 1, v2
    v_lshlrev_b32 v8, 1, v8
    v_lshrrev_b32 v9, 1, v2
    v_or_b32 v8, v8, v9
    v_lshl_add_u32 v{vE}, v3, 2, v8
    s_mov_b32 s44, 0x000f000f
    s_mov_b32 s45, 0x000f000f
    v_and_b32 v8, 7, v3
    v_lshlrev_b32 v8, 1, v8
    v_xor_b32 v8, v8, v2
    v_lshlrev_b32 v8, 4, v8
    v_lshl_add_u32 v{vAK}, v3, 8, v8
    v_xor_b32 v{vAK+1}, 64, v{vAK}
    v_xor_b32 v{vAK+2}, 0x80, v{vAK}
    v_xor_b32 v{vAK+3}, 0xc0, v{vAK}
    v_lshrrev_b32 v8, 2, v1
    v_and_b32 v9, 7, v8
    v_lshlrev_b32 v9, 5, v9
    v_lshl_add_u32 v9, v8, 8, v9
    v_and_b32 v8, 3, v1
    v_lshl_add_u32 v{vAV}, v8, 3, v9""")
    a("s_waitcnt vmcnt(11)")
    stamp(1)
    for i in range(4):
        a(f"v_lshlrev_b32 v{X+2*i}, 16, v{X4+i}\nv_and_b32 v{X+2*i+1}, 0xffff0000, v{X4+i}")
    a(f"v_lshlrev_b32 v{X+8}, 16, v{X4+4}")
    pk(8, X, X+2); pk(10, X+4, X+6); pk(8, 8, 10)
    a(f"v_add_f32 v8, v8, v9\nv_add_f32 v8, v8, v{X+8}")
    red63("v_add_f32", "v8")
    a(f"v_readlane_b32 s52, v8, 63\nv_mov_b32 v8, {fhex(1/576)}\nv_mul_f32 v8, s52, v8")
    a(f"v_sub_f32 v10, v{X}, v8\nv_mul_f32 v9, v10, v10")
    for i in range(1, 9): a(f"v_sub_f32 v10, v{X+i}, v8\nv_fmac_f32 v9, v10, v10")
    red63("v_add_f32", "v9")
    a(f"v_readlane_b32 s52, v9, 63\nv_mov_b32 v9, {fhex(1/576)}\nv_mul_f32 v9, s52, v9")
    ln_scale("v8", "v9", "v10")
    for i in range(9): a(f"v_sub_f32 v{X+i}, v{X+i}, v8")
    for i in range(0, 8, 2): rnd2(f"v{X+i}", f"v{X+i+1}", "v10")
    rnd1(f"v{X+8}")
    for i in range(9): a(f"v_mul_f32 v{X+i}, v{X+i}, v9")
    for i in range(0, 8, 2): rnd2(f"v{X+i}", f"v{X+i+1}", "v10")
    rnd1(f"v{X+8}")
    a(f"""v_lshlrev_b32 v8, 5, v1
    v_add_u32 v8, {L_XN}, v8
    ds_write_b128 v8, v[{X}:{X+3}]
    ds_write_b128 v8, v[{X+4}:{X+7}] offset:16
    v_lshlrev_b32 v8, 2, v1
    v_add_u32 v8, {L_XN+2048}, v8
    ds_write_b32 v8, v{X+8}
    v_add_u32 v8, s58, v2
    v_lshlrev_b32 v8, 2, v8
    v_add_u32 v8, {L_XN}, v8
    s_waitcnt lgkmcnt(0)""")
    for k in range(9): a(f"ds_read_b32 v{X+k}, v8 offset:{16*k}")
    for i in range(4): a(f"v_mov_b32 v{12+i}, 0")
    a(f"""s_lshl_b32 s52, s3, 8
    s_add_u32 s52, s52, {L_QRED}
    v_lshl_add_u32 v6, v{vE}, 2, s52
    s_waitcnt lgkmcnt(0)""")
    for k in range(9):
        w = WQ + 2*k
        a(f"""s_waitcnt vmcnt({10-k})
        v_lshlrev_b32 v8, 16, v{w}
        v_and_b32 v9, 0xffff0000, v{w}
        v_lshlrev_b32 v10, 16, v{w+1}
        v_and_b32 v11, 0xffff0000, v{w+1}
        v_fmac_f32 v12, v8, v{X+k}
        v_fmac_f32 v13, v9, v{X+k}
        v_fmac_f32 v14, v10, v{X+k}
        v_fmac_f32 v15, v11, v{X+k}""")
    tr4(12)
    a(f"""ds_write_b32 v6, v12
    s_waitcnt vmcnt(1)
    v_add_u32 v{vTAG}, {hex(TAGC)}, v{vTAG}""")
    NL = a.label("qnl")
    arrive_last(C_Q, NL)
    a(f"""v_lshlrev_b32 v8, 2, v1
    v_add_u32 v8, {L_QRED}, v8
    ds_read_b32 v12, v8
    ds_read_b32 v13, v8 offset:256
    ds_read_b32 v14, v8 offset:512
    ds_read_b32 v15, v8 offset:768
    s_lshl_b32 s52, s1, 9
    s_add_u32 s52, s52, {O_QX}
    v_lshlrev_b32 v8, 3, v1
    s_waitcnt lgkmcnt(0)
    v_add_f32 v12, v12, v13
    v_add_f32 v14, v14, v15
    v_add_f32 v12, v12, v14
    v_mov_b32 v13, v{vTAG}
    {'s_nop 0' if noqs else f'buffer_store_dwordx2 v[12:13], v8, {WS}, s52 offen sc0 sc1'}""")
    a(f"{NL}:")
    stamp(2)
    a(f"""s_mov_b32 s58, s3
    s_lshl_b32 s59, s3, 13
    s_mov_b32 s60, 0
    s_mov_b32 s46, 0x00030003
    s_mov_b32 s47, 0x00030003
    v_mov_b32 v{vM}, {fhex(-3.0e38)}
    v_mov_b32 v{vL}, 0""")
    for F in PRE:
        wait_unit(); k_read(F); next_unit()
    LQ, LQD = a.label("qg"), a.label("qgd")
    a(f"""s_lshl_b32 s52, {sHK}, 13
    s_lshl_b32 s53, s3, 11
    s_add_u32 s61, s52, s53
    s_add_u32 s61, s61, {O_QX}
    v_lshlrev_b32 v8, 3, v1""")
    LQW = a.label("qw")
    if q1 is not None:
        for k in range(4): a(f"buffer_load_dwordx2 v[{WQ+2*k}:{WQ+1+2*k}], v8, {WS}, s61 offen offset:{512*k} {q1}")
        a(f"s_branch {LQW}")
    a(f"{LQ}:")
    if noqg: a(f"s_branch {LQD}")
    for k in range(4): a(f"buffer_load_dwordx2 v[{WQ+2*k}:{WQ+1+2*k}], v8, {WS}, s61 offen offset:{512*k} sc0 sc1")
    a(f"""{LQW}:
    s_waitcnt vmcnt(0)
    v_xor_b32 v12, v{WQ+1}, v{vTAG}
    v_xor_b32 v13, v{WQ+3}, v{vTAG}
    v_xor_b32 v14, v{WQ+5}, v{vTAG}
    v_xor_b32 v15, v{WQ+7}, v{vTAG}
    v_or3_b32 v12, v12, v13, v14
    v_or_b32 v12, v12, v15
    v_cmp_ne_u32 vcc, 0, v12
    s_cbranch_vccz {LQD}""")
    retry(LQ)
    a(f"""{LQD}:
    v_add_f32 v12, v{WQ}, v{WQ+2}
    v_add_f32 v13, v{WQ+4}, v{WQ+6}
    v_add_f32 v12, v12, v13
    v_cvt_pk_bf16_f32 v12, v12, v12
    s_lshl_b32 s52, s3, 7
    s_add_u32 s52, s52, {L_Q}
    v_lshl_add_u32 v8, v1, 1, s52
    ds_write_b16 v8, v12
    v_and_b32 v8, 1, v3
    v_lshlrev_b32 v8, 8, v8
    v_lshl_add_u32 v8, v2, 4, v8
    v_add_u32 v8, {L_Q}, v8""")
    barrier(C_Q2)
    for i in range(4): a(f"ds_read_b128 v[{vQ+4*i}:{vQ+4*i+3}], v8 offset:{64*i}")
    stamp(3)
    a(f"""s_mul_i32 s52, s3, 144
    v_add_u32 v8, s52, v{vE}
    v_lshlrev_b32 v8, 1, v8
    v_mov_b32 v9, {OOB}
    v_cndmask_b32 v10, v9, v8, s[44:45]
    buffer_load_ushort v{vXR}, v8, {XS}, 0 offen
    buffer_load_ushort v{vXR+1}, v8, {XS}, 0 offen offset:128
    buffer_load_ushort v{vXR+2}, v10, {XS}, 0 offen offset:256""")
    a(f"""s_sub_u32 s52, s2, {ID_O}
    s_lshl_b32 s52, s52, 4
    v_and_b32 v8, 15, v{vE}
    v_add_u32 v8, s52, v8
    v_lshlrev_b32 v8, 1, v8
    v_min_u32 v{vXO}, {OOB}, v8
    buffer_load_ushort v{vXF}, v{vXO}, {XS}, 0 offen
    s_waitcnt lgkmcnt(0)""")
    if levels:
        a(f"""s_getreg_b32 s49, hwreg(HW_REG_XCC_ID, 0, 3)
        s_lshl_b32 s48, s49, 10
        s_add_u32 s48, s48, {O_PG}
        s_lshl_b32 s50, s2, 2
        s_add_u32 s50, s50, s48
        s_lshl_b32 s52, s49, 7
        s_add_u32 s52, s52, {O_PG + 0x5000}
        s_cmp_eq_u32 s3, 0
        s_cselect_b32 s50, s50, s52
        s_mov_b32 s51, 0
        v_and_b32 v8, 7, v1
        v_lshlrev_b32 v8, 7, v8
        v_add_u32 v{vPA}, {O_PG + 0x4000}, v8
        s_cmp_lt_u32 s2, {ID_O}
        s_cselect_b32 s97, {8 - obias}, 8
        s_cmp_ge_u32 s2, {ID_F}
        s_cselect_b32 s97, {8 - fbias}, s97
        s_bitcmp1_b32 s2, 0
        s_cselect_b64 s[98:99], -1, 0
        s_bitcmp1_b32 s2, 1
        s_cselect_b64 s[100:101], -1, 0""")
        for r in range(6): a(f"v_add_u32 v{vPG+r}, 0x800, v{vTAG}")
    for F in PRE: k_mfma(F)
    LK, LKE = a.label("kl"), a.label("ke")
    a(f"{LK}:")
    wait_unit(); k_read(vF); k_mfma(vF, next_unit); progress()
    a(f"""s_and_b32 s52, s60, 7
    s_cbranch_scc1 {LK}
    s_mov_b32 s46, 0x00030003
    s_mov_b32 s47, 0x00030003""")
    for r in range(24): a(f"v_mov_b32 v{vS+r}, v{vS+8+r}")
    for r in range(0, 8, 2): rnd2(f"v{vSA+r}", f"v{vSA+r+1}", "v4")
    N = vS + 24
    for r in range(8): a(f"v_mul_f32 v{N+r}, {fhex(128**-0.5)}, v{vSA+r}")
    for r in range(0, 8, 2): rnd2(f"v{N+r}", f"v{N+r+1}", "v4")
    a(f"v_max3_f32 v8, v{vM}, v{N}, v{N+1}")
    for r in range(2, 8, 2): a(f"v_max3_f32 v8, v8, v{N+r}, v{N+r+1}")
    a(f"v_sub_f32 v9, v{vM}, v8\nv_mov_b32 v{vM}, v8")
    for r in range(8): a(f"v_sub_f32 v{vSA+r}, v{N+r}, v8")
    a(f"v_mul_f32 v9, {LOG2E}, v9")
    for r in range(8): a(f"v_mul_f32 v{vSA+r}, {LOG2E}, v{vSA+r}")
    a("v_exp_f32 v9, v9")
    for r in range(8): a(f"v_exp_f32 v{vSA+r}, v{vSA+r}")
    a(f"v_mul_f32 v{vL}, v{vL}, v9")
    pk(vSA, vSA, vSA+2); pk(vSA+4, vSA+4, vSA+6); pk(vSA, vSA, vSA+4)
    a(f"v_add_f32 v{vL}, v{vL}, v{vSA}\nv_add_f32 v{vL}, v{vL}, v{vSA+1}")
    a(f"s_cmp_lg_u32 s60, 32\ns_cbranch_scc1 {LK}")
    stamp(4)
    a(f"v_mov_b32 v8, v{vM}")
    red_par("v_max_f32", "v8", "v4")
    a(f"""v_sub_f32 v9, v{vM}, v8
    v_mul_f32 v9, {LOG2E}, v9
    v_exp_f32 v9, v9
    s_lshl_b32 s53, s3, 4
    s_add_u32 s53, s53, {L_ST}
    v_mul_f32 v9, v9, v{vL}""")
    red_par("v_add_f32", "v9", "v4")
    LM, LMD, NL = a.label("ml"), a.label("mld"), a.label("mnl")
    a(f"""v_lshlrev_b32 v6, 3, v1
    v_add_u32 v4, s53, v6
    s_mov_b64 exec, 3
    ds_write_b64 v4, v[8:9]""")
    arrive_last(C_R, NL)
    a(f"""v_add_u32 v4, {L_ST}, v6
    s_mov_b64 exec, 3""")
    for w in range(4): a(f"ds_read_b64 v[{vSA+2*w}:{vSA+2*w+1}], v4 offset:{16*w}")
    a(f"""s_lshl_b32 s53, s1, 5
    s_add_u32 s53, s53, {O_ML}
    v_lshlrev_b32 v6, 4, v1
    v_mov_b32 v14, v{vTAG}
    v_mov_b32 v15, v{vTAG}
    s_waitcnt lgkmcnt(0)
    v_max_f32 v12, v{vSA}, v{vSA+2}
    v_max3_f32 v12, v12, v{vSA+4}, v{vSA+6}""")
    for w in range(4): a(f"v_sub_f32 v{vSA+2*w}, v{vSA+2*w}, v12")
    for w in range(4): a(f"v_mul_f32 v{vSA+2*w}, {LOG2E}, v{vSA+2*w}")
    for w in range(4): a(f"v_exp_f32 v{vSA+2*w}, v{vSA+2*w}")
    a(f"v_mul_f32 v13, v{vSA}, v{vSA+1}")
    for w in range(1, 4): a(f"v_fmac_f32 v13, v{vSA+2*w}, v{vSA+2*w+1}")
    a(f"""buffer_store_dwordx4 v[12:15], v6, {WS}, s53 offen sc0 sc1
    s_mov_b64 exec, -1
    {NL}:""")
    for r in range(4): a(f"v_mov_b32 v{vO+r}, 0")
    per = 1152 // pfg
    npf = (9 * per + 63) // 64
    a(f"""s_lshr_b32 s52, s2, 3
    s_mul_i32 s52, s52, 18
    s_lshr_b32 s53, s3, 1
    s_mul_i32 s53, s53, 9
    s_add_u32 s52, s52, s53
    s_mul_i32 s52, s52, 9216
    s_and_b32 s53, s2, 7
    s_mul_i32 s53, s53, 1152
    s_add_u32 s52, s52, s53
    s_bitcmp1_b32 s3, 0
    s_cselect_b32 s34, s18, s16
    s_cselect_b32 s35, s19, s17""")
    srd(32, 34, 35, str(8*9216 + 1152), "s52")
    for F in PRE:
        v_addr(); wait_unit(); v_read(F); a(f"s_waitcnt lgkmcnt(0)\nds_write_b32 v{vCON}, v4"); next_unit()
    a(f"""v_and_b32 v6, 31, v1
    v_lshlrev_b32 v6, 4, v6
    s_lshl_b32 s53, {sHK}, 9
    s_add_u32 s53, s53, {O_ML}
    {LM}:
    buffer_load_dwordx4 v[12:15], v6, {WS}, s53 offen sc0 sc1
    s_waitcnt vmcnt(0)
    v_cmp_ne_u32 vcc, v14, v{vTAG}
    s_cbranch_vccz {LMD}
    s_mov_b64 exec, vcc""")
    retry(LM)
    a(f"{LMD}:\ns_mov_b64 exec, -1")
    stamp(5)
    a(f"v_mov_b32 v{vM}, v12")
    red_par("v_max_f32", f"v{vM}", "v4")
    a(f"""v_sub_f32 v12, v12, v{vM}
    v_mul_f32 v12, {LOG2E}, v12
    v_exp_f32 v12, v12
    v_mul_f32 v13, 0.5, v13
    v_mul_f32 v9, v13, v12""")
    red_par("v_add_f32", "v9", "v4")
    a(f"""v_rcp_f32 v10, v9
    v_fma_f32 v11, -v9, v10, 1.0
    v_fma_f32 v{vL}, v11, v10, v10""")
    stamp(6)
    LVG, LV, LVE, LNS = a.label("vg"), a.label("vl"), a.label("ve"), a.label("ns")
    a(f"""s_mov_b32 s46, 0x00030003
    s_mov_b32 s47, 0x00030003
    v_and_b32 v8, 1, v3
    v_lshlrev_b32 v8, 9, v8
    v_lshrrev_b32 v9, 1, v3
    v_lshl_add_u32 v8, v9, 6, v8
    v_lshl_add_u32 v{vQ+14}, v2, 4, v8
    v_add_u32 v8, {L_ORED}, v{vQ+14}""")
    for k in range(4):
        a(f"s_xor_b32 s52, s3, {k}\ns_lshl_b32 s52, s52, 10\nv_add_u32 v{vQ+10+k}, s52, v8")
    make_p()
    for F in PRE: p_spread(); v_mfma(F, 0); p_shift()
    a(f"s_branch {LV}\n{LVG}:")
    LR, LRD, LRX, LRY = a.label("rdy"), a.label("rdyd"), a.label("rdyx"), a.label("rdyy")
    a(f"""s_cmp_lg_u32 s60, 48
    s_cbranch_scc1 {LRX}
    s_cmp_lg_u32 s3, 1
    s_cbranch_scc1 {LRY}
    v_lshlrev_b32 v4, 5, v1
    s_mov_b32 s52, {O_ML}
    s_mov_b32 s53, {O_ML + 4096}
    {LR}:
    buffer_load_dword v12, v4, {WS}, s52 offen offset:8 sc0 sc1
    buffer_load_dword v13, v4, {WS}, s52 offen offset:2056 sc0 sc1
    buffer_load_dword v14, v4, {WS}, s53 offen offset:8 sc0 sc1
    buffer_load_dword v15, v4, {WS}, s53 offen offset:2056 sc0 sc1
    s_waitcnt vmcnt(0)
    v_xor_b32 v12, v12, v{vTAG}
    v_xor_b32 v13, v13, v{vTAG}
    v_xor_b32 v14, v14, v{vTAG}
    v_xor_b32 v15, v15, v{vTAG}
    v_or3_b32 v12, v12, v13, v14
    v_or_b32 v12, v12, v15
    v_cmp_ne_u32 vcc, 0, v12
    s_cbranch_vccz {LRD}""")
    retry(LR)
    a(f"{LRD}:")
    one(f"ds_write_b32 v{vCNT}, v{vONE} offset:{C_RD}")
    a(f"""s_cmp_lg_u32 s2, 0
    s_cbranch_scc1 {LRY}
    v_subrev_u32 v12, {hex(TAGC-0x1000)}, v{vTAG}""")
    one(f"buffer_store_dword v12, v7, {WS}, 0 offen offset:{O_E} sc0 sc1")
    a(f"s_branch {LRY}\n{LRX}:\ns_cmp_lg_u32 s60, 56\ns_cbranch_scc1 {LRY}")
    spin_lds(f"v{vCNT}", "v5", "s52", 1, 1, off=C_RD)
    a(f"{LRY}:")
    make_p()
    a(f"{LV}:")
    p_spread(); v_addr()
    a(f"s_cmp_eq_u32 s60, 63\ns_cbranch_scc1 {LVE}")
    wait_unit(); v_read(vF); v_mfma(vF, 14)
    a(f"ds_write_b32 v{vCON}, v4")
    next_unit(); p_shift(); progress()
    if tk:
        X = a.label("tk")
        a(f"s_cmp_lg_u32 s60, {tk}\ns_cbranch_scc1 {X}\ns_cmp_lg_u32 s3, 1\ns_cbranch_scc1 {X}")
        srd(36, 24, 25, "256")
        a(f"v_mov_b32 v{vQ+12}, 1")
        one(f"buffer_atomic_add v{vQ+12}, v7, s[36:39], 0 offen sc0 sc1")
        a(f"{X}:")
    def prefetch():
        for i in range(npf):
            a(f"""v_add_u32 v8, {64*i}, v1
            v_mul_u32_u24 v9, {-(-65536 // per)}, v8
            v_lshrrev_b32 v9, 16, v9
            v_mul_u32_u24 v10, {per}, v9
            v_sub_u32 v10, v8, v10
            v_mul_u32_u24 v9, 9216, v9
            v_mul_u32_u24 v10, {pfg}, v10
            v_add_u32 v9, v9, v10
            buffer_load_dword v{vQ}, v9, s[32:35], 0 offen""")
    if pf_at and pf_at < 64:
        a(f"s_cmp_lg_u32 s60, {pf_at}\ns_cbranch_scc1 {LNS}")
        prefetch()
    a(f"""{LNS}:
    s_and_b32 s52, s60, 7
    s_cbranch_scc1 {LV}
    s_branch {LVG}
    {LVE}:""")
    NX = a.label("ox")
    a(f"""s_lshl_b32 s96, s1, 10
    s_add_u32 s96, s96, {O_OP}""")
    wait_unit(); v_read(vF); v_mfma(vF, 14)
    stamp(7)
    a(f"""ds_write_b32 v{vCON}, v4
    ds_write_b128 v{vQ+10}, v[{vO}:{vO+3}]
    s_mov_b64 exec, 1
    ds_add_rtn_u32 v5, v{vCNT}, v{vONE} offset:{C_O}
    s_mov_b64 exec, -1""")
    for w in range(3): a(f"ds_read_b128 v[{vG+4*w}:{vG+4*w+3}], v{vQ+11+w}")
    a(f"""s_waitcnt lgkmcnt(3)
    v_readfirstlane_b32 s52, v5
    s_cmp_lg_u32 s52, 3
    s_waitcnt lgkmcnt(0)
    s_cbranch_scc1 {NX}""" if not diag else f"""s_waitcnt lgkmcnt(0)
    v_readfirstlane_b32 s52, v5
    s_cmp_lg_u32 s52, 3
    s_cbranch_scc1 {NX}""")
    pk(vG+4, vG+4, vG+8); pk(vG+6, vG+6, vG+10); pk(vG, vG, vO); pk(vG+2, vG+2, vO+2); pk(12, vG, vG+4); pk(14, vG+2, vG+6)
    for r in range(4): a(f"v_min_u32 v{12+r}, -2, v{12+r}")
    a(f"buffer_store_dwordx4 v[12:15], v{vQ+14}, {WS}, s96 offen sc0 sc1")
    if hold: one(f"ds_write_b32 v{vCNT}, v{vONE} offset:{C_OP}")
    a(f"{NX}:")
    stamp(8)
    LNO, LNF = a.label("noO"), a.label("noF")
    a(f"""s_cmp_ge_u32 s2, {ID_F}
    s_cbranch_scc1 {LNO}
    s_cmp_ge_u32 s2, {ID_O}
    s_cbranch_scc1 {LNF}""")
    AO, BO, GO, SO = 176, 106, 58, 90
    a(f"""v_lshlrev_b32 v10, 12, v2
    v_lshl_add_u32 v10, v3, 4, v10
    s_lshl_b32 s58, s54, 15
    s_lshr_b32 s52, s3, 1
    s_lshl_b32 s52, s52, 14
    s_add_u32 s58, s58, s52
    s_and_b32 s52, s3, 1
    s_lshl_b32 s52, s52, 9
    s_add_u32 s58, s58, s52
    s_add_u32 s58, s58, {O_OP}
    v_lshrrev_b32 v8, 2, v3
    v_lshl_add_u32 v8, v2, 3, v8
    v_lshlrev_b32 v8, 7, v8
    v_and_b32 v9, 3, v3
    v_lshl_add_u32 v8, v9, 3, v8
    v_lshrrev_b32 v9, 3, v3
    v_lshlrev_b32 v12, 1, v2
    v_and_b32 v12, 2, v12
    v_or_b32 v9, v9, v12
    v_xor_b32 v9, s3, v9
    v_lshl_add_u32 v8, v9, 5, v8
    v_add_u32 v8, {WO_L}, v8
    s_lshl_b32 s52, s3, 8
    s_add_u32 s52, s52, {L_OB}
    v_lshl_add_u32 v6, v{vE}, 1, s52
    v_lshlrev_b32 v9, 4, v2
    v_add_u32 v11, {L_OB}, v9
    v_mul_u32_u24 v12, {P2C}, v3
    v_add_u32 v9, v9, v12
    s_mov_b32 s50, 0x00ff00ff
    s_mov_b32 s51, 0x00ff00ff
    s_mul_i32 s59, s54, 2304
    s_lshl_b32 s53, s55, 8
    s_add_u32 s59, s59, s53
    s_lshl_b32 s53, s3, 6
    s_add_u32 s59, s59, s53
    s_add_u32 s59, s59, {O_P2}
    s_movk_i32 s61, 257""")
    L1, L1D, L1W = a.label("h1"), a.label("h1d"), a.label("h1w")
    def h1_loads():
        for hh in range(2):
            for k in range(4): a(f"buffer_load_dwordx4 v[{GO+16*hh+4*k}:{GO+16*hh+4*k+3}], v10, {WS}, s58 offen offset:{1024*k + 256*hh} sc0 sc1")
    def frags_if(mark, done, body):
        X = a.label("fx")
        a(f"""s_cmp_lg_u32 {done}, 0
        s_cbranch_scc1 {X}
        ds_read_b32 v4, v{vLND}
        s_waitcnt lgkmcnt(0)
        v_readfirstlane_b32 s52, v4
        s_cmp_lt_i32 s52, {mark}
        s_cbranch_scc1 {X}
        s_mov_b64 s[46:47], exec
        s_mov_b64 exec, -1""")
        body()
        a(f"s_mov_b64 exec, s[46:47]\ns_mov_b32 {done}, 1\n{X}:")
    def frags_must(mark, done, body):
        X = a.label("fm")
        a(f"s_cmp_lg_u32 {done}, 0\ns_cbranch_scc1 {X}\ns_movk_i32 s61, {mark}")
        spin_lds(f"v{vLND}", "v4", "s52", "s61")
        body()
        a(f"{X}:")
    def wo_frags():
        for s_ in range(16):
            for h in range(2):
                r = AO + 4*s_ + 2*h
                a(f"ds_read_b64_tr_b16 v[{r}:{r+1}], v8 offset:{4096*s_ + 512*h}")
    if hu:
        a(f"s_lshl_b32 s60, s54, 12\ns_add_u32 s60, s60, {O_H1}")
        spin_lds(f"v{vCNT}", "v4", "s52", 1, off=C_IS)
        notice_load(32, "s60")
        spin_lds(f"v{vLND}", "v4", "s52", "s61")
        wo_frags()
        notice_wait(32, "s60", True, d1)
        stamp(11)
    else:
        if e1:
            spin_lds(f"v{vCNT}", "v4", "s52", 1, off=C_IS)
            h1_loads()
        spin_lds(f"v{vLND}", "v4", "s52", "s61")
        stamp(11); cnt0()
        if not e1: h1_loads()
        wo_frags()
        a(f"s_branch {L1W}")
    a(f"{L1}:")
    h1_loads()
    a(f"{L1W}:")
    for hh in range(2):
        a(f"s_waitcnt vmcnt({4-4*hh})")
        sum4(SO + 4*hh, [GO + 16*hh + 4*k for k in range(4)])
    poison_check(GO, 32, [SO, SO+4], L1, L1D)
    stamp(9); cnt1(12)
    if loc2 == "h1":
        X = a.label("l2")
        a(f"""s_cmp_lg_u32 s3, 0
        s_cbranch_scc1 {X}
        s_getreg_b32 s52, hwreg(HW_REG_XCC_ID, 0, 3)
        s_lshl_b32 s52, s52, 7
        s_lshl_b32 s53, s55, 2
        s_add_u32 s52, s52, s53
        s_add_u32 s52, s52, {O_H2}
        s_mov_b64 exec, 1
        buffer_store_dword v{vTAG}, v7, {WS}, s52 offen
        s_mov_b64 exec, -1
        {X}:""")
    if hu:
        X = a.label("hu")
        a(f"s_or_b32 s52, s55, s3\ns_cbranch_scc1 {X}")
        notice(f"s_lshl_b32 s53, s54, 7\ns_add_u32 s53, s53, {O_H2}", 8, 1024)
        a(f"{X}:")
    tr4(SO, SO+4)
    a(f"""v_cvt_pk_bf16_f32 v12, v{SO}, v{SO+4}
    ds_write_b16 v6, v12
    ds_write_b16_d16_hi v6, v12 offset:128""")
    barrier(C_P, True)
    for s_ in range(16): a(f"ds_read_b128 v[{BO+4*s_}:{BO+4*s_+3}], v11 offset:{64*s_}")
    for s_ in range(16):
        a(f"s_waitcnt lgkmcnt({15-s_})")
        d = 12 if s_ % 2 == 0 else SO
        c = "0" if s_ < 2 else f"v[{d}:{d+3}]"
        a(f"v_mfma_f32_16x16x32_bf16 v[{d}:{d+3}], v[{AO+4*s_}:{AO+4*s_+3}], v[{BO+4*s_}:{BO+4*s_+3}], {c}")
    a("s_mov_b64 exec, s[50:51]")
    pk(12, 12, SO); pk(14, 14, SO+2)
    for r in range(4): a(f"v_min_u32 v{12+r}, -2, v{12+r}")
    a(f"buffer_store_dwordx4 v[12:15], v9, {WS}, s59 offen sc0 sc1")
    stamp(10)
    if loc2 == "st":
        X = a.label("l2")
        a(f"""s_cmp_lg_u32 s3, 0
        s_cbranch_scc1 {X}
        s_getreg_b32 s52, hwreg(HW_REG_XCC_ID, 0, 3)
        s_lshl_b32 s52, s52, 7
        s_lshl_b32 s53, s55, 2
        s_add_u32 s52, s52, s53
        s_add_u32 s52, s52, {O_H2}
        s_mov_b64 exec, 1
        buffer_store_dword v{vTAG}, v7, {WS}, s52 offen
        s_mov_b64 exec, -1
        {X}:""")

    a(f"s_branch L_fin")
    a(f"{LNF}:")
    if pf_at == 64: prefetch()
    L3, L3D, L4, L4D = a.label("h3"), a.label("h3d"), a.label("h4"), a.label("h4d")
    a(f"""s_cmp_ge_u32 s2, {ID_R}
    s_cbranch_scc1 L_fin
    s_cmp_lg_u32 s3, 0
    s_cbranch_scc1 L_fin
    s_sub_u32 s52, s2, {ID_O}
    s_mul_i32 s58, s52, 9216
    s_add_u32 s58, s58, {O_P3}
    s_lshl_b32 s59, s52, 6
    s_mul_i32 s52, s54, {P2C}
    s_add_u32 s59, s59, s52
    s_add_u32 s59, s59, {O_P2}
    v_lshrrev_b32 v6, 2, v1
    v_mul_u32_u24 v6, 2304, v6
    v_and_b32 v9, 3, v1
    v_lshl_add_u32 v6, v9, 4, v6
    v_mov_b32 v8, {OOB}
    v_cndmask_b32 v9, v8, v{vXO}, s[44:45]
    v_cmp_gt_u32 vcc, 32, v1
    v_lshlrev_b32 v{vXF}, 16, v{vXF}
    v_cndmask_b32 v6, v8, v6, vcc
    v_lshlrev_b32 v10, 4, v1
    s_lshl_b32 s60, s54, 10
    s_add_u32 s61, s60, {O_H3}
    s_add_u32 s60, s60, {O_H2}""")
    a("s_add_u32 s96, s58, 4096\ns_add_u32 s97, s58, 8192")
    def h3_loads():
        for k in range(9):
            a(f"buffer_load_dwordx4 v[{vG+4*k}:{vG+4*k+3}], v10, {WS}, {['s58', 's96', 's97'][k//4]} offen offset:{1024*(k%4)} sc0 sc1")
    L3W = a.label("h3w")
    if rloc:
        LH, LHD = a.label("lh"), a.label("lhd")
        a(f"""s_getreg_b32 s60, hwreg(HW_REG_XCC_ID, 0, 3)
        s_lshl_b32 s60, s60, 7
        s_add_u32 s60, s60, {O_H3}
        s_movk_i32 s61, 120
        v_lshlrev_b32 v13, 2, v1
        s_bfm_b64 exec, 32, 0
        {LH}:
        buffer_load_dword v12, v13, {WS}, s60 offen sc1
        s_sub_u32 s61, s61, 1
        s_cbranch_scc1 {LHD}
        s_waitcnt vmcnt(0)
        v_cmp_eq_u32 vcc, v12, v{vTAG}
        s_bcnt1_i32_b64 s52, vcc
        s_cmp_lt_u32 s52, {need3}
        s_cbranch_scc1 {LH}
        {LHD}:
        s_mov_b64 exec, -1
        s_waitcnt vmcnt(0)""")
        if dR: a(f"s_sleep {dR}")
        stamp(13)
        L4W = a.label("h4w")
        a(f"buffer_load_dwordx4 v[12:15], v6, {WS}, s59 offen sc0 sc1")
        h3_loads()
        a(f"s_waitcnt vmcnt(9)\ns_branch {L4W}")
    a(f"""{L4}:
    buffer_load_dwordx4 v[12:15], v6, {WS}, s59 offen sc0 sc1
    s_waitcnt vmcnt(0)""")
    if rloc: a(f"{L4W}:")
    poison_check(12, 4, [12], L4, L4D)
    stamp(11)
    tr4(12)
    for m in ("row_ror:8", "row_ror:4"):
        a(f"v_add_f32_dpp v12, v12, v12 {m} row_mask:0xf bank_mask:0xf")
    rnd1("v12")
    a(f"v_add_f32 v11, v12, v{vXF}")
    rnd1("v11")
    cnt0()
    if rloc: a(f"s_branch {L3W}")
    a(f"{L3}:")
    h3_loads()
    a(f"{L3W}:")
    a("s_waitcnt vmcnt(7)")
    pk(12, vG, vG+4); pk(14, vG+2, vG+6)
    for k in range(2, 9):
        a(f"s_waitcnt vmcnt({8-k})")
        pk(12, 12, vG+4*k); pk(14, 14, vG+4*k+2)
    poison_check(vG, 36, [12], L3, L3D)
    stamp(14); cnt1(12)
    tr4(12)
    for m in ("row_ror:8", "row_ror:4"):
        a(f"v_add_f32_dpp v12, v12, v12 {m} row_mask:0xf bank_mask:0xf")
    rnd1("v12")
    a(f"""v_add_f32 v12, v12, v11
    v_cvt_pk_bf16_f32 v12, v12, v12
    buffer_store_short v12, v9, {OUTS}, 0 offen
    s_branch L_fin""")
    a(f"{LNO}:")
    AG, AD, DD, SM = 184, 58, 94, 156
    a(f"""v_mul_u32_u24 v10, 2304, v2
    v_lshl_add_u32 v10, v3, 4, v10
    v_mov_b32 v9, {OOB}
    v_cndmask_b32 v11, v9, v10, s[44:45]
    s_mul_i32 s52, s3, 576
    s_mul_i32 s96, s54, {P2C}
    s_add_u32 s96, s96, s52
    s_add_u32 s96, s96, {O_P2}
    s_add_u32 s97, s96, 9216
    s_lshl_b32 s58, s56, 6
    s_mul_i32 s53, s3, {9*9216}
    s_add_u32 s58, s58, s53
    s_add_u32 s58, s58, {O_P3}
    s_mul_i32 s52, s3, 288
    v_lshl_add_u32 v{vA+1}, v{vE}, 1, s52
    v_add_u32 v{vA+1}, {L_HN}, v{vA+1}
    s_lshl_b32 s53, s3, 3
    s_add_u32 s53, s53, {L_ST}
    v_mov_b32 v{vA+2}, s53
    v_mov_b32 v{vA+3}, {L_ST}
    v_lshlrev_b32 v{vA+5}, 4, v2
    v_add_u32 v{vA+4}, {L_HN}, v{vA+5}
    v_mul_u32_u24 v{vA+7}, 9216, v3
    v_add_u32 v{vA+7}, v{vA+7}, v{vA+5}
    v_add_u32 v{vA+5}, {L_ACT}, v{vA+5}
    v_cmp_gt_u32 vcc, 9, v3
    v_lshrrev_b32 v12, 2, v3
    v_lshl_add_u32 v12, v2, 3, v12
    v_cndmask_b32 v{vA+7}, v9, v{vA+7}, vcc
    v_mul_u32_u24 v8, 1152, v12
    v_and_b32 v6, 3, v3
    v_lshl_add_u32 v8, v6, 3, v8
    v_add_u32 v8, {WD_L}, v8
    v_lshrrev_b32 v14, 3, v3
    v_lshlrev_b32 v15, 1, v2
    v_and_b32 v15, 2, v15
    v_or_b32 v14, v14, v15
    v_and_b32 v{vA+6}, 1, v2
    v_lshl_add_u32 v{vA+6}, v{vA+6}, 2, v6
    s_lshl_b32 s52, s3, 4
    s_add_u32 s53, s52, {L_ACT}
    v_lshl_add_u32 v{vA+6}, v{vA+6}, 1, s53
    v_lshlrev_b32 v12, 6, v12
    v_and_b32 v13, 1, v3
    v_lshl_add_u32 v12, v13, 3, v12
    v_and_b32 v15, 2, v3
    v_and_b32 v13, 1, v2
    v_or_b32 v13, v13, v15
    v_xor_b32 v13, s3, v13
    v_lshl_add_u32 v12, v13, 4, v12
    v_mul_u32_u24 v15, {(WU_L - WG_L)//2}, v15
    v_add_u32 v12, {WG_L}, v12
    v_add_u32 v6, v12, v15
    v_lshlrev_b32 v{vXR}, 16, v{vXR}
    v_lshlrev_b32 v{vXR+1}, 16, v{vXR+1}
    v_lshlrev_b32 v{vXR+2}, 16, v{vXR+2}""")
    if levels or pf_at: a("s_waitcnt vmcnt(0)")
    a(f"v_mov_b32 v{vA}, v6\ns_mul_i32 s52, s3, 9")
    for bb in range(9):
        a(f"v_xor_b32 v13, s52, v14\nv_lshl_add_u32 v{vQ+bb}, v13, 5, v8")
        if bb < 8: a("s_add_u32 s52, s52, 1")
    def gu_frags():
        for s_ in range(18):
            for h in range(2):
                r = AG + 4*s_ + 2*h
                a(f"ds_read_b64_tr_b16 v[{r}:{r+1}], v{vA} offset:{2048*s_ + 256*h}")
        stamp(9)
    def wd_frags():
        for bb in range(9):
            for h in range(2):
                r = AD + 4*bb + 2*h
                a(f"ds_read_b64_tr_b16 v[{r}:{r+1}], v{vQ+bb} offset:{4608*h}")
        stamp(10)
    L2, L2D = a.label("h2"), a.label("h2d")
    L2W = a.label("h2w")
    def h2_loads():
        for i in range(3):
            for j in range(2):
                r = vG + 8*i + 4*j
                a(f"buffer_load_dwordx4 v[{r}:{r+3}], v{10 + (i == 2)}, {WS}, s{96+j} offen offset:{256*i} sc0 sc1")
    a(f"s_lshl_b32 s60, s54, 10\ns_add_u32 s60, s60, {O_H2}")
    assert not hu
    if order == "dg":
        a(f"s_movk_i32 s61, {MK_D}")
        spin_lds(f"v{vLND}", "v4", "s52", "s61")
        wd_frags()
        a(f"s_movk_i32 s61, {MK_G}")
        spin_lds(f"v{vLND}", "v4", "s52", "s61")
        cnt0()
        first, last = None, gu_frags
    else:
        a(f"s_movk_i32 s61, {MK_G}")
        spin_lds(f"v{vLND}", "v4", "s52", "s61")
        gu_frags()
        if e2:
            spin_lds(f"v{vCNT}", "v4", "s52", 1, off=C_IS)
            h2_loads()
        a(f"s_movk_i32 s61, {MK_D}")
        spin_lds(f"v{vLND}", "v4", "s52", "s61")
        cnt0()
        last = wd_frags
    assert not ndef
    if loc2:
        LH, LHD, LHC = a.label("lh"), a.label("lhd"), a.label("lhc")
        a(f"""s_getreg_b32 s60, hwreg(HW_REG_XCC_ID, 0, 3)
        s_lshl_b32 s60, s60, 7
        s_add_u32 s60, s60, {O_H2}
        s_movk_i32 s61, 100
        v_lshlrev_b32 v13, 2, v1
        s_bfm_b64 exec, 9, 0
        buffer_load_dword v12, v13, {WS}, s60 offen sc1
        s_mov_b64 exec, -1""")
        last()
        a(f"""s_bfm_b64 exec, 9, 0
        s_branch {LHC}
        {LH}:
        buffer_load_dword v12, v13, {WS}, s60 offen sc1
        {LHC}:
        s_sub_u32 s61, s61, 1
        s_cbranch_scc1 {LHD}
        s_waitcnt vmcnt(0)
        v_cmp_eq_u32 vcc, v12, v{vTAG}
        s_bcnt1_i32_b64 s52, vcc
        s_cmp_lt_u32 s52, {need2}
        s_cbranch_scc1 {LH}
        {LHD}:
        s_mov_b64 exec, -1""")
        if d2l: a(f"s_sleep {d2l}")
        h2_loads()
    else:
        if not e2: h2_loads()
        last()
    a(f"s_branch {L2W}\n{L2}:")
    h2_loads()
    a(f"{L2W}:")
    for i in range(3):
        a(f"s_waitcnt vmcnt({4-2*i})")
        sum4(SM + 4*i, [vG + 8*i + 4*j for j in range(2)])
    poison_check(vG, 24, [SM, SM+4, SM+8], L2, L2D)
    stamp(11); cnt1(1)
    tr4(SM, SM+4, SM+8)
    H0, H1, H2 = f"v{SM}", f"v{SM+4}", f"v{SM+8}"
    rnd2(H0, H1, "v4"); rnd1(H2)
    a(f"v_add_f32 {H0}, {H0}, v{vXR}\nv_add_f32 {H1}, {H1}, v{vXR+1}\nv_add_f32 {H2}, {H2}, v{vXR+2}")
    rnd2(H0, H1, "v4"); rnd1(H2)
    a(f"""v_readfirstlane_b32 s53, {H0}
    v_subrev_f32 v8, s53, {H0}
    v_subrev_f32 v9, s53, {H1}
    v_subrev_f32 v10, s53, {H2}
    v_mul_f32 v5, v8, v8
    v_add_f32 v4, v8, v9
    v_cndmask_b32 v10, v7, v10, s[44:45]
    v_fmac_f32 v5, v9, v9
    v_add_f32 v4, v4, v10
    v_fmac_f32 v5, v10, v10""")
    red63("v_add_f32", "v4", "v5")
    a(f"""v_readlane_b32 s46, v4, 63
    v_readlane_b32 s47, v5, 63
    v_mov_b32 v8, {fhex(1/144)}
    v_mul_f32 v8, s46, v8
    v_mov_b32 v9, s47
    v_fma_f32 v9, -v8, s46, v9
    v_add_f32 v8, s53, v8
    s_mov_b64 exec, 1
    ds_write_b64 v{vA+2}, v[8:9]""")
    barrier(C_ST, not ndef)
    if ndef: one(f"ds_write_b32 v{vCNT}, v{vONE} offset:{C_WD}")
    a(f"""ds_read_b128 v[{vG}:{vG+3}], v{vA+3}
    ds_read_b128 v[{vG+4}:{vG+7}], v{vA+3} offset:16
    s_waitcnt lgkmcnt(0)
    v_pk_add_f32 v[8:9], v[{vG}:{vG+1}], v[{vG+2}:{vG+3}]
    v_pk_add_f32 v[10:11], v[{vG+4}:{vG+5}], v[{vG+6}:{vG+7}]
    v_pk_add_f32 v[8:9], v[8:9], v[10:11]
    v_mul_f32 v8, 0x3e800000, v8
    v_sub_f32 v{vG}, v{vG}, v8
    v_sub_f32 v{vG+2}, v{vG+2}, v8
    v_sub_f32 v{vG+4}, v{vG+4}, v8
    v_sub_f32 v{vG+6}, v{vG+6}, v8
    v_mul_f32 v10, v{vG}, v{vG}
    v_fmac_f32 v10, v{vG+2}, v{vG+2}
    v_fmac_f32 v10, v{vG+4}, v{vG+4}
    v_fmac_f32 v10, v{vG+6}, v{vG+6}
    v_fmac_f32 v9, {fhex(144.0)}, v10
    v_mul_f32 v9, {fhex(1/576)}, v9""")
    ln_scale("v8", "v9", "v10")
    for H in (H0, H1, H2): a(f"v_sub_f32 {H}, {H}, v8")
    rnd2(H0, H1, "v4"); rnd1(H2)
    for H in (H0, H1, H2): a(f"v_mul_f32 {H}, {H}, v9")
    a(f"""v_cvt_pk_bf16_f32 v12, {H0}, {H1}
    v_cvt_pk_bf16_f32 v13, {H2}, {H2}
    ds_write_b16 v{vA+1}, v12
    ds_write_b16_d16_hi v{vA+1}, v12 offset:128
    s_mov_b64 exec, s[44:45]
    ds_write_b16 v{vA+1}, v13 offset:256
    s_mov_b32 s46, 0x22222222
    s_mov_b32 s47, 0x22222222
    s_mov_b32 s48, 0xcccccccc
    s_mov_b32 s49, 0xcccccccc
    s_mov_b32 s50, 0x88888888
    s_mov_b32 s51, 0x88888888
    s_mov_b64 exec, -1""")
    barrier(C_HN, not ndef)
    stamp(12)
    BG = vG
    for s_ in range(18): a(f"ds_read_b128 v[{BG+4*s_}:{BG+4*s_+3}], v{vA+4} offset:{64*s_}")
    a(f"v_mov_b32 v6, {fhex(0.044715)}")
    for s_ in range(18):
        a(f"s_waitcnt lgkmcnt({min(15, 17-s_)})")
        d = 12 if s_ % 2 == 0 else 8
        c = "0" if s_ < 2 else f"v[{d}:{d+3}]"
        a(f"v_mfma_f32_16x16x32_bf16 v[{d}:{d+3}], v[{AG+4*s_}:{AG+4*s_+3}], v[{BG+4*s_}:{BG+4*s_+3}], {c}")
        if hu and s_ + 1 == hu3:
            X = a.label("hu")
            a(f"s_cmp_lg_u32 s55, 31\ns_cbranch_scc1 {X}\ns_cmp_lg_u32 s3, 0\ns_cbranch_scc1 {X}")
            notice(f"s_lshl_b32 s53, s54, 7\ns_add_u32 s53, s53, {O_H3}", 8, 1024)
            a(f"{X}:")
    K0 = (2/3.141592653589793)**0.5
    pk(12, 12, 8); pk(14, 14, 10)
    a(f"""v_cndmask_b32 v12, v12, v13, s[46:47]
    v_cndmask_b32 v14, v14, v15, s[50:51]
    v_cndmask_b32 v12, v12, v14, s[48:49]""")
    rnd1("v12")
    a(f"""v_mov_b32 v13, v12
    v_permlane32_swap_b32 v12, v13
    v_mul_f32 v8, v12, v12
    v_mul_f32 v8, v8, v12
    v_fma_f32 v8, v8, v6, v12
    v_mul_f32 v8, {fhex(-2*K0*1.4426950408889634)}, v8
    v_exp_f32 v8, v8
    v_add_f32 v8, 1.0, v8
    v_rcp_f32 v8, v8
    v_mul_f32 v12, v12, v8""")
    rnd1("v12")
    a(f"""v_mul_f32 v12, v12, v13
    v_cvt_pk_bf16_f32 v12, v12, v12
    s_mov_b64 exec, 0x000f000f
    ds_write_b16 v{vA+6}, v12
    s_mov_b32 s46, 0x00010001
    s_mov_b32 s47, 0x00010001
    s_mov_b64 exec, -1""")
    if ndef:
        a(f"s_movk_i32 s61, 260")
        spin_lds(f"v{vLND}", "v4", "s52", "s61")
        wd_frags()
    barrier(C_ACT, True)
    stamp(13)
    a(f"ds_read_b128 v[12:15], v{vA+5}\ns_waitcnt lgkmcnt(0)")
    if sel:
        for bb in range(9):
            D = DD if bb == 0 else vG + 4*bb
            a(f"v_mfma_f32_16x16x32_bf16 v[{D}:{D+3}], v[{AD+4*bb}:{AD+4*bb+3}], v[12:15], 0")
        for bb in range(1, 9):
            D = vG + 4*bb
            a(f"""s_lshl_b64 exec, s[46:47], {bb}
            v_pk_mov_b32 v[{DD}:{DD+1}], v[{D}:{D+1}], v[{D}:{D+1}] op_sel:[0,1]
            v_pk_mov_b32 v[{DD+2}:{DD+3}], v[{D+2}:{D+3}], v[{D+2}:{D+3}] op_sel:[0,1]""")
        a("s_mov_b64 exec, -1")
    else:
        def onehot(bb):
            B = vG + 4*bb
            for r in range(4): a(f"v_cndmask_b32 v{B+r}, v7, v{12+r}, s[46:47]")
            if bb < 8: a("s_lshl_b64 s[46:47], s[46:47], 1")
        onehot(0)
        for bb in range(9):
            if bb < 8: onehot(bb + 1)
            B = vG + 4*bb
            c = "0" if bb == 0 else f"v[{DD}:{DD+3}]"
            a(f"v_mfma_f32_16x16x32_bf16 v[{DD}:{DD+3}], v[{AD+4*bb}:{AD+4*bb+3}], v[{B}:{B+3}], {c}")
    for r in range(4): a(f"v_min_u32 v{DD+r}, -2, v{DD+r}")
    a(f"buffer_store_dwordx4 v[{DD}:{DD+3}], v{vA+7}, {WS}, s58 offen sc0 sc1")
    stamp(14)
    if rloc:
        a(f"""s_cmp_lg_u32 s3, 0
        s_cbranch_scc1 L_fin
        s_getreg_b32 s52, hwreg(HW_REG_XCC_ID, 0, 3)
        s_lshl_b32 s52, s52, 7
        s_lshl_b32 s53, s55, 2
        s_add_u32 s52, s52, s53
        s_add_u32 s52, s52, {O_H3}
        s_mov_b64 exec, 1
        buffer_store_dword v{vTAG}, v7, {WS}, s52 offen""")
    a("L_fin:")
    if diag:
        stamp(15)
        a(f"""s_add_u32 s26, s26, 0x20000000
        s_addc_u32 s27, s27, 0
        v_lshrrev_b32 v2, 6, v0
        v_mov_b32 v3, s2
        v_mul_u32_u24 v3, 5, v3
        v_add_u32 v3, v3, v2
        v_lshlrev_b32 v3, 7, v3
        s_waitcnt lgkmcnt(0)
        s_mov_b64 exec, 1""")
        for i in range(NST):
            a(f"v_mov_b32 v4, s{ST0+2*i}\nv_mov_b32 v5, s{ST0+2*i+1}\nglobal_store_dwordx2 v3, v[4:5], s[26:27] offset:{8*i}\ns_nop 1")
    a(f"""L_end:
    s_endpgm
    .section .rodata,"a"
    .p2align 6
    .amdhsa_kernel {KN}_kernel
    .amdhsa_next_free_vgpr 256
    .amdhsa_next_free_sgpr 102
    .amdhsa_accum_offset 256
    .amdhsa_group_segment_fixed_size 0
    .amdhsa_kernarg_size 96
    .amdhsa_user_sgpr_count 2
    .amdhsa_user_sgpr_kernarg_segment_ptr 1
    .amdhsa_system_sgpr_workgroup_id_x 1
    .amdhsa_float_denorm_mode_32 3
    .end_amdhsa_kernel""")
    a.lines = [l.replace('sc0 sc1', sc) for l in a.lines]
    a.lines, n = pad(a.lines)
    return a.text()

if __name__ == "__main__":
    import ast
    out = sys.argv[1]
    kw = {}
    for x in sys.argv[2:]:
        k, v = x.split("="); kw[k] = ast.literal_eval(v)
    open(out, "w").write(gen(**kw))
```

```python
import struct, sys
from asmlib import Asm, pad
KN = "sequential_preLN__gqa_block_cached__geglu_ffn__decode"
def fhex(x): return "0x%08x" % struct.unpack("<I", struct.pack("<f", x))[0]

def gen(W=20, W2=20, diag=False, sleep=0, polK='nt', polV='nt', polW='', ldbar=False, pf_at=0, pfg=128, npre=3, pf_rows=9, order="gd", levels=None, thr=(1,), pgw=2, lvl2=False, sc='sc0 sc1', hold=0, fastfail=True, Wh=0, NH=0, spf=0, spw=6, WO2=None, rot=True, early=True, Wd=None, hu=False, hu1='land', hu3=18, d1=0, d2=0, d3=0, hwbar=True, defer=False, obias=0, fbias=0, l2mask=0, l2sm=1, l2gain=1, rloc=True, dR=6, ndef=0, spd=0, spdfirst=True, Uend=256, Wend=32, tk=0, par=None, ramp=None, npro=3, poison=1, touch=0, loc2=None, d2l=0, need2=9, cpf=None, wpf=4, Wd0=20, nowq=False, polQ='nt', noqg=False, noqs=False, ksleep=0, q1=None, need3=1, sel=False, e2=False, e1=False, isback=0, diagm=0, xm=None, rotm=None, ilv=0, ig=14, pb=0, place=None, gmode=0, rmul=None, rx=0, omul=None, cwd=False, spo=0, wdat='st', wdfr='act', opd=None, holdS=None, holdF=None, holdO=None, W0=None, N0=0, ustamps=(8,16,24,32), pgpre=0, pg2=False, pgimm=False, tab=None, pgper=1, pgstf='', pgoff=0, pubm=1, sleep3=0, prio=3, cprio=0, tsh=2, tfull=0, locld='sc1', locst=''):
    NSLOT = 18
    UNIT = 8192
    RING = NSLOT * UNIT
    M = RING
    L_LANDED = M
    L_CONS = M + 256
    L_CNT = M + 1280
    C_Q, C_Q2, C_O, C_P, C_ST, C_HN, C_ACT, C_R, C_LVL, C_RD, C_OP, C_IS, C_WD, C_OD = [4*i for i in range(14)]
    L_XN = M + 1536
    L_QRED = L_XN + 2304
    L_Q = L_QRED + 1024
    L_ORED = L_Q + 512
    L_OB = L_ORED + 4096
    L_ST = L_OB + 1024
    L_HN = L_ST + 64
    L_H = L_HN + 1152
    L_ACT = L_H + 2304
    LDS = L_ACT + 64
    assert LDS <= 163840, LDS
    WO_L = 32768
    WG_L = 32768
    WU_L = WG_L + 36864
    WD_L = WU_L + 36864
    if order == "dg": WD_L, WG_L, WU_L = 32768, 32768 + 36864, 32768 + 2 * 36864
    assert max(WD_L, WU_L) + 36864 <= RING
    def need_cnt(lo, hi):
        last = max(u for u in range(256 - NSLOT, 256) if lo // UNIT <= u % NSLOT <= (hi - 1) // UNIT)
        return (last >> 2) + 1
    O_PG = 0x120000
    O_E, O_QX, O_ML, O_OP, O_P2, O_P3 = 0, 0x10000, 0x40000, 0x50000, 0x90000, 0xB4000
    P2C = 8 * 2304
    O_H1, O_H2, O_H3 = 0x130000, 0x138000, 0x13A000
    WS_SZ = 0x140000
    TAGC = 0x9E3779B9
    OOB = 0x7ffffff0
    a = Asm()
    NST = 16
    ST0 = 64
    def stamp(i):
        if diag: a(f"s_memrealtime s[{ST0+2*i}:{ST0+2*i+1}]")
    sTO = "s62"
    def cnt0():
        if diag: a("s_mov_b32 s95, s62")
    def cnt1(i):
        if diag: a(f"s_sub_u32 s95, s95, s62\ns_mul_i32 s95, s95, 100\ns_add_u32 s{ST0+2*i}, s{ST0}, s95\ns_addc_u32 s{ST0+2*i+1}, s{ST0+1}, 0")
    def spin_lds(vaddr, vt, st, cmp_need, sl=0, off=0):
        L, D = a.label("spin"), a.label("done")
        a(f"""{L}:
        ds_read_b32 {vt}, {vaddr} offset:{off}
        s_waitcnt lgkmcnt(0)
        v_readfirstlane_b32 {st}, {vt}
        s_cmp_ge_i32 {st}, {cmp_need}
        s_cbranch_scc1 {D}
        s_sub_u32 {sTO}, {sTO}, 1
        s_cbranch_scc1 L_end""")
        if sl == 'w3': a(f"s_cmp_lg_u32 s3, 3\ns_cbranch_scc1 {L}\ns_sleep {sleep3}")
        elif sl: a(f"s_sleep {sl}")
        a(f"s_branch {L}\n{D}:")
    def srd(r, lo, hi, nrec, addlo=None):
        if addlo is None:
            a(f"s_mov_b32 s{r}, s{lo}\ns_mov_b32 s{r+1}, s{hi}")
        else:
            a(f"s_add_u32 s{r}, s{lo}, {addlo}\ns_addc_u32 s{r+1}, s{hi}, 0")
        a(f"s_mov_b32 s{r+2}, {nrec}\ns_mov_b32 s{r+3}, 0x20000")

    a(f"; @launch grid=(256,1,1) block=(320,1,1) lds={LDS}")
    a(f""".amdgcn_target "amdgcn-amd-amdhsa--gfx950"
    .text
    .globl {KN}_kernel
    .p2align 8
    .type {KN}_kernel,@function
    {KN}_kernel:
    s_cmp_ge_u32 s2, 256
    s_cbranch_scc1 L_end
    s_load_dwordx16 s[4:19], s[0:1], 0
    s_load_dwordx8 s[20:27], s[0:1], 64""")
    if diag:
        for i in range(1, NST): a(f"s_mov_b64 s[{ST0+2*i}:{ST0+2*i+1}], 0")
    stamp(0)
    a(f"""v_lshrrev_b32 v2, 6, v0
    v_and_b32 v1, 63, v0
    v_readfirstlane_b32 s3, v2
    s_mov_b32 {sTO}, 0x100000
    v_lshrrev_b32 v2, 4, v1
    v_and_b32 v3, 15, v1""")
    if gmode == 0: a("s_mov_b32 s1, s2")
    elif gmode == 1: a("s_and_b32 s52, s2, 7\ns_lshl_b32 s52, s52, 5\ns_lshr_b32 s53, s2, 3\ns_or_b32 s53, s53, s52")
    elif gmode == 2: a("s_and_b32 s52, s2, 7\ns_lshl_b32 s52, s52, 5\ns_bfe_u32 s53, s2, 0x10003\ns_lshl_b32 s53, s53, 4\ns_or_b32 s52, s52, s53\ns_lshr_b32 s53, s2, 4\ns_or_b32 s53, s53, s52")
    elif gmode == 3:
        a("s_and_b32 s52, s2, 3\ns_bfe_u32 s53, s2, 0x20003\ns_lshl_b32 s53, s53, 2\ns_or_b32 s52, s52, s53\ns_bfe_u32 s53, s2, 0x10002\ns_lshl_b32 s53, s53, 7\ns_or_b32 s52, s52, s53\ns_lshr_b32 s53, s2, 5\ns_lshl_b32 s53, s53, 4\ns_or_b32 s53, s53, s52")
    elif gmode == 4:
        a("s_and_b32 s52, s2, 1\ns_bfe_u32 s53, s2, 0x30003\ns_lshl_b32 s53, s53, 1\ns_or_b32 s52, s52, s53\ns_bfe_u32 s53, s2, 0x20001\ns_lshl_b32 s53, s53, 6\ns_or_b32 s52, s52, s53\ns_lshr_b32 s53, s2, 6\ns_lshl_b32 s53, s53, 4\ns_or_b32 s53, s53, s52")
    if gmode: a("s_mov_b32 s1, s53")
    a("s_cmp_lg_u32 s3, 0\ns_cbranch_scc1 L_cons")
    ID_O, ID_R, ID_F = 72, 108, 112
    def roles():
        a("""s_and_b32 s54, s2, 7
        s_lshr_b32 s55, s2, 3
        s_mul_i32 s56, s54, 18
        s_add_u32 s56, s56, s55
        s_sub_u32 s56, s56, 14""")
    blk = {0: "s_lshl_b32 s57, s2, 20",
           1: "s_lshr_b32 s57, s2, 3\ns_add_u32 s57, s57, s2\ns_and_b32 s57, s57, 7\ns_and_b32 s58, s2, 0xf8\ns_or_b32 s57, s57, s58\ns_lshl_b32 s57, s57, 20",
           2: "s_lshr_b32 s57, s2, 4\ns_xor_b32 s57, s57, s2\ns_and_b32 s57, s57, 15\ns_and_b32 s58, s2, 0xf0\ns_or_b32 s57, s57, s58\ns_lshl_b32 s57, s57, 20",
           3: "s_lshr_b32 s57, s2, 4\ns_mul_i32 s57, s57, 5\ns_add_u32 s57, s57, s2\ns_and_b32 s57, s57, 15\ns_and_b32 s58, s2, 0xf0\ns_or_b32 s57, s57, s58\ns_lshl_b32 s57, s57, 20",
           4: "s_bfe_u32 s57, s2, 0x10003\ns_and_b32 s58, s2, 7\ns_lshl_b32 s58, s58, 1\ns_or_b32 s57, s57, s58\ns_and_b32 s58, s2, 0xf0\ns_or_b32 s57, s57, s58\ns_lshl_b32 s57, s57, 20",
           5: "s_lshr_b32 s57, s2, 5\ns_xor_b32 s57, s57, s2\ns_and_b32 s57, s57, 7\ns_and_b32 s58, s2, 0xf8\ns_or_b32 s57, s57, s58\ns_lshl_b32 s57, s57, 20",
          }[diagm]
    if xm is not None:
        blk = "s_and_b32 s57, s2, 15"
        if pb:
            blk += f"\ns_bfe_u32 s58, s2, {hex(0x10000 | pb)}\ns_and_b32 s59, s2, {(1 << pb) - 1}\ns_lshl_b32 s59, s59, 1\ns_or_b32 s58, s58, s59\ns_and_b32 s57, s57, {15 & ~((2 << pb) - 1)}\ns_or_b32 s57, s57, s58"
        for b, m in enumerate(xm):
            if m: blk += f"\ns_bitcmp1_b32 s2, {4+b}\ns_cselect_b32 s58, {m}, 0\ns_xor_b32 s57, s57, s58"
        if ilv:
            blk += f"\ns_and_b32 s58, s57, {(1 << ilv) - 1}\ns_lshl_b32 s58, s58, {ig}\ns_lshr_b32 s57, s57, {ilv}\ns_lshl_b32 s57, s57, {20 + ilv}\ns_or_b32 s57, s57, s58"
        else:
            blk += "\ns_lshl_b32 s57, s57, 20"
        blk += "\ns_lshr_b32 s58, s2, 4\ns_lshl_b32 s58, s58, 24\ns_or_b32 s57, s57, s58"
    SPAN = (1 << (20 + ilv)) - (((1 << ilv) - 1) << ig)
    assert place or not gmode
    if place:
        assert len(set(place)) == 4 and all(13 <= p <= 23 for p in place) and not ilv and rotm is None
        SM = sum(1 << b for b in range(13, 24) if b not in place)
        SPAN = SM + 8192
        blk = "s_and_b32 s59, s1, 15"
        for b, m in enumerate(xm or ()):
            if m: blk += f"\ns_bitcmp1_b32 s1, {4+b}\ns_cselect_b32 s58, {m}, 0\ns_xor_b32 s59, s59, s58"
        blk += "\ns_lshr_b32 s57, s1, 4\ns_lshl_b32 s57, s57, 24"
        for k, p in enumerate(place):
            blk += f"\ns_bitcmp1_b32 s59, {k}\ns_cselect_b32 s58, {hex(1 << p)}, 0\ns_or_b32 s57, s57, s58"
    def start_off():
        if rotm is None: a("s_mov_b32 s58, 0\ns_mov_b32 s59, 4096")
        else: a(f"s_mul_i32 s58, s2, {rotm[0]}\ns_lshr_b32 s58, s58, {rotm[1]}\ns_and_b32 s58, s58, 63\ns_lshl_b32 s58, s58, {14 + ilv}\ns_add_u32 s59, s58, 4096")
    j0 = (W + 7) % 8
    lag = (W + 7 - j0) // 8
    a(f"""s_setprio {prio}
    v_lshlrev_b32 v4, 1, v2
    v_xor_b32 v4, v4, v3
    v_lshlrev_b32 v4, 4, v4
    v_lshl_add_u32 v4, v2, 8, v4
    v_xor_b32 v5, 0x80, v4
    {blk}
    s_mov_b32 m0, 0""")
    start_off()
    a("s_waitcnt lgkmcnt(0)")
    srd(28, 6, 7, hex(SPAN), "s57")
    if ldbar: a("s_barrier")
    stamp(8)
    def unit_loads(sr, pub, waits=True, W=W, Wp=None):
        j0 = ((Wp or W) + 7) % 8
        for j in range(8):
            if j == 4: a("s_add_u32 m0, m0, 4096")
            if waits: a(f"s_waitcnt vmcnt({W-1})")
            a(f"buffer_load_dwordx4 v{4 + (j&1)}, s[{sr}:{sr+3}], s{58 + (j>>2)} offen offset:{(j&3)*1024} {polK if sr == 28 else polV} lds")
            if pub and j == j0:
                a("v_mov_b32 v7, s60\nds_write_b32 v6, v7")
        if place: a(f"s_or_b32 s58, s58, {hex(~SM & 0xffffe000)}\ns_add_u32 s58, s58, 8192\ns_and_b32 s58, s58, {hex(SM)}")
        elif ilv and ig == 13: a(f"s_add_u32 s58, s58, {8192 << ilv}")
        elif ilv: a(f"s_add_u32 s58, s58, 8192\ns_and_b32 s96, s58, {(1 << ig) - 1}\ns_cselect_b32 s96, 0, {((1 << ilv) - 1) << ig}\ns_add_u32 s58, s58, s96")
        else: a("s_add_u32 s58, s58, 8192")
        if rotm is not None: a(f"s_and_b32 s58, s58, {hex((1 << (20 + ilv)) - 1)}")
        a("s_add_u32 s59, s58, 4096")
    unit_loads(28, False, False)
    for _ in range(npro - 1):
        a("s_add_u32 m0, m0, 4096")
        unit_loads(28, False, False)
    srd(32, 8, 9, hex(SPAN), "s57")
    roles()
    a(f"""s_mul_i32 s57, s54, {512*1152}
    s_lshl_b32 s61, s55, 7
    s_add_u32 s57, s57, s61
    s_sub_u32 s61, {4096*1152}, s57""")
    srd(36, 12, 13, "s61", "s57")
    a(f"""s_lshl_b32 s57, s56, 6
    s_sub_u32 s61, {576*9216}, s57""")
    srd(40, 16, 17, "s61", "s57")
    srd(44, 18, 19, "s61", "s57")
    a(f"s_mul_i32 s57, s56, {32*1152}")
    srd(48, 20, 21, str(32*1152), "s57")
    if touch:
        T1, T2 = a.label("tf"), a.label("te")
        a(f"""v_mul_u32_u24 v8, {touch}, v1
        s_mov_b64 exec, 1
        buffer_load_dword v31, v8, s[32:35], 0 offen nt
        s_mov_b64 exec, -1
        s_cmp_ge_u32 s2, {ID_F}
        s_cbranch_scc1 {T1}
        s_cmp_ge_u32 s2, {ID_O}
        s_cbranch_scc1 {T2}
        s_bfm_b64 exec, {512*1152 // touch + 1}, 0
        buffer_load_dword v31, v8, s[36:39], 0 offen nt
        s_branch {T2}
        {T1}:
        buffer_load_dword v31, v8, s[40:43], 0 offen nt
        buffer_load_dword v31, v8, s[44:47], 0 offen nt
        buffer_load_dword v31, v8, s[48:51], 0 offen nt
        {T2}:
        s_mov_b64 exec, -1""")
    a(f"""v_lshrrev_b32 v8, 3, v1
    v_and_b32 v9, 2, v8
    v_mul_u32_u24 v8, 1152, v8
    v_and_b32 v10, 7, v1
    v_xor_b32 v9, v9, v10
    v_lshl_add_u32 v12, v9, 4, v8
    v_xor_b32 v9, 4, v9
    v_lshl_add_u32 v16, v9, 4, v8
    v_lshrrev_b32 v8, 2, v1
    v_lshrrev_b32 v9, 5, v1
    v_mul_u32_u24 v8, 9216, v8
    v_and_b32 v10, 3, v1
    v_xor_b32 v9, v9, v10
    v_lshl_add_u32 v13, v9, 4, v8
    v_xor_b32 v9, 2, v9
    v_lshl_add_u32 v17, v9, 4, v8""")
    for i in range(0 if cwd else 18):
        a(f"""v_add_u32 v8, {64*i}, v1
        v_mul_u32_u24 v9, 911, v8
        v_lshrrev_b32 v9, 16, v9
        v_mul_u32_u24 v10, 72, v9
        v_sub_u32 v10, v8, v10
        v_and_b32 v11, 2, v9
        v_xor_b32 v10, v10, v11
        v_lshrrev_b32 v11, 1, v9
        v_and_b32 v11, 4, v11
        v_xor_b32 v10, v10, v11
        v_mul_u32_u24 v9, 1152, v9
        v_lshl_add_u32 v{32+i}, v10, 4, v9""")
    a(f"""v_mov_b32 v14, 0
    v_lshlrev_b32 v6, 2, v1
    v_add_u32 v6, {L_LANDED}, v6
    s_lshr_b32 s97, s56, 1
    s_mul_i32 s97, s97, {rmul or 0}
    s_mul_i32 s52, s54, {rx}
    s_add_u32 s97, s97, s52
    s_and_b32 s52, s56, 1
    s_mul_i32 s52, s52, 18
    s_add_u32 s97, s97, s52
    s_and_b32 s97, s97, 0xfff
    s_mul_i32 s52, s97, 1821
    s_lshr_b32 s52, s52, 16
    s_mul_i32 s52, s52, 36
    s_sub_u32 s97, s97, s52
    s_mul_i32 s98, s55, {omul or 0}
    s_and_b32 s98, s98, 62
    v_mov_b32 v22, 0
    v_mov_b32 v23, 0
    v_mov_b32 v20, {L_CNT + C_LVL}
    v_mov_b32 v21, {L_CONS}
    s_mov_b32 s63, {npro}
    s_mov_b32 s60, {npro - lag + 1}
    s_mov_b32 s57, {npro*UNIT}
    s_mov_b32 s61, 0""")
    if not ldbar: a("s_barrier")
    assert all((w + 7) // 8 == lag for w in (levels or ()))
    for ph, sr, uend in ((-1, 28, N0),)[:1 if N0 else 0] + ((0, 28, 128), (1, 32, Uend), (2, 32, 256))[:3 if Uend < 256 else 2]:
        L, BK = a.label("ld"), a.label("ldback")
        if ph == 1:
            start_off()
            stamp(1)
        if ph == 2:
            a(f"s_sub_u32 s60, s60, {(Wend + 7) // 8 - lag}")
            W, lag = Wend, (Wend + 7) // 8
        a(f"""{L}:
        s_waitcnt lgkmcnt(0)
        v_readfirstlane_b32 s52, v22
        s_cmp_ge_i32 s52, s61
        s_cbranch_scc1 {BK}""")
        if diag: a(f"s_add_u32 s{ST0+2*(9+max(0,min(ph,1)))}, s{ST0+2*(9+max(0,min(ph,1)))}, 100")
        spin_lds("v21", "v22", "s52", "s61", 1)
        a(f"""{BK}:
        s_mov_b32 m0, s57
        s_sub_u32 s52, s63, {NSLOT-1}
        s_ashr_i32 s61, s52, 2
        s_add_u32 s61, s61, 1
        s_and_b32 s52, s52, 3
        s_lshl_b32 s52, s52, 8
        s_add_u32 s52, s52, {L_CONS}
        v_mov_b32 v21, s52
        ds_read_b32 v22, v21""")
        if ph == -1:
            assert W0 <= W
            unit_loads(sr, True, True, W0, W)
        elif ph == 2:
            unit_loads(sr, True, True, Wend)
        elif levels:
            J = a.label("lj")
            a(f"v_readfirstlane_b32 s52, v23\nds_read_b32 v23, v20")
            order_ = [i for i in range(len(levels)) if i != len(levels)//2]
            labs = {i: a.label("lv") for i in order_}
            for i in order_: a(f"s_cmp_eq_u32 s52, {i+1}\ns_cbranch_scc1 {labs[i]}")
            unit_loads(sr, True, True, levels[len(levels)//2])
            for i in order_:
                a(f"s_branch {J}\n{labs[i]}:")
                unit_loads(sr, True, True, levels[i])
            a(f"{J}:")
        else:
            unit_loads(sr, True)
        if diag and ph < 2:
            for k, u in enumerate(ustamps):
                X_ = a.label("st")
                a(f"s_cmp_lg_u32 s63, {u}\ns_cbranch_scc1 {X_}"); stamp(11 + k); a(f"{X_}:")
        a(f"""s_add_u32 s57, s57, {UNIT}
        s_cmp_ge_u32 s57, {RING}
        s_cselect_b32 s57, 0, s57
        s_add_u32 s60, s60, 1
        s_add_u32 s63, s63, 1
        s_cmp_lt_u32 s63, {uend}
        s_cbranch_scc1 {L}""")
    stamp(2)
    if diag:
        for ph in range(2): a(f"s_add_u32 s{ST0+2*(9+ph)}, s{ST0+2*(9+ph)}, s{ST0}\ns_addc_u32 s{ST0+2*(9+ph)+1}, s{ST0+1}, 0")
    a(f"""v_mov_b32 v21, {L_CONS}""")
    def free_check(cnt):
        L, D = a.label("fc"), a.label("fcd")
        a(f"""{L}:
        ds_read_b32 v24, v21
        ds_read_b32 v25, v21 offset:256
        ds_read_b32 v26, v21 offset:512
        ds_read_b32 v27, v21 offset:768
        s_waitcnt lgkmcnt(0)
        v_min_i32 v24, v24, v25
        v_min3_i32 v24, v24, v26, v27
        v_readfirstlane_b32 s52, v24
        s_cmp_ge_i32 s52, {cnt}
        s_cbranch_scc1 {D}
        s_sub_u32 {sTO}, {sTO}, 1
        s_cbranch_scc1 L_end
        s_branch {L}
        {D}:""")
    def weights(doO, doF, r0=0):
        seq = []
        have = [0]; npf = [0]; ngu = [0]
        def mat(base, n, vr, sr, step):
            for i in range(n):
                c = need_cnt(base + 1024*i, base + 1024*(i+1))
                if c > have[0]:
                    have[0] = c
                    seq.append(("check", c))
                seq.append(("load", base + 1024*i, vr(i), sr, step(i)))
        if doO:
            if omul is not None:
                seq.append(("check", need_cnt(WO_L, WO_L + 65536))); have[0] = seq[-1][1]
            mat(WO_L, 64, lambda i: 12 + 4*(i & 1), 36, lambda i: i * 8 * 1152); seq.append(("mark", 257))
        if doF:
            mk = 258
            for o in (order if not cwd else "g"):
                if o == "g" and cpf:
                    a(f"""s_mul_i32 s57, s56, {cpf[0]*8192 - 64}
                    v_lshlrev_b32 v14, 7, v1
                    v_add_u32 v14, s57, v14""")
                    for t in range(2 * cpf[0]): seq.append(("load", None, 14, 40 + 4*(t & 1), -(t >> 1) * 8192 - 1))
                if o == "g":
                    seq.append(("check", need_cnt(WG_L, WU_L + 36864))); have[0] = max(have[0], seq[-1][1])
                    for i in [(k + r0) % 36 for k in range(36)]:
                        seq.append(("load", WG_L + 1024*i, 13, 40, i * 16 * 9216)); seq.append(("load", WU_L + 1024*i, 17, 44, i * 16 * 9216))
                else:
                    mat(WD_L, 36, lambda i: 32 + i % 18, 48, lambda i: (i // 18) * 16 * 1152)
                    if ndef:
                        loads = [k for k, it in enumerate(seq) if it[0] == "load"]
                        k = loads[-ndef]
                        while seq[k-1][0] == "check": k -= 1
                        seq[k:k] = [("mark", mk), ("wait", C_WD)]; mk += 1
                seq.append(("mark", mk)); mk += 1
        if not doO and not doF and cpf:
            srd(40, 16, 17, str(576*9216))
            srd(44, 18, 19, str(576*9216))
            a(f"""s_sub_u32 s57, s2, {ID_O}
            s_mul_i32 s57, s57, {cpf[1]*8192}
            s_add_u32 s57, s57, {144*cpf[0]*8192}
            v_lshlrev_b32 v14, 7, v1
            v_add_u32 v14, s57, v14""")
            for t in range(2 * cpf[1]): seq.append(("load", None, 14, 40 + 4*(t & 1), -(t >> 1) * 8192 - 1))
        elif not doO and not doF and (spf or spd or spo):
            a(f"""s_mul_i32 s57, s54, 1152
            s_sub_u32 s61, {576*9216}, s57""")
            srd(40, 16, 17, "s61", "s57")
            srd(44, 18, 19, "s61", "s57")
            a(f"""s_sub_u32 s59, s55, 9
            s_mul_i32 s59, s59, {7*9216}
            v_mul_u32_u24 v8, 7282, v1
            v_lshrrev_b32 v8, 16, v8
            v_mul_u32_u24 v9, 9, v8
            v_sub_u32 v9, v1, v9
            v_mul_u32_u24 v8, 9216, v8
            v_lshl_add_u32 v15, v9, 7, v8
            v_lshlrev_b32 v18, 7, v1
            s_bfm_b64 exec, 63, 0""")
            dl = []
            if spo:
                a(f"""s_mul_i32 s57, s54, {512*1152}
                s_sub_u32 s53, 13, s55
                s_lshl_b32 s53, s53, 13
                s_mov_b64 exec, -1
                v_add_u32 v18, s53, v18
                s_bfm_b64 exec, 63, 0""")
                srd(36, 12, 13, str(512*1152), "s57")
                for t in range(spo): seq.append(("load", None, 18, 36, -((67 - 5*t) * 8192) - 1))
            if spd:
                a(f"""s_mul_i32 s57, s54, {18*32*1152}
                s_sub_u32 s53, s55, 9
                s_mul_i32 s53, s53, {17*63*128}
                s_add_u32 s57, s57, s53
                s_sub_u32 s61, {18*32*1152}, s53
                v_lshlrev_b32 v14, 7, v1""")
                srd(48, 20, 21, "s61", "s57")
                dl = [("load", None, 14, 48, t * 63 * 128) for t in range(spd)]
            if spdfirst: seq += dl
            for t in range(2 * spf):
                k = t >> 1
                top = (575 if k % 2 == 0 else 287) - 35 * (k >> 1) if rot else 575 - 35 * k
                seq.append(("load", None, 15, 40 + 4*(t & 1), (top - 6) * 9216))
            if not spdfirst: seq += dl
        ev = [(8*u + 7, u + 1) for u in range(256 - lag, 256)]
        n = 2048
        for it in seq:
            if it[0] == "load": n += 1
            elif it[0] == "mark": ev.append((n - 1, it[1]))
        ev.sort()
        n = 2048
        def publish(v):
            a(f"v_mov_b32 v7, {v}\nds_write_b32 v6, v7")
            if v >= 256: stamp(min(v, 259) - 256 + 4)
        for it in seq:
            hh = holdO if doO else holdF if doF else holdS
            if hh is not None and it[0] == "load" and n == 2048 + hh:
                while ev and ev[0][1] <= 256:
                    idx, v = ev.pop(0)
                    a(f"s_waitcnt vmcnt({n - 1 - idx})"); publish(v)
                a(f"v_mov_b32 v24, {L_CNT + C_OP}")
                spin_lds("v24", "v25", "s52", 1)
            if it[0] == "wait":
                a(f"v_mov_b32 v24, {L_CNT + C_IS}\nv_mov_b32 v25, 1\ns_mov_b64 exec, 1\nds_write_b32 v24, v25\ns_mov_b64 exec, -1")
                while ev and ev[0][0] < n:
                    idx, v = ev.pop(0)
                    a(f"s_waitcnt vmcnt({n - 1 - idx})"); publish(v)
                a(f"v_mov_b32 v24, {L_CNT + it[1]}")
                spin_lds("v24", "v25", "s52", 1)
            if it[0] == "check":
                while ev and ev[0][1] <= 256 and ((ev[0][1] - 1) >> 2) + 1 <= it[1]:
                    idx, v = ev.pop(0)
                    a(f"s_waitcnt vmcnt({n - 1 - idx})"); publish(v)
                free_check(it[1])
            elif it[0] == "load":
                _, la, vr, sr, so = it
                w = W if n - W < 2047 else (WO2 if (doO and WO2) else W2)
                if doF and Wd and sr == 48 and n - W >= 2047: w = Wd
                if doF and Wh and n < 2048 + NH: w = Wh
                if doF and ramp:
                    w = [ww for nn, ww in ramp if n - 2048 >= nn][-1]
                if doF and cpf:
                    if sr == 48: w = W if n - W < 2047 else Wd0
                    elif la is None:
                        npf[0] += 1
                        w = max(Wd0 - 6 * npf[0], 0) + npf[0] if Wd0 - 6 * npf[0] > 0 else wpf
                    else:
                        ngu[0] += 1
                        w = min(63, wpf + ngu[0]) if ngu[0] < W2 else W2
                elif la is None:
                    t = n - 2048
                    w = max(0, W - 5 - 4*t) + t + 1 if W - 5 - 4*t > 0 else spw
                while ev and ev[0][0] < n - w:
                    idx, v = ev.pop(0)
                    a(f"s_waitcnt vmcnt({n - 1 - idx})"); publish(v)
                if la is None:
                    if so < 0:
                        a(f"s_mov_b64 s[98:99], exec\ns_mov_b64 exec, -1\nv_add_u32 v31, {-so - 1}, v{vr}\ns_waitcnt vmcnt({w-1})\nbuffer_load_dword v30, v31, s[{sr}:{sr+3}], 0 offen\ns_mov_b64 exec, s[98:99]")
                    elif sr == 48:
                        a(f"v_add_u32 v31, {so}, v{vr}\ns_waitcnt vmcnt({w-1})\nbuffer_load_dword v30, v31, s[{sr}:{sr+3}], 0 offen")
                    else:
                        a(f"s_sub_u32 s58, {so}, s59\ns_waitcnt vmcnt({w-1})\nbuffer_load_dword v30, v{vr}, s[{sr}:{sr+3}], s58 offen")
                else:
                    if rmul is not None and sr == 40:
                        a(f"s_lshl_b32 s99, s97, 10\ns_add_u32 m0, s99, {WG_L}\ns_mul_i32 s58, s97, {16*9216}\ns_waitcnt vmcnt({w-1})")
                    elif rmul is not None and sr == 44:
                        a(f"s_add_u32 m0, s99, {WU_L}\ns_add_u32 s97, s97, 1\ns_cmp_eq_u32 s97, 36\ns_cselect_b32 s97, 0, s97\ns_waitcnt vmcnt({w-1})")
                    elif omul is not None and sr == 36:
                        a(f"s_lshl_b32 s99, s98, 10\ns_add_u32 m0, s99, {WO_L}\ns_mul_i32 s58, s98, {8*1152}\ns_add_u32 s98, s98, 1\ns_and_b32 s98, s98, 63\ns_waitcnt vmcnt({w-1})")
                    else:
                        a(f"s_mov_b32 m0, {la}\ns_mov_b32 s58, {so}\ns_waitcnt vmcnt({w-1})")
                    a(f"buffer_load_dwordx4 v{vr}, s[{sr}:{sr+3}], s58 offen {polW} lds")
                last = None
                while ev and ev[0][0] <= n - w: last = ev.pop(0)[1]
                if last is not None: publish(last)
                n += 1
        if doO or doF:
            if isback:
                while ev and ev[0][0] < n - isback:
                    idx, v = ev.pop(0)
                    a(f"s_waitcnt vmcnt({n - 1 - idx})"); publish(v)
                a(f"s_waitcnt vmcnt({isback})")
            a(f"v_mov_b32 v24, {L_CNT + C_IS}\nv_mov_b32 v25, 1\ns_mov_b64 exec, 1\nds_write_b32 v24, v25\ns_mov_b64 exec, -1")
        while ev:
            idx, v = ev.pop(0)
            a(f"s_waitcnt vmcnt({n - 1 - idx})")
            publish(v)
        a("s_waitcnt lgkmcnt(0)")
        stamp(3)
        a("s_branch L_fin")
    LO, LF = a.label("wO"), a.label("wF")
    a(f"s_cmp_lt_u32 s2, {ID_O}\ns_cbranch_scc1 {LO}\ns_cmp_ge_u32 s2, {ID_F}\ns_cbranch_scc1 {LF}")
    weights(False, False)
    a(f"{LO}:"); weights(True, False)
    a(f"{LF}:")
    if rot and rmul is None:
        LF2 = a.label("wF2")
        a(f"s_bitcmp1_b32 s56, 0\ns_cbranch_scc1 {LF2}")
        weights(False, True)
        a(f"{LF2}:"); weights(False, True, 18)
    else:
        weights(False, True)
    MK_G = 258 + order.index("g")
    MK_D = 258 + order.index("d")

    vTAG, vE, vXR, vLND, vCON, vPF_, vQ, vAK, vAV, vCNT, vONE, vM, vL, vPG = 16, 17, 18, 21, 22, 23, 24, 40, 44, 45, 46, 47, 48, 248
    vA, vF, vD, vSA, vS, vP, vO = 50, 58, 90, 98, 106, 138, 142
    PRE = [178, 210, vF][3-npre:] if npre else []
    vG = 106
    vPA, vXF, vXO, vPF2 = 246, 247, 23, 245
    sHK = "s57"
    WS, XS, WQS, OUTS = "s[28:31]", "s[32:35]", "s[36:39]", "s[40:43]"
    LOG2E = fhex(1.4426950408889634)
    def one(x): a(f"s_mov_b64 exec, 1\n{x}\ns_mov_b64 exec, -1")
    def arrive_last(cnt, notlast, n=4):
        a(f"s_mov_b64 exec, 1\nds_add_rtn_u32 v5, v{vCNT}, v{vONE} offset:{cnt}\ns_waitcnt lgkmcnt(0)\nv_readfirstlane_b32 s52, v5\ns_mov_b64 exec, -1")
        a(f"s_cmp_lg_u32 s52, {n-1}\ns_cbranch_scc1 {notlast}")
    def barrier(cnt, hw=False):
        if hw and hwbar:
            a("s_mov_b64 exec, -1\ns_waitcnt lgkmcnt(0)\ns_barrier")
            return
        G = a.label("go")
        a(f"s_mov_b64 exec, 1\nds_add_rtn_u32 v5, v{vCNT}, v{vONE} offset:{cnt}\ns_waitcnt lgkmcnt(0)\nv_readfirstlane_b32 s52, v5\ns_mov_b64 exec, -1")
        a(f"s_cmp_eq_u32 s52, 3\ns_cbranch_scc1 {G}")
        spin_lds(f"v{vCNT}", "v5", "s52", 4, off=cnt)
        a(f"{G}:")
    def red63(op, *vs):
        for m in ("row_ror:8", "row_ror:4", "row_ror:2", "row_ror:1"):
            for v in vs: a(f"{op}_dpp {v}, {v}, {v} {m} row_mask:0xf bank_mask:0xf")
        for v in vs: a(f"{op}_dpp {v}, {v}, {v} row_bcast:15 row_mask:0xa bank_mask:0xf")
        for v in vs: a(f"{op}_dpp {v}, {v}, {v} row_bcast:31 row_mask:0xc bank_mask:0xf")
    def red_par(op, v, t):
        for m in ("row_ror:8", "row_ror:4", "row_ror:2"):
            a(f"{op}_dpp {v}, {v}, {v} {m} row_mask:0xf bank_mask:0xf")
        a(f"v_mov_b32 {t}, {v}\nv_permlane16_swap_b32 {t}, {v}\n{op} {v}, {v}, {t}")
        a(f"v_mov_b32 {t}, {v}\nv_permlane32_swap_b32 {t}, {v}\n{op} {v}, {v}, {t}")
    def rnd2(x, y, t):
        a(f"v_cvt_pk_bf16_f32 {t}, {x}, {y}\nv_lshlrev_b32 {x}, 16, {t}\nv_and_b32 {y}, 0xffff0000, {t}")
    def rnd1(x):
        a(f"v_cvt_pk_bf16_f32 {x}, {x}, {x}\nv_and_b32 {x}, 0xffff0000, {x}")
    def tr4(*xs):
        for x in xs: a(f"v_permlane32_swap_b32 v{x}, v{x+1}\nv_permlane32_swap_b32 v{x+2}, v{x+3}")
        for x in xs: a(f"v_add_f32 v{x}, v{x}, v{x+1}\nv_add_f32 v{x+2}, v{x+2}, v{x+3}")
        for x in xs: a(f"v_permlane16_swap_b32 v{x}, v{x+2}")
        for x in xs: a(f"v_add_f32 v{x}, v{x}, v{x+2}")
    def ln_scale(mean, var, t):
        rnd2(mean, var, t)
        a(f"v_add_f32 {var}, {fhex(1e-5)}, {var}"); rnd1(var)
        a(f"v_sqrt_f32 {var}, {var}"); rnd1(var)
        a(f"v_rcp_f32 {var}, {var}")
    def retry(L):
        a(f"s_sub_u32 {sTO}, {sTO}, 1\ns_cbranch_scc1 L_end\ns_branch {L}")
    def pk(d, x, y): a(f"v_pk_add_f32 v[{d}:{d+1}], v[{x}:{x+1}], v[{y}:{y+1}]")
    def sum4(d, srcs):
        pk(d, srcs[0], srcs[1]); pk(d+2, srcs[0]+2, srcs[1]+2)
        for x in srcs[2:]: pk(d, d, x); pk(d+2, d+2, x+2)
    def poison_check(first, n, sums, L, OK):
        pk(4, sums[0], sums[0]+2)
        for x in sums[1:]: pk(4, 4, x); pk(4, 4, x+2)
        a(f"v_cmp_u_f32 vcc, v4, v5\ns_cbranch_vccz {OK}")
        if fastfail:
            a(f"s_mov_b64 exec, vcc\ns_sub_u32 {sTO}, {sTO}, 1\ns_cbranch_scc1 L_end\ns_and_b32 s52, {sTO}, 63\ns_cbranch_scc1 {L}")
        a(f"v_max_u32 v4, v{first}, v{first+1}")
        for i in range(2, n, 2): a(f"v_max3_u32 v4, v4, v{first+i}, v{first+i+1}")
        a(f"v_cmp_eq_u32 vcc, -1, v4\ns_cbranch_vccz {OK}\ns_mov_b64 exec, vcc")
        retry(L)
        a(f"{OK}:\ns_mov_b64 exec, -1")
    def next_unit():
        a(f"""s_add_u32 s58, s58, 4
        s_add_u32 s59, s59, {4*UNIT}
        s_cmp_ge_u32 s59, {RING}
        s_cselect_b32 s52, {RING}, 0
        s_sub_u32 s59, s59, s52""")
    def wait_unit():
        a("s_add_u32 s61, s58, 1")
        spin_lds(f"v{vLND}", "v4", "s52", "s61", 'w3' if sleep3 else sleep)
        if levels: a("s_mov_b32 s63, s52")
    def progress():
        if not levels: return
        assert not lvl2
        X0, X1 = a.label("pg"), a.label("pgx")
        G = vPG
        if pgper > 1: a(f"s_and_b32 s52, s60, {pgper-1}\ns_cbranch_scc1 {X1}")
        a(f"""s_lshr_b32 s52, {5 if pg2 else pubm}, s3
        s_bitcmp0_b32 s52, 0
        s_cbranch_scc1 {X0}
        s_add_u32 s52, s63, s97
        v_add_u32 v5, s52, v{vTAG}
        s_bfm_b64 exec, {tfull or 1}, 0
        buffer_store_dword v5, v{vPF2 if tfull else 7}, {WS}, s50 offen {pgstf}
        s_mov_b64 exec, -1
        {'' if (pubm >> pgw) & 1 else f's_branch {X1}'}
        {X0}:""")
        if not pg2: a(f"s_cmp_lg_u32 s3, {pgw}\ns_cbranch_scc1 {X1}")
        if tab:
            if tab == "atomic": ld = f"v_mov_b32 v{G}, 0\ns_bfm_b64 exec, 32, 0\nbuffer_atomic_or v{G}, v{vPA}, {WS}, s48 offen sc0\ns_mov_b64 exec, -1"
            else: ld = f"s_bfm_b64 exec, 32, 0\nbuffer_load_dword v{G}, v{vPA}, {WS}, s48 offen {tab}\ns_mov_b64 exec, -1"
            if pgimm: a(ld)
            a(f"s_waitcnt vmcnt(0)\nv_sub_u32 v5, v{G}, v{vTAG}")
            if not pgimm: a(ld)
            a(f"""v_readlane_b32 s52, v5, s55
            s_bfm_b64 exec, 32, 0
            v_cmp_gt_u32 vcc, 0x200, v5
            s_mov_b64 exec, -1
            v_subrev_u32 v5, s52, v5
            s_bcnt1_i32_b64 s61, vcc
            s_cmp_ge_u32 s52, 0x200
            s_cbranch_scc1 {X1}
            v_cndmask_b32 v5, v7, v5, vcc""")
            red63("v_add_u32", "v5")
        else:
            ld = f"v_lshlrev_b32 v4, 4, v1\nbuffer_load_dwordx4 v[{G}:{G+3}], v4, {WS}, s48 offen sc1"
            if pgimm: a(ld)
            a("s_waitcnt vmcnt(0)")
            for r in range(4): a(f"v_sub_u32 v{8+r}, v{G+r}, v{vTAG}")
            if not pgimm: a(ld)
            a(f"""v_cndmask_b32 v4, v8, v9, s[98:99]
            v_cndmask_b32 v5, v10, v11, s[98:99]
            v_cndmask_b32 v4, v4, v5, s[100:101]
            s_lshr_b32 s52, s2, 2
            v_readlane_b32 s52, v4, s52
            v_mov_b32 v5, 0
            s_mov_b32 s61, 0
            s_cmp_ge_u32 s52, 0x200
            s_cbranch_scc1 {X1}""")
            for r in range(4):
                a(f"""v_cmp_gt_u32 vcc, 0x200, v{8+r}
                v_subrev_u32 v{8+r}, s52, v{8+r}
                s_bcnt1_i32_b64 s96, vcc
                v_cndmask_b32 v{8+r}, v7, v{8+r}, vcc
                s_add_u32 s61, s61, s96
                v_add_u32 v5, v5, v{8+r}""")
            red63("v_add_u32", "v5")
        a(f"""v_readlane_b32 s96, v5, 63
        s_mov_b32 s53, {len(levels)//2 + 1}
        s_lshl_b32 s96, s96, 6""")
        if pgoff: a(f"s_mul_i32 s52, s61, {int(pgoff*64)}\ns_add_i32 s96, s96, s52")
        for k, t in enumerate(thr):
            a(f"""s_mul_i32 s52, s61, {int(t*64)}
            s_cmp_gt_i32 s96, s52
            s_cselect_b32 s53, {len(levels)//2 + 2 + k}, s53
            s_sub_i32 s52, 0, s52
            s_cmp_lt_i32 s96, s52
            s_cselect_b32 s53, {len(levels)//2 - k}, s53""")
        a(f"v_mov_b32 v5, s53")
        one(f"ds_write_b32 v{vCNT}, v5 offset:{C_LVL}")
        a(f"{X1}:")
    def notice(base_expr, lanes, stride):
        a(base_expr)
        if lanes == 1:
            one(f"buffer_store_dword v{vTAG}, v7, {WS}, s53 offen sc0 sc1")
        else:
            a(f"v_mul_u32_u24 v5, {stride}, v1\ns_bfm_b64 exec, {lanes}, 0\nbuffer_store_dword v{vTAG}, v5, {WS}, s53 offen sc0 sc1\ns_mov_b64 exec, -1")
    def notice_load(n, sreg):
        a(f"v_lshlrev_b32 v5, 7, v1\ns_bfm_b64 exec, {n}, 0\nbuffer_load_dword v{vSA}, v5, {WS}, {sreg} offen sc0 sc1\ns_mov_b64 exec, -1")
    def notice_wait(n, sreg, issued, delay):
        L, C, D = a.label("nw"), a.label("nc"), a.label("nd")
        a(f"v_lshlrev_b32 v{vSA+1}, 7, v1\ns_bfm_b64 exec, {n}, 0")
        if issued: a(f"s_branch {C}")
        a(f"""{L}:
        buffer_load_dword v{vSA}, v{vSA+1}, {WS}, {sreg} offen sc0 sc1
        {C}:
        s_waitcnt vmcnt(0)
        v_cmp_ne_u32 vcc, v{vSA}, v{vTAG}
        s_cbranch_vccz {D}
        s_mov_b64 exec, vcc""")
        retry(L)
        a(f"{D}:\ns_mov_b64 exec, -1")
        if delay: a(f"s_sleep {delay}")
    def k_read(F):
        for i in range(4): a(f"v_add_u32 v{vA+i}, s59, v{vAK+i}")
        for T in range(2):
            for i in range(4): a(f"ds_read_b128 v[{F+16*T+4*i}:{F+16*T+4*i+3}], v{vA+i} offset:{4096*T}")
        a(f"s_add_u32 s60, s60, 1\nv_mov_b32 v4, s60\ns_waitcnt lgkmcnt(0)\nds_write_b32 v{vCON}, v4")
    def k_mfma(F, between=None):
        for i in range(4):
            for T in range(2):
                c = "0" if i == 0 else f"v[{vD+4*T}:{vD+4*T+3}]"
                a(f"v_mfma_f32_16x16x32_bf16 v[{vD+4*T}:{vD+4*T+3}], v[{F+16*T+4*i}:{F+16*T+4*i+3}], v[{vQ+4*i}:{vQ+4*i+3}], {c}")
        if between: between()
        for r in range(8): a(f"v_cndmask_b32 v{vSA+r}, v{vSA+r}, v{vD+r}, s[46:47]")
        a("s_lshl_b64 s[46:47], s[46:47], 2")
    vB = vO + 4
    def v_addr():
        a(f"v_add_u32 v{vA}, s59, v{vAV}")
        for b in range(1, 8): a(f"v_xor_b32 v{vA+b}, {hex(32*b)}, v{vA}")
    def v_read(F):
        for b in range(8):
            for T in range(2): a(f"ds_read_b64_tr_b16 v[{F+4*b+2*T}:{F+4*b+2*T+1}], v{vA+b} offset:{4096*T}")
        a(f"s_add_u32 s60, s60, 1\nv_mov_b32 v4, s60")
    def v_mfma(F, waits):
        for b in range(8):
            if waits: a(f"s_waitcnt lgkmcnt({waits-2*b})")
            a(f"v_mfma_f32_16x16x32_bf16 v[{vO}:{vO+3}], v[{F+4*b}:{F+4*b+3}], v[{vB+4*b}:{vB+4*b+3}], v[{vO}:{vO+3}]")
    def p_spread():
        for r in range(4): a(f"v_cndmask_b32 v{vB+r}, v7, v{vP+r}, s[46:47]")
        for b in range(1, 8):
            for r in range(4): a(f"v_mov_b32_dpp v{vB+4*b+r}, v{vB+r} row_shr:{2*b} row_mask:0xf bank_mask:0xf bound_ctrl:0")
    def p_shift():
        for r in range(4): a(f"v_mov_b32_dpp v{vP+r}, v{vP+r} row_shl:2 row_mask:0xf bank_mask:0xf")
    def make_p():
        for r in range(8): a(f"v_sub_f32 v{vSA+r}, v{vS+r}, v{vM}")
        for r in range(8): a(f"v_mul_f32 v{vSA+r}, {LOG2E}, v{vSA+r}")
        for r in range(8): a(f"v_exp_f32 v{vSA+r}, v{vSA+r}")
        for r in range(8): a(f"v_mul_f32 v{vSA+r}, v{vSA+r}, v{vL}")
        for r in range(4): a(f"v_cvt_pk_bf16_f32 v{vP+r}, v{vSA+2*r}, v{vSA+2*r+1}")
        for r in range(24): a(f"v_mov_b32 v{vS+r}, v{vS+8+r}")

    WQ, X4, X = 106, 124, 130
    a(f"""L_cons:
    s_sub_u32 s3, s3, 1
    s_lshr_b32 {sHK}, s1, 4
    v_lshlrev_b32 v4, 4, v1
    v_lshlrev_b32 v5, 1, v1
    v_lshlrev_b32 v6, 13, v2
    v_lshl_add_u32 v6, v3, 3, v6
    s_and_b32 s52, s1, 3
    s_mul_i32 s58, s52, 144
    s_mul_i32 s53, s3, 36
    s_add_u32 s58, s58, s53
    s_lshl_b32 s52, s58, 13
    s_lshr_b32 s53, s1, 2
    s_lshl_b32 s53, s53, 7
    s_add_u32 s59, s52, s53
    s_sub_u32 s60, {576*8192}, s59
    v_mov_b32 v7, 0
    s_waitcnt lgkmcnt(0)""")
    srd(32, 4, 5, "1152")
    srd(36, 10, 11, "0" if nowq else "s60", "s59")
    a(f"""buffer_load_dwordx4 v[{X4}:{X4+3}], v4, {XS}, 0 offen
    buffer_load_ushort v{X4+4}, v5, {XS}, 0 offen offset:1024
    s_mov_b32 s52, 0""")
    for k in range(9):
        a(f"buffer_load_dwordx2 v[{WQ+2*k}:{WQ+1+2*k}], v6, {WQS}, s52 offen {polQ}")
        if k < 8: a("s_add_u32 s52, s52, 32768")
    srd(28, 26, 27, hex(WS_SZ))
    a(f"buffer_load_dword v{vTAG}, v7, {WS}, 0 offen offset:{O_E} sc0 sc1")
    roles()
    RST = -(-(O_P3 + 144*2304 - O_OP) // 256 // 128) * 128
    assert O_P2 + 8 * P2C == O_P3 and RST <= 3072 and O_OP + 256 * RST <= O_PG
    a(f"""v_mov_b32 v12, -1
    v_mov_b32 v13, -1
    v_mov_b32 v14, -1
    v_mov_b32 v15, -1
    s_lshl_b32 s53, s3, 10
    v_add_u32 v9, s53, v4
    s_mul_i32 s52, s2, {RST}
    s_add_u32 s52, s52, {O_OP}
    v_cmp_gt_u32 vcc, {RST if poison else 0}, v9
    v_add_u32 v9, s52, v9
    v_mov_b32 v8, {OOB}
    v_cndmask_b32 v9, v8, v9, vcc
    buffer_store_dwordx4 v[12:15], v9, {WS}, 0 offen sc0 sc1""")
    LZ = a.label("nz")
    a(f"""v_lshlrev_b32 v{vLND}, 2, v1
    v_add_u32 v{vLND}, {L_LANDED}, v{vLND}
    s_cmp_lg_u32 s3, 0
    s_cbranch_scc1 {LZ}""")
    for i in range(6): a(f"ds_write_b32 v{vLND}, v7 offset:{256*i}")
    a(f"s_waitcnt lgkmcnt(0)\n{LZ}:\ns_barrier")
    srd(40, 22, 23, "1152")
    a(f"""s_lshl_b32 s52, s3, 8
    s_add_u32 s52, s52, 256
    v_add_u32 v{vCON}, s52, v{vLND}
    v_mov_b32 v{vCNT}, {L_CNT}
    v_mov_b32 v{vONE}, 1
    v_and_b32 v8, 1, v2
    v_lshlrev_b32 v8, 1, v8
    v_lshrrev_b32 v9, 1, v2
    v_or_b32 v8, v8, v9
    v_lshl_add_u32 v{vE}, v3, 2, v8
    s_mov_b32 s44, 0x000f000f
    s_mov_b32 s45, 0x000f000f
    v_and_b32 v8, 7, v3
    v_lshlrev_b32 v8, 1, v8
    v_xor_b32 v8, v8, v2
    v_lshlrev_b32 v8, 4, v8
    v_lshl_add_u32 v{vAK}, v3, 8, v8
    v_xor_b32 v{vAK+1}, 64, v{vAK}
    v_xor_b32 v{vAK+2}, 0x80, v{vAK}
    v_xor_b32 v{vAK+3}, 0xc0, v{vAK}
    v_lshrrev_b32 v8, 2, v1
    v_and_b32 v9, 7, v8
    v_lshlrev_b32 v9, 5, v9
    v_lshl_add_u32 v9, v8, 8, v9
    v_and_b32 v8, 3, v1
    v_lshl_add_u32 v{vAV}, v8, 3, v9""")
    a("s_waitcnt vmcnt(11)")
    stamp(1)
    for i in range(4):
        a(f"v_lshlrev_b32 v{X+2*i}, 16, v{X4+i}\nv_and_b32 v{X+2*i+1}, 0xffff0000, v{X4+i}")
    a(f"v_lshlrev_b32 v{X+8}, 16, v{X4+4}")
    pk(8, X, X+2); pk(10, X+4, X+6); pk(8, 8, 10)
    a(f"v_add_f32 v8, v8, v9\nv_add_f32 v8, v8, v{X+8}")
    red63("v_add_f32", "v8")
    a(f"v_readlane_b32 s52, v8, 63\nv_mov_b32 v8, {fhex(1/576)}\nv_mul_f32 v8, s52, v8")
    a(f"v_sub_f32 v10, v{X}, v8\nv_mul_f32 v9, v10, v10")
    for i in range(1, 9): a(f"v_sub_f32 v10, v{X+i}, v8\nv_fmac_f32 v9, v10, v10")
    red63("v_add_f32", "v9")
    a(f"v_readlane_b32 s52, v9, 63\nv_mov_b32 v9, {fhex(1/576)}\nv_mul_f32 v9, s52, v9")
    ln_scale("v8", "v9", "v10")
    for i in range(9): a(f"v_sub_f32 v{X+i}, v{X+i}, v8")
    for i in range(0, 8, 2): rnd2(f"v{X+i}", f"v{X+i+1}", "v10")
    rnd1(f"v{X+8}")
    for i in range(9): a(f"v_mul_f32 v{X+i}, v{X+i}, v9")
    for i in range(0, 8, 2): rnd2(f"v{X+i}", f"v{X+i+1}", "v10")
    rnd1(f"v{X+8}")
    a(f"""v_lshlrev_b32 v8, 5, v1
    v_add_u32 v8, {L_XN}, v8
    ds_write_b128 v8, v[{X}:{X+3}]
    ds_write_b128 v8, v[{X+4}:{X+7}] offset:16
    v_lshlrev_b32 v8, 2, v1
    v_add_u32 v8, {L_XN+2048}, v8
    ds_write_b32 v8, v{X+8}
    v_add_u32 v8, s58, v2
    v_lshlrev_b32 v8, 2, v8
    v_add_u32 v8, {L_XN}, v8
    s_waitcnt lgkmcnt(0)""")
    for k in range(9): a(f"ds_read_b32 v{X+k}, v8 offset:{16*k}")
    for i in range(4): a(f"v_mov_b32 v{12+i}, 0")
    a(f"""s_lshl_b32 s52, s3, 8
    s_add_u32 s52, s52, {L_QRED}
    v_lshl_add_u32 v6, v{vE}, 2, s52
    s_waitcnt lgkmcnt(0)""")
    for k in range(9):
        w = WQ + 2*k
        a(f"""s_waitcnt vmcnt({10-k})
        v_lshlrev_b32 v8, 16, v{w}
        v_and_b32 v9, 0xffff0000, v{w}
        v_lshlrev_b32 v10, 16, v{w+1}
        v_and_b32 v11, 0xffff0000, v{w+1}
        v_fmac_f32 v12, v8, v{X+k}
        v_fmac_f32 v13, v9, v{X+k}
        v_fmac_f32 v14, v10, v{X+k}
        v_fmac_f32 v15, v11, v{X+k}""")
    tr4(12)
    a(f"""ds_write_b32 v6, v12
    s_waitcnt vmcnt(1)
    v_add_u32 v{vTAG}, {hex(TAGC)}, v{vTAG}""")
    NL = a.label("qnl")
    arrive_last(C_Q, NL)
    a(f"""v_lshlrev_b32 v8, 2, v1
    v_add_u32 v8, {L_QRED}, v8
    ds_read_b32 v12, v8
    ds_read_b32 v13, v8 offset:256
    ds_read_b32 v14, v8 offset:512
    ds_read_b32 v15, v8 offset:768
    s_lshl_b32 s52, s1, 9
    s_add_u32 s52, s52, {O_QX}
    v_lshlrev_b32 v8, 3, v1
    s_waitcnt lgkmcnt(0)
    v_add_f32 v12, v12, v13
    v_add_f32 v14, v14, v15
    v_add_f32 v12, v12, v14
    v_mov_b32 v13, v{vTAG}
    {'s_nop 0' if noqs else f'buffer_store_dwordx2 v[12:13], v8, {WS}, s52 offen sc0 sc1'}""")
    a(f"{NL}:")
    stamp(2)
    a(f"""s_mov_b32 s58, s3
    s_lshl_b32 s59, s3, 13
    s_mov_b32 s60, 0
    s_mov_b32 s46, 0x00030003
    s_mov_b32 s47, 0x00030003
    v_mov_b32 v{vM}, {fhex(-3.0e38)}
    v_mov_b32 v{vL}, 0""")
    if levels:
        a(f"""s_getreg_b32 s49, hwreg(HW_REG_XCC_ID, 0, 3)
        s_lshl_b32 s48, s49, 12
        s_add_u32 s48, s48, {O_PG}
        s_lshl_b32 s50, {'s55' if tab else 's2'}, {tsh}
        s_add_u32 s50, s50, s48
        v_lshlrev_b32 v{vPA}, {tsh}, v1
        v_lshlrev_b32 v{vPF2}, 2, v1
        s_cmp_lt_u32 s2, {ID_O}
        s_cselect_b32 s97, {8 - obias}, 8
        s_cmp_ge_u32 s2, {ID_F}
        s_cselect_b32 s97, {8 - fbias}, s97
        s_bitcmp1_b32 s2, 0
        s_cselect_b64 s[98:99], -1, 0
        s_bitcmp1_b32 s2, 1
        s_cselect_b64 s[100:101], -1, 0""")
        for r in range(6): a(f"v_add_u32 v{vPG+r}, 0x800, v{vTAG}")
    for F in PRE:
        wait_unit(); k_read(F); next_unit()
        if pgpre & 1: progress()
    LQ, LQD = a.label("qg"), a.label("qgd")
    a(f"""s_lshl_b32 s52, {sHK}, 13
    s_lshl_b32 s53, s3, 11
    s_add_u32 s61, s52, s53
    s_add_u32 s61, s61, {O_QX}
    v_lshlrev_b32 v8, 3, v1""")
    LQW = a.label("qw")
    if q1 is not None:
        for k in range(4): a(f"buffer_load_dwordx2 v[{WQ+2*k}:{WQ+1+2*k}], v8, {WS}, s61 offen offset:{512*k} {q1}")
        a(f"s_branch {LQW}")
    a(f"{LQ}:")
    if noqg: a(f"s_branch {LQD}")
    for k in range(4): a(f"buffer_load_dwordx2 v[{WQ+2*k}:{WQ+1+2*k}], v8, {WS}, s61 offen offset:{512*k} sc0 sc1")
    a(f"""{LQW}:
    s_waitcnt vmcnt(0)
    v_xor_b32 v12, v{WQ+1}, v{vTAG}
    v_xor_b32 v13, v{WQ+3}, v{vTAG}
    v_xor_b32 v14, v{WQ+5}, v{vTAG}
    v_xor_b32 v15, v{WQ+7}, v{vTAG}
    v_or3_b32 v12, v12, v13, v14
    v_or_b32 v12, v12, v15
    v_cmp_ne_u32 vcc, 0, v12
    s_cbranch_vccz {LQD}""")
    retry(LQ)
    a(f"""{LQD}:
    v_add_f32 v12, v{WQ}, v{WQ+2}
    v_add_f32 v13, v{WQ+4}, v{WQ+6}
    v_add_f32 v12, v12, v13
    v_cvt_pk_bf16_f32 v12, v12, v12
    s_lshl_b32 s52, s3, 7
    s_add_u32 s52, s52, {L_Q}
    v_lshl_add_u32 v8, v1, 1, s52
    ds_write_b16 v8, v12
    v_and_b32 v8, 1, v3
    v_lshlrev_b32 v8, 8, v8
    v_lshl_add_u32 v8, v2, 4, v8
    v_add_u32 v8, {L_Q}, v8""")
    barrier(C_Q2)
    for i in range(4): a(f"ds_read_b128 v[{vQ+4*i}:{vQ+4*i+3}], v8 offset:{64*i}")
    stamp(3)
    a(f"""s_mul_i32 s52, s3, 144
    v_add_u32 v8, s52, v{vE}
    v_lshlrev_b32 v8, 1, v8
    v_mov_b32 v9, {OOB}
    v_cndmask_b32 v10, v9, v8, s[44:45]
    buffer_load_ushort v{vXR}, v8, {XS}, 0 offen
    buffer_load_ushort v{vXR+1}, v8, {XS}, 0 offen offset:128
    buffer_load_ushort v{vXR+2}, v10, {XS}, 0 offen offset:256""")
    a(f"""s_sub_u32 s52, s2, {ID_O}
    s_lshl_b32 s52, s52, 4
    v_and_b32 v8, 15, v{vE}
    v_add_u32 v8, s52, v8
    v_lshlrev_b32 v8, 1, v8
    v_min_u32 v{vXO}, {OOB}, v8
    buffer_load_ushort v{vXF}, v{vXO}, {XS}, 0 offen
    s_waitcnt lgkmcnt(0)""")
    for F in PRE: k_mfma(F)
    LK, LKE = a.label("kl"), a.label("ke")
    a(f"{LK}:")
    wait_unit(); k_read(vF); k_mfma(vF, next_unit); progress()
    a(f"""s_and_b32 s52, s60, 7
    s_cbranch_scc1 {LK}
    s_mov_b32 s46, 0x00030003
    s_mov_b32 s47, 0x00030003""")
    for r in range(24): a(f"v_mov_b32 v{vS+r}, v{vS+8+r}")
    for r in range(0, 8, 2): rnd2(f"v{vSA+r}", f"v{vSA+r+1}", "v4")
    N = vS + 24
    for r in range(8): a(f"v_mul_f32 v{N+r}, {fhex(128**-0.5)}, v{vSA+r}")
    for r in range(0, 8, 2): rnd2(f"v{N+r}", f"v{N+r+1}", "v4")
    a(f"v_max3_f32 v8, v{vM}, v{N}, v{N+1}")
    for r in range(2, 8, 2): a(f"v_max3_f32 v8, v8, v{N+r}, v{N+r+1}")
    a(f"v_sub_f32 v9, v{vM}, v8\nv_mov_b32 v{vM}, v8")
    for r in range(8): a(f"v_sub_f32 v{vSA+r}, v{N+r}, v8")
    a(f"v_mul_f32 v9, {LOG2E}, v9")
    for r in range(8): a(f"v_mul_f32 v{vSA+r}, {LOG2E}, v{vSA+r}")
    a("v_exp_f32 v9, v9")
    for r in range(8): a(f"v_exp_f32 v{vSA+r}, v{vSA+r}")
    a(f"v_mul_f32 v{vL}, v{vL}, v9")
    pk(vSA, vSA, vSA+2); pk(vSA+4, vSA+4, vSA+6); pk(vSA, vSA, vSA+4)
    a(f"v_add_f32 v{vL}, v{vL}, v{vSA}\nv_add_f32 v{vL}, v{vL}, v{vSA+1}")
    a(f"s_cmp_lg_u32 s60, 32\ns_cbranch_scc1 {LK}")
    stamp(4)
    a(f"v_mov_b32 v8, v{vM}")
    red_par("v_max_f32", "v8", "v4")
    a(f"""v_sub_f32 v9, v{vM}, v8
    v_mul_f32 v9, {LOG2E}, v9
    v_exp_f32 v9, v9
    s_lshl_b32 s53, s3, 4
    s_add_u32 s53, s53, {L_ST}
    v_mul_f32 v9, v9, v{vL}""")
    red_par("v_add_f32", "v9", "v4")
    LM, LMD, NL = a.label("ml"), a.label("mld"), a.label("mnl")
    a(f"""v_lshlrev_b32 v6, 3, v1
    v_add_u32 v4, s53, v6
    s_mov_b64 exec, 3
    ds_write_b64 v4, v[8:9]""")
    arrive_last(C_R, NL)
    a(f"""v_add_u32 v4, {L_ST}, v6
    s_mov_b64 exec, 3""")
    for w in range(4): a(f"ds_read_b64 v[{vSA+2*w}:{vSA+2*w+1}], v4 offset:{16*w}")
    a(f"""s_lshl_b32 s53, s1, 5
    s_add_u32 s53, s53, {O_ML}
    v_lshlrev_b32 v6, 4, v1
    v_mov_b32 v14, v{vTAG}
    v_mov_b32 v15, v{vTAG}
    s_waitcnt lgkmcnt(0)
    v_max_f32 v12, v{vSA}, v{vSA+2}
    v_max3_f32 v12, v12, v{vSA+4}, v{vSA+6}""")
    for w in range(4): a(f"v_sub_f32 v{vSA+2*w}, v{vSA+2*w}, v12")
    for w in range(4): a(f"v_mul_f32 v{vSA+2*w}, {LOG2E}, v{vSA+2*w}")
    for w in range(4): a(f"v_exp_f32 v{vSA+2*w}, v{vSA+2*w}")
    a(f"v_mul_f32 v13, v{vSA}, v{vSA+1}")
    for w in range(1, 4): a(f"v_fmac_f32 v13, v{vSA+2*w}, v{vSA+2*w+1}")
    a(f"""buffer_store_dwordx4 v[12:15], v6, {WS}, s53 offen sc0 sc1
    s_mov_b64 exec, -1
    {NL}:""")
    for r in range(4): a(f"v_mov_b32 v{vO+r}, 0")
    per = 1152 // pfg
    npf = (pf_rows * per + 63) // 64
    a(f"""s_lshr_b32 s52, s2, 3
    s_mul_i32 s52, s52, 18
    s_lshr_b32 s53, s3, 1
    s_mul_i32 s53, s53, 9
    s_add_u32 s52, s52, s53
    s_mul_i32 s52, s52, 9216
    s_and_b32 s53, s2, 7
    s_mul_i32 s53, s53, 1152
    s_add_u32 s52, s52, s53
    s_bitcmp1_b32 s3, 0
    s_cselect_b32 s34, s18, s16
    s_cselect_b32 s35, s19, s17""")
    srd(32, 34, 35, str((pf_rows-1)*9216 + 1152), "s52")
    for F in PRE:
        v_addr(); wait_unit(); v_read(F); a(f"s_waitcnt lgkmcnt(0)\nds_write_b32 v{vCON}, v4"); next_unit()
        if pgpre & 2: progress()
    a(f"""v_and_b32 v6, 31, v1
    v_lshlrev_b32 v6, 4, v6
    s_lshl_b32 s53, {sHK}, 9
    s_add_u32 s53, s53, {O_ML}
    {LM}:
    buffer_load_dwordx4 v[12:15], v6, {WS}, s53 offen sc0 sc1
    s_waitcnt vmcnt(0)
    v_cmp_ne_u32 vcc, v14, v{vTAG}
    s_cbranch_vccz {LMD}
    s_mov_b64 exec, vcc""")
    retry(LM)
    a(f"{LMD}:\ns_mov_b64 exec, -1")
    stamp(5)
    a(f"v_mov_b32 v{vM}, v12")
    red_par("v_max_f32", f"v{vM}", "v4")
    a(f"""v_sub_f32 v12, v12, v{vM}
    v_mul_f32 v12, {LOG2E}, v12
    v_exp_f32 v12, v12
    v_mul_f32 v13, 0.5, v13
    v_mul_f32 v9, v13, v12""")
    red_par("v_add_f32", "v9", "v4")
    a(f"""v_rcp_f32 v10, v9
    v_fma_f32 v11, -v9, v10, 1.0
    v_fma_f32 v{vL}, v11, v10, v10""")
    stamp(6)
    LVG, LV, LVE, LNS = a.label("vg"), a.label("vl"), a.label("ve"), a.label("ns")
    a(f"""s_mov_b32 s46, 0x00030003
    s_mov_b32 s47, 0x00030003
    v_and_b32 v8, 1, v3
    v_lshlrev_b32 v8, 9, v8
    v_lshrrev_b32 v9, 1, v3
    v_lshl_add_u32 v8, v9, 6, v8
    v_lshl_add_u32 v{vQ+14}, v2, 4, v8
    v_add_u32 v8, {L_ORED}, v{vQ+14}""")
    for k in range(4):
        a(f"s_xor_b32 s52, s3, {k}\ns_lshl_b32 s52, s52, 10\nv_add_u32 v{vQ+10+k}, s52, v8")
    make_p()
    for F in PRE: p_spread(); v_mfma(F, 0); p_shift()
    a(f"s_branch {LV}\n{LVG}:")
    LR, LRD, LRX, LRY = a.label("rdy"), a.label("rdyd"), a.label("rdyx"), a.label("rdyy")
    a(f"""s_cmp_lg_u32 s60, 48
    s_cbranch_scc1 {LRX}
    s_cmp_lg_u32 s3, 1
    s_cbranch_scc1 {LRY}
    v_lshlrev_b32 v4, 5, v1
    s_mov_b32 s52, {O_ML}
    s_mov_b32 s53, {O_ML + 4096}
    {LR}:
    buffer_load_dword v12, v4, {WS}, s52 offen offset:8 sc0 sc1
    buffer_load_dword v13, v4, {WS}, s52 offen offset:2056 sc0 sc1
    buffer_load_dword v14, v4, {WS}, s53 offen offset:8 sc0 sc1
    buffer_load_dword v15, v4, {WS}, s53 offen offset:2056 sc0 sc1
    s_waitcnt vmcnt(0)
    v_xor_b32 v12, v12, v{vTAG}
    v_xor_b32 v13, v13, v{vTAG}
    v_xor_b32 v14, v14, v{vTAG}
    v_xor_b32 v15, v15, v{vTAG}
    v_or3_b32 v12, v12, v13, v14
    v_or_b32 v12, v12, v15
    v_cmp_ne_u32 vcc, 0, v12
    s_cbranch_vccz {LRD}""")
    retry(LR)
    a(f"{LRD}:")
    one(f"ds_write_b32 v{vCNT}, v{vONE} offset:{C_RD}")
    a(f"""s_cmp_lg_u32 s2, 0
    s_cbranch_scc1 {LRY}
    v_subrev_u32 v12, {hex(TAGC-0x1000)}, v{vTAG}""")
    one(f"buffer_store_dword v12, v7, {WS}, 0 offen offset:{O_E} sc0 sc1")
    a(f"s_branch {LRY}\n{LRX}:\ns_cmp_lg_u32 s60, 56\ns_cbranch_scc1 {LRY}")
    spin_lds(f"v{vCNT}", "v5", "s52", 1, 1, off=C_RD)
    a(f"{LRY}:")
    make_p()
    a(f"{LV}:")
    p_spread(); v_addr()
    a(f"s_cmp_eq_u32 s60, 63\ns_cbranch_scc1 {LVE}")
    wait_unit(); v_read(vF); v_mfma(vF, 14)
    a(f"ds_write_b32 v{vCON}, v4")
    next_unit(); p_shift(); progress()
    if tk:
        X = a.label("tk")
        a(f"s_cmp_lg_u32 s60, {tk}\ns_cbranch_scc1 {X}\ns_cmp_lg_u32 s3, 1\ns_cbranch_scc1 {X}")
        srd(36, 24, 25, "256")
        a(f"v_mov_b32 v{vQ+12}, 1")
        one(f"buffer_atomic_add v{vQ+12}, v7, s[36:39], 0 offen sc0 sc1")
        a(f"{X}:")
    def prefetch():
        for i in range(npf):
            a(f"""v_add_u32 v8, {64*i}, v1
            v_mul_u32_u24 v9, {-(-65536 // per)}, v8
            v_lshrrev_b32 v9, 16, v9
            v_mul_u32_u24 v10, {per}, v9
            v_sub_u32 v10, v8, v10
            v_mul_u32_u24 v9, 9216, v9
            v_mul_u32_u24 v10, {pfg}, v10
            v_add_u32 v9, v9, v10
            buffer_load_dword v{vQ}, v9, s[32:35], 0 offen""")
    if pf_at and pf_at < 64:
        a(f"s_cmp_lg_u32 s60, {pf_at}\ns_cbranch_scc1 {LNS}")
        prefetch()
    a(f"""{LNS}:
    s_and_b32 s52, s60, 7
    s_cbranch_scc1 {LV}
    s_branch {LVG}
    {LVE}:""")
    NX = a.label("ox")
    a(f"""s_lshl_b32 s96, s1, 10
    s_add_u32 s96, s96, {O_OP}""")
    wait_unit(); v_read(vF); v_mfma(vF, 14)
    stamp(7)
    a(f"""ds_write_b32 v{vCON}, v4
    ds_write_b128 v{vQ+10}, v[{vO}:{vO+3}]
    s_mov_b64 exec, 1
    ds_add_rtn_u32 v5, v{vCNT}, v{vONE} offset:{C_O}
    s_mov_b64 exec, -1""")
    for w in range(3): a(f"ds_read_b128 v[{vG+4*w}:{vG+4*w+3}], v{vQ+11+w}")
    a(f"""s_waitcnt lgkmcnt(3)
    v_readfirstlane_b32 s52, v5
    s_cmp_lg_u32 s52, 3
    s_waitcnt lgkmcnt(0)
    s_cbranch_scc1 {NX}""" if not diag else f"""s_waitcnt lgkmcnt(0)
    v_readfirstlane_b32 s52, v5
    s_cmp_lg_u32 s52, 3
    s_cbranch_scc1 {NX}""")
    pk(vG+4, vG+4, vG+8); pk(vG+6, vG+6, vG+10); pk(vG, vG, vO); pk(vG+2, vG+2, vO+2); pk(12, vG, vG+4); pk(14, vG+2, vG+6)
    for r in range(4): a(f"v_min_u32 v{12+r}, -2, v{12+r}")
    a(f"buffer_store_dwordx4 v[12:15], v{vQ+14}, {WS}, s96 offen sc0 sc1")
    if (holdS, holdF, holdO) != (None, None, None): one(f"ds_write_b32 v{vCNT}, v{vONE} offset:{C_OP}")
    a(f"{NX}:")
    stamp(8)
    LNO, LNF = a.label("noO"), a.label("noF")
    a(f"""s_cmp_ge_u32 s2, {ID_F}
    s_cbranch_scc1 {LNO}
    s_cmp_ge_u32 s2, {ID_O}
    s_cbranch_scc1 {LNF}""")
    AO, BO, GO, SO = 176, 106, 58, 90
    a(f"""v_lshlrev_b32 v10, 12, v2
    v_lshl_add_u32 v10, v3, 4, v10
    s_lshl_b32 s58, s54, 15
    s_lshr_b32 s52, s3, 1
    s_lshl_b32 s52, s52, 14
    s_add_u32 s58, s58, s52
    s_and_b32 s52, s3, 1
    s_lshl_b32 s52, s52, 9
    s_add_u32 s58, s58, s52
    s_add_u32 s58, s58, {O_OP}
    v_lshrrev_b32 v8, 2, v3
    v_lshl_add_u32 v8, v2, 3, v8
    v_lshlrev_b32 v8, 7, v8
    v_and_b32 v9, 3, v3
    v_lshl_add_u32 v8, v9, 3, v8
    v_lshrrev_b32 v9, 3, v3
    v_lshlrev_b32 v12, 1, v2
    v_and_b32 v12, 2, v12
    v_or_b32 v9, v9, v12
    v_xor_b32 v9, s3, v9
    v_lshl_add_u32 v8, v9, 5, v8
    v_add_u32 v8, {WO_L}, v8
    s_lshl_b32 s52, s3, 8
    s_add_u32 s52, s52, {L_OB}
    v_lshl_add_u32 v6, v{vE}, 1, s52
    v_lshlrev_b32 v9, 4, v2
    v_add_u32 v11, {L_OB}, v9
    v_mul_u32_u24 v12, {P2C}, v3
    v_add_u32 v9, v9, v12
    s_mov_b32 s50, 0x00ff00ff
    s_mov_b32 s51, 0x00ff00ff
    s_mul_i32 s59, s54, 2304
    s_lshl_b32 s53, s55, 8
    s_add_u32 s59, s59, s53
    s_lshl_b32 s53, s3, 6
    s_add_u32 s59, s59, s53
    s_add_u32 s59, s59, {O_P2}
    s_movk_i32 s61, 257""")
    L1, L1D, L1W = a.label("h1"), a.label("h1d"), a.label("h1w")
    def h1_loads():
        for hh in range(2):
            for k in range(4): a(f"buffer_load_dwordx4 v[{GO+16*hh+4*k}:{GO+16*hh+4*k+3}], v10, {WS}, s58 offen offset:{1024*k + 256*hh} sc0 sc1")
    def frags_if(mark, done, body):
        X = a.label("fx")
        a(f"""s_cmp_lg_u32 {done}, 0
        s_cbranch_scc1 {X}
        ds_read_b32 v4, v{vLND}
        s_waitcnt lgkmcnt(0)
        v_readfirstlane_b32 s52, v4
        s_cmp_lt_i32 s52, {mark}
        s_cbranch_scc1 {X}
        s_mov_b64 s[46:47], exec
        s_mov_b64 exec, -1""")
        body()
        a(f"s_mov_b64 exec, s[46:47]\ns_mov_b32 {done}, 1\n{X}:")
    def frags_must(mark, done, body):
        X = a.label("fm")
        a(f"s_cmp_lg_u32 {done}, 0\ns_cbranch_scc1 {X}\ns_movk_i32 s61, {mark}")
        spin_lds(f"v{vLND}", "v4", "s52", "s61")
        body()
        a(f"{X}:")
    def wo_frags():
        for s_ in range(16):
            for h in range(2):
                r = AO + 4*s_ + 2*h
                a(f"ds_read_b64_tr_b16 v[{r}:{r+1}], v8 offset:{4096*s_ + 512*h}")
    if hu:
        a(f"s_lshl_b32 s60, s54, 12\ns_add_u32 s60, s60, {O_H1}")
        spin_lds(f"v{vCNT}", "v4", "s52", 1, off=C_IS)
        notice_load(32, "s60")
        spin_lds(f"v{vLND}", "v4", "s52", "s61")
        wo_frags()
        notice_wait(32, "s60", True, d1)
        stamp(11)
    else:
        if e1:
            spin_lds(f"v{vCNT}", "v4", "s52", 1, off=C_IS)
            h1_loads()
        spin_lds(f"v{vLND}", "v4", "s52", "s61")
        stamp(11); cnt0()
        if not e1: h1_loads()
        wo_frags()
        a(f"s_branch {L1W}")
    a(f"{L1}:")
    h1_loads()
    a(f"{L1W}:")
    for hh in range(2):
        a(f"s_waitcnt vmcnt({4-4*hh})")
        sum4(SO + 4*hh, [GO + 16*hh + 4*k for k in range(4)])
    poison_check(GO, 32, [SO, SO+4], L1, L1D)
    stamp(9); cnt1(12)
    if loc2 == "h1":
        X = a.label("l2")
        a(f"""s_cmp_lg_u32 s3, 0
        s_cbranch_scc1 {X}
        s_getreg_b32 s52, hwreg(HW_REG_XCC_ID, 0, 3)
        s_lshl_b32 s52, s52, 7
        s_lshl_b32 s53, s55, 2
        s_add_u32 s52, s52, s53
        s_add_u32 s52, s52, {O_H2}
        s_mov_b64 exec, 1
        buffer_store_dword v{vTAG}, v7, {WS}, s52 offen {locst}
        s_mov_b64 exec, -1
        {X}:""")
    if hu:
        X = a.label("hu")
        a(f"s_or_b32 s52, s55, s3\ns_cbranch_scc1 {X}")
        notice(f"s_lshl_b32 s53, s54, 7\ns_add_u32 s53, s53, {O_H2}", 8, 1024)
        a(f"{X}:")
    tr4(SO, SO+4)
    a(f"""v_cvt_pk_bf16_f32 v12, v{SO}, v{SO+4}
    ds_write_b16 v6, v12
    ds_write_b16_d16_hi v6, v12 offset:128""")
    barrier(C_P, True)
    if opd == 'h1':
        a(f"""s_lshl_b32 s52, s55, 2
        s_add_u32 s52, s52, s3
        s_mul_i32 s52, s52, 18432
        s_mul_i32 s53, s54, {18*32*1152}
        s_add_u32 s52, s52, s53
        s_mov_b64 exec, -1""")
        srd(36, 20, 21, "18432", "s52")
        a("""v_lshlrev_b32 v98, 7, v1
        v_add_u32 v99, 0x2000, v98
        v_add_u32 v100, 0x4000, v98
        buffer_load_dword v101, v98, s[36:39], 0 offen
        buffer_load_dword v101, v99, s[36:39], 0 offen
        buffer_load_dword v101, v100, s[36:39], 0 offen""")
    for s_ in range(16): a(f"ds_read_b128 v[{BO+4*s_}:{BO+4*s_+3}], v11 offset:{64*s_}")
    for s_ in range(16):
        a(f"s_waitcnt lgkmcnt({15-s_})")
        d = 12 if s_ % 2 == 0 else SO
        c = "0" if s_ < 2 else f"v[{d}:{d+3}]"
        a(f"v_mfma_f32_16x16x32_bf16 v[{d}:{d+3}], v[{AO+4*s_}:{AO+4*s_+3}], v[{BO+4*s_}:{BO+4*s_+3}], {c}")
    a("s_mov_b64 exec, s[50:51]")
    pk(12, 12, SO); pk(14, 14, SO+2)
    for r in range(4): a(f"v_min_u32 v{12+r}, -2, v{12+r}")
    a(f"buffer_store_dwordx4 v[12:15], v9, {WS}, s59 offen sc0 sc1")
    stamp(10)
    if loc2 == "st":
        X = a.label("l2")
        a(f"""s_cmp_lg_u32 s3, 0
        s_cbranch_scc1 {X}
        s_getreg_b32 s52, hwreg(HW_REG_XCC_ID, 0, 3)
        s_lshl_b32 s52, s52, 7
        s_lshl_b32 s53, s55, 2
        s_add_u32 s52, s52, s53
        s_add_u32 s52, s52, {O_H2}
        s_mov_b64 exec, 1
        buffer_store_dword v{vTAG}, v7, {WS}, s52 offen {locst}
        s_mov_b64 exec, -1
        {X}:""")

    if opd == 'p2':
        a(f"""s_lshl_b32 s52, s55, 2
        s_add_u32 s52, s52, s3
        s_mul_i32 s52, s52, 18432
        s_mul_i32 s53, s54, {18*32*1152}
        s_add_u32 s52, s52, s53
        s_mov_b64 exec, -1""")
        srd(36, 20, 21, "18432", "s52")
        a("""v_lshlrev_b32 v4, 7, v1
        v_add_u32 v5, 0x2000, v4
        v_add_u32 v6, 0x4000, v4
        buffer_load_dword v8, v4, s[36:39], 0 offen
        buffer_load_dword v8, v5, s[36:39], 0 offen
        buffer_load_dword v8, v6, s[36:39], 0 offen""")
    a(f"s_branch L_fin")
    a(f"{LNF}:")
    if pf_at == 64: prefetch()
    L3, L3D, L4, L4D = a.label("h3"), a.label("h3d"), a.label("h4"), a.label("h4d")
    a(f"""s_cmp_ge_u32 s2, {ID_R}
    s_cbranch_scc1 L_fin
    s_cmp_lg_u32 s3, 0
    s_cbranch_scc1 L_fin
    s_sub_u32 s52, s2, {ID_O}
    s_mul_i32 s58, s52, 9216
    s_add_u32 s58, s58, {O_P3}
    s_lshl_b32 s59, s52, 6
    s_mul_i32 s52, s54, {P2C}
    s_add_u32 s59, s59, s52
    s_add_u32 s59, s59, {O_P2}
    v_lshrrev_b32 v6, 2, v1
    v_mul_u32_u24 v6, 2304, v6
    v_and_b32 v9, 3, v1
    v_lshl_add_u32 v6, v9, 4, v6
    v_mov_b32 v8, {OOB}
    v_cndmask_b32 v9, v8, v{vXO}, s[44:45]
    v_cmp_gt_u32 vcc, 32, v1
    v_lshlrev_b32 v{vXF}, 16, v{vXF}
    v_cndmask_b32 v6, v8, v6, vcc
    v_lshlrev_b32 v10, 4, v1
    s_lshl_b32 s60, s54, 10
    s_add_u32 s61, s60, {O_H3}
    s_add_u32 s60, s60, {O_H2}""")
    a("s_add_u32 s96, s58, 4096\ns_add_u32 s97, s58, 8192")
    def h3_loads():
        for k in range(9):
            a(f"buffer_load_dwordx4 v[{vG+4*k}:{vG+4*k+3}], v10, {WS}, {['s58', 's96', 's97'][k//4]} offen offset:{1024*(k%4)} sc0 sc1")
    L3W = a.label("h3w")
    if rloc:
        LH, LHD = a.label("lh"), a.label("lhd")
        a(f"""s_getreg_b32 s60, hwreg(HW_REG_XCC_ID, 0, 3)
        s_lshl_b32 s60, s60, 7
        s_add_u32 s60, s60, {O_H3}
        s_movk_i32 s61, 120
        v_lshlrev_b32 v13, 2, v1
        s_bfm_b64 exec, 32, 0
        {LH}:
        buffer_load_dword v12, v13, {WS}, s60 offen {locld}
        s_sub_u32 s61, s61, 1
        s_cbranch_scc1 {LHD}
        s_waitcnt vmcnt(0)
        v_cmp_eq_u32 vcc, v12, v{vTAG}
        s_bcnt1_i32_b64 s52, vcc
        s_cmp_lt_u32 s52, {need3}
        s_cbranch_scc1 {LH}
        {LHD}:
        s_mov_b64 exec, -1
        s_waitcnt vmcnt(0)""")
        if dR: a(f"s_sleep {dR}")
        stamp(13)
        L4W = a.label("h4w")
        a(f"buffer_load_dwordx4 v[12:15], v6, {WS}, s59 offen sc0 sc1")
        h3_loads()
        a(f"s_waitcnt vmcnt(9)\ns_branch {L4W}")
    a(f"""{L4}:
    buffer_load_dwordx4 v[12:15], v6, {WS}, s59 offen sc0 sc1
    s_waitcnt vmcnt(0)""")
    if rloc: a(f"{L4W}:")
    poison_check(12, 4, [12], L4, L4D)
    stamp(11)
    tr4(12)
    for m in ("row_ror:8", "row_ror:4"):
        a(f"v_add_f32_dpp v12, v12, v12 {m} row_mask:0xf bank_mask:0xf")
    rnd1("v12")
    a(f"v_add_f32 v11, v12, v{vXF}")
    rnd1("v11")
    cnt0()
    if rloc: a(f"s_branch {L3W}")
    a(f"{L3}:")
    h3_loads()
    a(f"{L3W}:")
    a("s_waitcnt vmcnt(7)")
    pk(12, vG, vG+4); pk(14, vG+2, vG+6)
    for k in range(2, 9):
        a(f"s_waitcnt vmcnt({8-k})")
        pk(12, 12, vG+4*k); pk(14, 14, vG+4*k+2)
    poison_check(vG, 36, [12], L3, L3D)
    stamp(14); cnt1(12)
    tr4(12)
    for m in ("row_ror:8", "row_ror:4"):
        a(f"v_add_f32_dpp v12, v12, v12 {m} row_mask:0xf bank_mask:0xf")
    rnd1("v12")
    a(f"""v_add_f32 v12, v12, v11
    v_cvt_pk_bf16_f32 v12, v12, v12
    buffer_store_short v12, v9, {OUTS}, 0 offen
    s_branch L_fin""")
    a(f"{LNO}:")
    AG, AD, DD, SM = 184, 58, 94, 156
    a(f"""v_mul_u32_u24 v10, 2304, v2
    v_lshl_add_u32 v10, v3, 4, v10
    v_mov_b32 v9, {OOB}
    v_cndmask_b32 v11, v9, v10, s[44:45]
    s_mul_i32 s52, s3, 576
    s_mul_i32 s96, s54, {P2C}
    s_add_u32 s96, s96, s52
    s_add_u32 s96, s96, {O_P2}
    s_add_u32 s97, s96, 9216
    s_lshl_b32 s58, s56, 6
    s_mul_i32 s53, s3, {9*9216}
    s_add_u32 s58, s58, s53
    s_add_u32 s58, s58, {O_P3}
    s_mul_i32 s52, s3, 288
    v_lshl_add_u32 v{vA+1}, v{vE}, 1, s52
    v_add_u32 v{vA+1}, {L_HN}, v{vA+1}
    s_lshl_b32 s53, s3, 3
    s_add_u32 s53, s53, {L_ST}
    v_mov_b32 v{vA+2}, s53
    v_mov_b32 v{vA+3}, {L_ST}
    v_lshlrev_b32 v{vA+5}, 4, v2
    v_add_u32 v{vA+4}, {L_HN}, v{vA+5}
    v_mul_u32_u24 v{vA+7}, 9216, v3
    v_add_u32 v{vA+7}, v{vA+7}, v{vA+5}
    v_add_u32 v{vA+5}, {L_ACT}, v{vA+5}
    v_cmp_gt_u32 vcc, 9, v3
    v_lshrrev_b32 v12, 2, v3
    v_lshl_add_u32 v12, v2, 3, v12
    v_cndmask_b32 v{vA+7}, v9, v{vA+7}, vcc
    v_mul_u32_u24 v8, 1152, v12
    v_and_b32 v6, 3, v3
    v_lshl_add_u32 v8, v6, 3, v8
    v_add_u32 v8, {WD_L}, v8
    v_lshrrev_b32 v14, 3, v3
    v_lshlrev_b32 v15, 1, v2
    v_and_b32 v15, 2, v15
    v_or_b32 v14, v14, v15
    v_and_b32 v{vA+6}, 1, v2
    v_lshl_add_u32 v{vA+6}, v{vA+6}, 2, v6
    s_lshl_b32 s52, s3, 4
    s_add_u32 s53, s52, {L_ACT}
    v_lshl_add_u32 v{vA+6}, v{vA+6}, 1, s53
    v_lshlrev_b32 v12, 6, v12
    v_and_b32 v13, 1, v3
    v_lshl_add_u32 v12, v13, 3, v12
    v_and_b32 v15, 2, v3
    v_and_b32 v13, 1, v2
    v_or_b32 v13, v13, v15
    v_xor_b32 v13, s3, v13
    v_lshl_add_u32 v12, v13, 4, v12
    v_mul_u32_u24 v15, {(WU_L - WG_L)//2}, v15
    v_add_u32 v12, {WG_L}, v12
    v_add_u32 v6, v12, v15
    v_lshlrev_b32 v{vXR}, 16, v{vXR}
    v_lshlrev_b32 v{vXR+1}, 16, v{vXR+1}
    v_lshlrev_b32 v{vXR+2}, 16, v{vXR+2}""")
    if levels or pf_at: a("s_waitcnt vmcnt(0)")
    a(f"v_mov_b32 v{vA}, v6\ns_mul_i32 s52, s3, 9")
    for bb in range(0 if cwd else 9):
        a(f"v_xor_b32 v13, s52, v14\nv_lshl_add_u32 v{vQ+bb}, v13, 5, v8")
        if bb < 8: a("s_add_u32 s52, s52, 1")
    def gu_frags():
        for s_ in range(18):
            for h in range(2):
                r = AG + 4*s_ + 2*h
                a(f"ds_read_b64_tr_b16 v[{r}:{r+1}], v{vA} offset:{2048*s_ + 256*h}")
        stamp(9)
    def wd_frags():
        for bb in range(9):
            for h in range(2):
                r = AD + 4*bb + 2*h
                if cwd: a(f"ds_read_b64_tr_b16 v[{r}:{r+1}], v{vQ+9} offset:{32*bb + 2304*h}")
                else: a(f"ds_read_b64_tr_b16 v[{r}:{r+1}], v{vQ+bb} offset:{4608*h}")
        stamp(10)
    L2, L2D = a.label("h2"), a.label("h2d")
    L2W = a.label("h2w")
    def h2_loads():
        for i in range(3):
            for j in range(2):
                r = vG + 8*i + 4*j
                a(f"buffer_load_dwordx4 v[{r}:{r+3}], v{10 + (i == 2)}, {WS}, s{96+j} offen offset:{256*i} sc0 sc1")
    a(f"s_lshl_b32 s60, s54, 10\ns_add_u32 s60, s60, {O_H2}")
    assert not hu
    if order == "dg":
        a(f"s_movk_i32 s61, {MK_D}")
        spin_lds(f"v{vLND}", "v4", "s52", "s61")
        wd_frags()
        a(f"s_movk_i32 s61, {MK_G}")
        spin_lds(f"v{vLND}", "v4", "s52", "s61")
        cnt0()
        first, last = None, gu_frags
    elif cwd:
        a(f"s_mul_i32 s52, s56, {32*1152}")
        srd(36, 20, 21, str(32*1152), "s52")
        a(f"""s_mul_i32 s60, s3, 288
        s_mul_i32 s59, s3, 9216
        s_add_u32 s59, s59, {WD_L}""")
        for i in range(9):
            a(f"""v_add_u32 v12, {64*i}, v1
            v_mul_u32_u24 v13, 3641, v12
            v_lshrrev_b32 v13, 16, v13
            v_mul_u32_u24 v14, 18, v13
            v_sub_u32 v14, v12, v14
            v_mul_u32_u24 v13, 1152, v13
            v_lshl_add_u32 v{vQ+i}, v14, 4, v13""")
            if i % 4: a(f"v_subrev_u32 v{vQ+i}, {1024*(i%4)}, v{vQ+i}")
        a(f"""v_lshrrev_b32 v12, 1, v2
        v_lshlrev_b32 v12, 4, v12
        v_and_b32 v13, 1, v2
        v_lshl_add_u32 v12, v13, 2, v12
        v_lshrrev_b32 v14, 2, v3
        v_add_u32 v12, v12, v14
        v_mul_u32_u24 v12, 288, v12
        v_and_b32 v14, 3, v3
        v_lshl_add_u32 v12, v14, 3, v12
        v_add_u32 v{vQ+9}, s59, v12
        s_lshr_b32 s52, s3, 1
        s_lshl_b32 s52, s52, 5
        s_and_b32 s53, s3, 1
        s_lshl_b32 s53, s53, 3
        s_add_u32 s52, s52, s53
        s_add_u32 s52, s52, {L_ACT}
        v_lshl_add_u32 v13, v13, 3, v14
        v_lshl_add_u32 v{vA+6}, v13, 1, s52""")
        spin_lds(f"v{vCNT}", "v4", "s52", 4, off=C_O)
        a(f"s_movk_i32 s61, {MK_G}")
        spin_lds(f"v{vLND}", "v4", "s52", "s61")
        cnt0()
        last = gu_frags
    else:
        a(f"s_movk_i32 s61, {MK_G}")
        spin_lds(f"v{vLND}", "v4", "s52", "s61")
        gu_frags()
        if e2:
            spin_lds(f"v{vCNT}", "v4", "s52", 1, off=C_IS)
            h2_loads()
        a(f"s_movk_i32 s61, {MK_D}")
        spin_lds(f"v{vLND}", "v4", "s52", "s61")
        cnt0()
        last = wd_frags
    assert not ndef
    if loc2:
        LH, LHD, LHC = a.label("lh"), a.label("lhd"), a.label("lhc")
        a(f"""s_getreg_b32 s63, hwreg(HW_REG_XCC_ID, 0, 3)
        s_lshl_b32 s63, s63, 7
        s_add_u32 s63, s63, {O_H2}
        s_movk_i32 s61, 100
        v_lshlrev_b32 v13, 2, v1
        s_bfm_b64 exec, 9, 0
        buffer_load_dword v12, v13, {WS}, s63 offen {locld}
        s_mov_b64 exec, -1""")
        last()
        a(f"""s_bfm_b64 exec, 9, 0
        s_branch {LHC}
        {LH}:
        buffer_load_dword v12, v13, {WS}, s63 offen {locld}
        {LHC}:
        s_sub_u32 s61, s61, 1
        s_cbranch_scc1 {LHD}
        s_waitcnt vmcnt(0)
        v_cmp_eq_u32 vcc, v12, v{vTAG}
        s_bcnt1_i32_b64 s52, vcc
        s_cmp_lt_u32 s52, {need2}
        s_cbranch_scc1 {LH}
        {LHD}:
        s_mov_b64 exec, -1""")
        if d2l: a(f"s_sleep {d2l}")
        h2_loads()
    else:
        if not e2: h2_loads()
        last()
    def h2_sums(extra):
        for i in range(3):
            a(f"s_waitcnt vmcnt({4-2*i+extra})")
            sum4(SM + 4*i, [vG + 8*i + 4*j for j in range(2)])
    def wd_dma():
        for i in range(9):
            if i % 4 == 0: a(f"s_mov_b32 m0, s59\ns_add_u32 s59, s59, 4096")
            a(f"buffer_load_dwordx4 v{vQ+i}, s[36:39], s60 offen offset:{1024*(i%4)} {polW} lds")
    a(f"s_branch {L2W}")
    a(f"{L2}:")
    h2_loads()
    a(f"{L2W}:")
    h2_sums(0)
    poison_check(vG, 24, [SM, SM+4, SM+8], L2, L2D)
    stamp(11); cnt1(1)
    if cwd and wdat == 'h2': wd_dma()
    tr4(SM, SM+4, SM+8)
    H0, H1, H2 = f"v{SM}", f"v{SM+4}", f"v{SM+8}"
    rnd2(H0, H1, "v4"); rnd1(H2)
    a(f"v_add_f32 {H0}, {H0}, v{vXR}\nv_add_f32 {H1}, {H1}, v{vXR+1}\nv_add_f32 {H2}, {H2}, v{vXR+2}")
    rnd2(H0, H1, "v4"); rnd1(H2)
    a(f"""v_readfirstlane_b32 s53, {H0}
    v_subrev_f32 v8, s53, {H0}
    v_subrev_f32 v9, s53, {H1}
    v_subrev_f32 v10, s53, {H2}
    v_mul_f32 v5, v8, v8
    v_add_f32 v4, v8, v9
    v_cndmask_b32 v10, v7, v10, s[44:45]
    v_fmac_f32 v5, v9, v9
    v_add_f32 v4, v4, v10
    v_fmac_f32 v5, v10, v10""")
    red63("v_add_f32", "v4", "v5")
    a(f"""v_readlane_b32 s46, v4, 63
    v_readlane_b32 s47, v5, 63
    v_mov_b32 v8, {fhex(1/144)}
    v_mul_f32 v8, s46, v8
    v_mov_b32 v9, s47
    v_fma_f32 v9, -v8, s46, v9
    v_add_f32 v8, s53, v8
    s_mov_b64 exec, 1
    ds_write_b64 v{vA+2}, v[8:9]""")
    barrier(C_ST, not ndef)
    if ndef: one(f"ds_write_b32 v{vCNT}, v{vONE} offset:{C_WD}")
    a(f"""ds_read_b128 v[{vG}:{vG+3}], v{vA+3}
    ds_read_b128 v[{vG+4}:{vG+7}], v{vA+3} offset:16""")
    if cwd and wdat == 'st': wd_dma()
    a(f"""s_waitcnt lgkmcnt(0)
    v_pk_add_f32 v[8:9], v[{vG}:{vG+1}], v[{vG+2}:{vG+3}]
    v_pk_add_f32 v[10:11], v[{vG+4}:{vG+5}], v[{vG+6}:{vG+7}]
    v_pk_add_f32 v[8:9], v[8:9], v[10:11]
    v_mul_f32 v8, 0x3e800000, v8
    v_sub_f32 v{vG}, v{vG}, v8
    v_sub_f32 v{vG+2}, v{vG+2}, v8
    v_sub_f32 v{vG+4}, v{vG+4}, v8
    v_sub_f32 v{vG+6}, v{vG+6}, v8
    v_mul_f32 v10, v{vG}, v{vG}
    v_fmac_f32 v10, v{vG+2}, v{vG+2}
    v_fmac_f32 v10, v{vG+4}, v{vG+4}
    v_fmac_f32 v10, v{vG+6}, v{vG+6}
    v_fmac_f32 v9, {fhex(144.0)}, v10
    v_mul_f32 v9, {fhex(1/576)}, v9""")
    ln_scale("v8", "v9", "v10")
    for H in (H0, H1, H2): a(f"v_sub_f32 {H}, {H}, v8")
    rnd2(H0, H1, "v4"); rnd1(H2)
    for H in (H0, H1, H2): a(f"v_mul_f32 {H}, {H}, v9")
    a(f"""v_cvt_pk_bf16_f32 v12, {H0}, {H1}
    v_cvt_pk_bf16_f32 v13, {H2}, {H2}
    ds_write_b16 v{vA+1}, v12
    ds_write_b16_d16_hi v{vA+1}, v12 offset:128
    s_mov_b64 exec, s[44:45]
    ds_write_b16 v{vA+1}, v13 offset:256
    s_mov_b32 s46, 0x22222222
    s_mov_b32 s47, 0x22222222
    s_mov_b32 s48, 0xcccccccc
    s_mov_b32 s49, 0xcccccccc
    s_mov_b32 s50, 0x88888888
    s_mov_b32 s51, 0x88888888
    s_mov_b64 exec, -1""")
    barrier(C_HN, not ndef)
    stamp(12)
    BG = vG
    for s_ in range(18): a(f"ds_read_b128 v[{BG+4*s_}:{BG+4*s_+3}], v{vA+4} offset:{64*s_}")
    a(f"v_mov_b32 v6, {fhex(0.044715)}")
    for s_ in range(18):
        a(f"s_waitcnt lgkmcnt({min(15, 17-s_)})")
        if cwd and s_ == 17 and wdfr == 'mfma':
            a("s_waitcnt vmcnt(0)"); wd_frags()
        d = 12 if s_ % 2 == 0 else 8
        c = "0" if s_ < 2 else f"v[{d}:{d+3}]"
        a(f"v_mfma_f32_16x16x32_bf16 v[{d}:{d+3}], v[{AG+4*s_}:{AG+4*s_+3}], v[{BG+4*s_}:{BG+4*s_+3}], {c}")
        if hu and s_ + 1 == hu3:
            X = a.label("hu")
            a(f"s_cmp_lg_u32 s55, 31\ns_cbranch_scc1 {X}\ns_cmp_lg_u32 s3, 0\ns_cbranch_scc1 {X}")
            notice(f"s_lshl_b32 s53, s54, 7\ns_add_u32 s53, s53, {O_H3}", 8, 1024)
            a(f"{X}:")
    K0 = (2/3.141592653589793)**0.5
    pk(12, 12, 8); pk(14, 14, 10)
    a(f"""v_cndmask_b32 v12, v12, v13, s[46:47]
    v_cndmask_b32 v14, v14, v15, s[50:51]
    v_cndmask_b32 v12, v12, v14, s[48:49]""")
    rnd1("v12")
    a(f"""v_mov_b32 v13, v12
    v_permlane32_swap_b32 v12, v13
    v_mul_f32 v8, v12, v12
    v_mul_f32 v8, v8, v12
    v_fma_f32 v8, v8, v6, v12
    v_mul_f32 v8, {fhex(-2*K0*1.4426950408889634)}, v8
    v_exp_f32 v8, v8
    v_add_f32 v8, 1.0, v8
    v_rcp_f32 v8, v8
    v_mul_f32 v12, v12, v8""")
    rnd1("v12")
    a(f"""v_mul_f32 v12, v12, v13
    v_cvt_pk_bf16_f32 v12, v12, v12
    s_mov_b64 exec, 0x000f000f
    ds_write_b16 v{vA+6}, v12
    s_mov_b32 s46, 0x00010001
    s_mov_b32 s47, 0x00010001
    s_mov_b64 exec, -1""")
    if ndef:
        a(f"s_movk_i32 s61, 260")
        spin_lds(f"v{vLND}", "v4", "s52", "s61")
        wd_frags()
    if cwd and wdfr == 'act':
        a("s_waitcnt vmcnt(0)"); wd_frags()
    barrier(C_ACT, True)
    stamp(13)
    a(f"ds_read_b128 v[12:15], v{vA+5}\ns_waitcnt lgkmcnt(0)")
    if sel:
        for bb in range(9):
            D = DD if bb == 0 else vG + 4*bb
            a(f"v_mfma_f32_16x16x32_bf16 v[{D}:{D+3}], v[{AD+4*bb}:{AD+4*bb+3}], v[12:15], 0")
        for bb in range(1, 9):
            D = vG + 4*bb
            a(f"""s_lshl_b64 exec, s[46:47], {bb}
            v_pk_mov_b32 v[{DD}:{DD+1}], v[{D}:{D+1}], v[{D}:{D+1}] op_sel:[0,1]
            v_pk_mov_b32 v[{DD+2}:{DD+3}], v[{D+2}:{D+3}], v[{D+2}:{D+3}] op_sel:[0,1]""")
        a("s_mov_b64 exec, -1")
    else:
        def onehot(bb):
            B = vG + 4*bb
            for r in range(4): a(f"v_cndmask_b32 v{B+r}, v7, v{12+r}, s[46:47]")
            if bb < 8: a("s_lshl_b64 s[46:47], s[46:47], 1")
        onehot(0)
        for bb in range(9):
            if bb < 8: onehot(bb + 1)
            B = vG + 4*bb
            c = "0" if bb == 0 else f"v[{DD}:{DD+3}]"
            a(f"v_mfma_f32_16x16x32_bf16 v[{DD}:{DD+3}], v[{AD+4*bb}:{AD+4*bb+3}], v[{B}:{B+3}], {c}")
    for r in range(4): a(f"v_min_u32 v{DD+r}, -2, v{DD+r}")
    a(f"buffer_store_dwordx4 v[{DD}:{DD+3}], v{vA+7}, {WS}, s58 offen sc0 sc1")
    stamp(14)
    if rloc:
        a(f"""s_cmp_lg_u32 s3, 0
        s_cbranch_scc1 L_fin
        s_getreg_b32 s52, hwreg(HW_REG_XCC_ID, 0, 3)
        s_lshl_b32 s52, s52, 7
        s_lshl_b32 s53, s55, 2
        s_add_u32 s52, s52, s53
        s_add_u32 s52, s52, {O_H3}
        s_mov_b64 exec, 1
        buffer_store_dword v{vTAG}, v7, {WS}, s52 offen {locst}""")
    a("L_fin:")
    if diag:
        stamp(15)
        a(f"""s_add_u32 s26, s26, 0x20000000
        s_addc_u32 s27, s27, 0
        v_lshrrev_b32 v2, 6, v0
        v_mov_b32 v3, s2
        v_mul_u32_u24 v3, 5, v3
        v_add_u32 v3, v3, v2
        v_lshlrev_b32 v3, 7, v3
        s_waitcnt lgkmcnt(0)
        s_mov_b64 exec, 1""")
        for i in range(NST):
            a(f"v_mov_b32 v4, s{ST0+2*i}\nv_mov_b32 v5, s{ST0+2*i+1}\nglobal_store_dwordx2 v3, v[4:5], s[26:27] offset:{8*i}\ns_nop 1")
    a(f"""L_end:
    s_endpgm
    .section .rodata,"a"
    .p2align 6
    .amdhsa_kernel {KN}_kernel
    .amdhsa_next_free_vgpr 256
    .amdhsa_next_free_sgpr 102
    .amdhsa_accum_offset 256
    .amdhsa_group_segment_fixed_size 0
    .amdhsa_kernarg_size 96
    .amdhsa_user_sgpr_count 2
    .amdhsa_user_sgpr_kernarg_segment_ptr 1
    .amdhsa_system_sgpr_workgroup_id_x 1
    .amdhsa_float_denorm_mode_32 3
    .end_amdhsa_kernel""")
    a.lines = [l.replace('sc0 sc1', sc) for l in a.lines]
    a.lines, n = pad(a.lines)
    return a.text()

if __name__ == "__main__":
    import ast
    out = sys.argv[1]
    kw = {}
    for x in sys.argv[2:]:
        k, v = x.split("="); kw[k] = ast.literal_eval(v)
    open(out, "w").write(gen(**kw))
```

```python
import struct, sys
from asmlib import Asm, pad
KN = "sequential_preLN__gqa_block_cached__geglu_ffn__decode"
def fhex(x): return "0x%08x" % struct.unpack("<I", struct.pack("<f", x))[0]

def gen(W=20, W2=20, diag=False, sleep=0, polK='nt', polV='nt', polW='', ldbar=False, pf_at=0, pfg=128, npre=3, pf_rows=9, order="gd", levels=None, thr=(1,), pgw=2, lvl2=False, sc='sc0 sc1', hold=0, fastfail=True, Wh=0, NH=0, spf=0, spw=6, WO2=None, rot=True, early=True, Wd=None, hu=False, hu1='land', hu3=18, d1=0, d2=0, d3=0, hwbar=True, defer=False, obias=0, fbias=0, l2mask=0, l2sm=1, l2gain=1, rloc=True, dR=6, ndef=0, spd=0, spdfirst=True, Uend=256, Wend=32, tk=0, par=None, ramp=None, npro=3, poison=1, touch=0, loc2=None, d2l=0, need2=9, cpf=None, wpf=4, Wd0=20, nowq=False, polQ='nt', noqg=False, noqs=False, ksleep=0, q1=None, need3=1, sel=False, e2=False, e1=False, isback=0, diagm=0, xm=None, rotm=None, ilv=0, ig=14, pb=0, place=None, gmode=0, rmul=None, rx=0, omul=None, cwd=False, spo=0, wdat='st', wdfr='act', opd=None, holdS=None, holdF=None, holdO=None, W0=None, N0=0, ustamps=(8,16,24,32), pgpre=0, pg2=False, pgimm=False, tab=None, pgper=1, pgstf='', pgoff=0, pubm=1, sleep3=0, prio=3, cprio=0, tsh=2, tfull=0, locld='sc1', locst='', jb=None, vec=None, U2=0, levels2=None, outf='', lnfast=False, icw=0, icall=False, peekq=False, peekm=None, rk=None, nordy=False, rdyat=48, mlone=False, only=None, p2full=False, loc3=None, tsh2=20, probe=0):
    NSLOT = 18
    UNIT = 8192
    RING = NSLOT * UNIT
    M = RING
    L_LANDED = M
    L_CONS = M + 256
    L_CNT = M + 1280
    C_Q, C_Q2, C_O, C_P, C_ST, C_HN, C_ACT, C_R, C_LVL, C_RD, C_OP, C_IS, C_WD, C_OD, C_RK = [4*i for i in range(15)]
    L_XN = M + 1536
    L_QRED = L_XN + 2304
    L_Q = L_QRED + 1024
    L_ORED = L_Q + 512
    L_OB = L_ORED + 4096
    L_ST = L_OB + 1024
    L_HN = L_ST + 64
    L_H = L_HN + 1152
    L_ACT = L_H + 2304
    LDS = L_ACT + 64
    assert LDS <= 163840, LDS
    WO_L = 32768
    WG_L = 32768
    WU_L = WG_L + 36864
    WD_L = WU_L + 36864
    if order == "dg": WD_L, WG_L, WU_L = 32768, 32768 + 36864, 32768 + 2 * 36864
    assert max(WD_L, WU_L) + 36864 <= RING
    def need_cnt(lo, hi):
        last = max(u for u in range(256 - NSLOT, 256) if lo // UNIT <= u % NSLOT <= (hi - 1) // UNIT)
        return (last >> 2) + 1
    O_PG = 0x120000
    O_E, O_QX, O_ML, O_OP, O_P2, O_P3 = 0, 0x10000, 0x40000, 0x50000, 0x90000, 0xB4000
    P2C = 8 * 2304
    O_H1, O_H2, O_H3 = 0x130000, 0x138000, 0x13A000
    WS_SZ = 0x140000
    TAGC = 0x9E3779B9
    OOB = 0x7ffffff0
    a = Asm()
    NST = 16
    ST0 = 64
    def stamp(i):
        if diag and (only is None or i in only): a(f"s_memrealtime s[{ST0+2*i}:{ST0+2*i+1}]")
    sTO = "s62"
    def cnt0():
        if diag and only is None: a("s_mov_b32 s95, s62")
    def cnt1(i):
        if diag and only is None: a(f"s_sub_u32 s95, s95, s62\ns_mul_i32 s95, s95, 100\ns_add_u32 s{ST0+2*i}, s{ST0}, s95\ns_addc_u32 s{ST0+2*i+1}, s{ST0+1}, 0")
    def spin_lds(vaddr, vt, st, cmp_need, sl=0, off=0):
        L, D = a.label("spin"), a.label("done")
        a(f"""{L}:
        ds_read_b32 {vt}, {vaddr} offset:{off}
        s_waitcnt lgkmcnt(0)
        v_readfirstlane_b32 {st}, {vt}
        s_cmp_ge_i32 {st}, {cmp_need}
        s_cbranch_scc1 {D}
        s_sub_u32 {sTO}, {sTO}, 1
        s_cbranch_scc1 L_end""")
        if sl == 'w3': a(f"s_cmp_lg_u32 s3, 3\ns_cbranch_scc1 {L}\ns_sleep {sleep3}")
        elif sl: a(f"s_sleep {sl}")
        a(f"s_branch {L}\n{D}:")
    def srd(r, lo, hi, nrec, addlo=None):
        if addlo is None:
            a(f"s_mov_b32 s{r}, s{lo}\ns_mov_b32 s{r+1}, s{hi}")
        else:
            a(f"s_add_u32 s{r}, s{lo}, {addlo}\ns_addc_u32 s{r+1}, s{hi}, 0")
        a(f"s_mov_b32 s{r+2}, {nrec}\ns_mov_b32 s{r+3}, 0x20000")

    a(f"; @launch grid=(256,1,1) block=(320,1,1) lds={LDS}")
    a(""";
    ; One persistent launch, one workgroup per CU: wave 0 streams K, then V, then weights into an LDS ring (LDS-DMA,
    ;   start : LayerNorm(x), a 144 x 64 tile of x.wq per workgroup, exchanged inside the head (tagged words in d_ws)
    ;   K pass: scores by MFMA, rounded as the reference rounds them, kept in registers; running true max / sum
    ; Hand-offs carry a launch tag or are reset to a marker at the start and checked word by word; every wait is bounded.
    ; Tables indexed by the die number only steer window sizes and the moment of a first read, never a result.""")
    a(f""".amdgcn_target "amdgcn-amd-amdhsa--gfx950"
    .text
    .globl {KN}_kernel
    .p2align 8
    .type {KN}_kernel,@function
    {KN}_kernel:
    s_cmp_ge_u32 s2, 256
    s_cbranch_scc1 L_end
    s_load_dwordx16 s[4:19], s[0:1], 0
    s_load_dwordx8 s[20:27], s[0:1], 64""")
    if diag:
        for i in range(1, NST): a(f"s_mov_b64 s[{ST0+2*i}:{ST0+2*i+1}], 0")
    stamp(0)
    a(f"""v_lshrrev_b32 v2, 6, v0
    v_and_b32 v1, 63, v0
    v_readfirstlane_b32 s3, v2
    s_mov_b32 {sTO}, 0x400000
    v_lshrrev_b32 v2, 4, v1
    v_and_b32 v3, 15, v1""")
    if gmode == 0: a("s_mov_b32 s1, s2")
    elif gmode == 1: a("s_and_b32 s52, s2, 7\ns_lshl_b32 s52, s52, 5\ns_lshr_b32 s53, s2, 3\ns_or_b32 s53, s53, s52")
    elif gmode == 2: a("s_and_b32 s52, s2, 7\ns_lshl_b32 s52, s52, 5\ns_bfe_u32 s53, s2, 0x10003\ns_lshl_b32 s53, s53, 4\ns_or_b32 s52, s52, s53\ns_lshr_b32 s53, s2, 4\ns_or_b32 s53, s53, s52")
    elif gmode == 3:
        a("s_and_b32 s52, s2, 3\ns_bfe_u32 s53, s2, 0x20003\ns_lshl_b32 s53, s53, 2\ns_or_b32 s52, s52, s53\ns_bfe_u32 s53, s2, 0x10002\ns_lshl_b32 s53, s53, 7\ns_or_b32 s52, s52, s53\ns_lshr_b32 s53, s2, 5\ns_lshl_b32 s53, s53, 4\ns_or_b32 s53, s53, s52")
    elif gmode == 4:
        a("s_and_b32 s52, s2, 1\ns_bfe_u32 s53, s2, 0x30003\ns_lshl_b32 s53, s53, 1\ns_or_b32 s52, s52, s53\ns_bfe_u32 s53, s2, 0x20001\ns_lshl_b32 s53, s53, 6\ns_or_b32 s52, s52, s53\ns_lshr_b32 s53, s2, 6\ns_lshl_b32 s53, s53, 4\ns_or_b32 s53, s53, s52")
    if gmode: a("s_mov_b32 s1, s53")
    a("s_cmp_lg_u32 s3, 0\ns_cbranch_scc1 L_cons")
    ID_O, ID_R, ID_F = 72, 108, 112
    def roles():
        a("""s_and_b32 s54, s2, 7
        s_lshr_b32 s55, s2, 3
        s_mul_i32 s56, s54, 18
        s_add_u32 s56, s56, s55
        s_sub_u32 s56, s56, 14""")
    a("; ---- loader wave")
    blk = {0: "s_lshl_b32 s57, s2, 20",
           1: "s_lshr_b32 s57, s2, 3\ns_add_u32 s57, s57, s2\ns_and_b32 s57, s57, 7\ns_and_b32 s58, s2, 0xf8\ns_or_b32 s57, s57, s58\ns_lshl_b32 s57, s57, 20",
           2: "s_lshr_b32 s57, s2, 4\ns_xor_b32 s57, s57, s2\ns_and_b32 s57, s57, 15\ns_and_b32 s58, s2, 0xf0\ns_or_b32 s57, s57, s58\ns_lshl_b32 s57, s57, 20",
           3: "s_lshr_b32 s57, s2, 4\ns_mul_i32 s57, s57, 5\ns_add_u32 s57, s57, s2\ns_and_b32 s57, s57, 15\ns_and_b32 s58, s2, 0xf0\ns_or_b32 s57, s57, s58\ns_lshl_b32 s57, s57, 20",
           4: "s_bfe_u32 s57, s2, 0x10003\ns_and_b32 s58, s2, 7\ns_lshl_b32 s58, s58, 1\ns_or_b32 s57, s57, s58\ns_and_b32 s58, s2, 0xf0\ns_or_b32 s57, s57, s58\ns_lshl_b32 s57, s57, 20",
           5: "s_lshr_b32 s57, s2, 5\ns_xor_b32 s57, s57, s2\ns_and_b32 s57, s57, 7\ns_and_b32 s58, s2, 0xf8\ns_or_b32 s57, s57, s58\ns_lshl_b32 s57, s57, 20",
          }[diagm]
    if xm is not None:
        blk = "s_and_b32 s57, s2, 15"
        if pb:
            blk += f"\ns_bfe_u32 s58, s2, {hex(0x10000 | pb)}\ns_and_b32 s59, s2, {(1 << pb) - 1}\ns_lshl_b32 s59, s59, 1\ns_or_b32 s58, s58, s59\ns_and_b32 s57, s57, {15 & ~((2 << pb) - 1)}\ns_or_b32 s57, s57, s58"
        for b, m in enumerate(xm):
            if m: blk += f"\ns_bitcmp1_b32 s2, {4+b}\ns_cselect_b32 s58, {m}, 0\ns_xor_b32 s57, s57, s58"
        if ilv:
            blk += f"\ns_and_b32 s58, s57, {(1 << ilv) - 1}\ns_lshl_b32 s58, s58, {ig}\ns_lshr_b32 s57, s57, {ilv}\ns_lshl_b32 s57, s57, {20 + ilv}\ns_or_b32 s57, s57, s58"
        else:
            blk += "\ns_lshl_b32 s57, s57, 20"
        blk += "\ns_lshr_b32 s58, s2, 4\ns_lshl_b32 s58, s58, 24\ns_or_b32 s57, s57, s58"
    SPAN = (1 << (20 + ilv)) - (((1 << ilv) - 1) << ig)
    assert place or not gmode
    if place:
        JB = jb or (10, 11, 12)
        assert len(set(place + JB)) == 7 and all(10 <= p <= 23 for p in place + JB) and not ilv and rotm is None
        SM = sum(1 << b for b in range(10, 24) if b not in place + JB)
        SPAN = SM + sum(1 << b for b in JB) + 1024
        blk = "s_and_b32 s59, s1, 15"
        for b, m in enumerate(xm or ()):
            if m: blk += f"\ns_bitcmp1_b32 s1, {4+b}\ns_cselect_b32 s58, {m}, 0\ns_xor_b32 s59, s59, s58"
        blk += "\ns_lshr_b32 s57, s1, 4\ns_lshl_b32 s57, s57, 24"
        for k, p in enumerate(place):
            blk += f"\ns_bitcmp1_b32 s59, {k}\ns_cselect_b32 s58, {hex(1 << p)}, 0\ns_or_b32 s57, s57, s58"
        if vec:
            assert not jb
            PM = sum(1 << p for p in place)
            rows = [v & PM for v in vec[:4]]
            span = {0}
            for r in rows: span |= {x ^ r for x in span}
            assert len(span) == 16 and all(v & ~(PM | SM) == 0 for v in vec)
            blk = "s_mov_b32 s100, 0"
            for b, v in enumerate(vec):
                if v: blk += f"\ns_bitcmp1_b32 s1, {b}\ns_cselect_b32 s58, {hex(v)}, 0\ns_xor_b32 s100, s100, s58"
            blk += f"\ns_lshr_b32 s57, s1, 4\ns_lshl_b32 s57, s57, 24\ns_and_b32 s58, s100, {hex(PM)}\ns_or_b32 s57, s57, s58\ns_and_b32 s100, s100, {hex(SM)}"
    def start_off():
        if vec: a("s_mov_b32 s101, 0\ns_mov_b32 s58, s100\ns_add_u32 s59, s58, 4096")
        elif rotm is None: a("s_mov_b32 s58, 0\ns_mov_b32 s59, 4096")
        else: a(f"s_mul_i32 s58, s2, {rotm[0]}\ns_lshr_b32 s58, s58, {rotm[1]}\ns_and_b32 s58, s58, 63\ns_lshl_b32 s58, s58, {14 + ilv}\ns_add_u32 s59, s58, 4096")
    j0 = (W + 7) % 8
    lag = (W + 7 - j0) // 8
    a(f"""{f's_setprio {prio}' if prio else ''}
    v_lshlrev_b32 v4, 1, v2
    v_xor_b32 v4, v4, v3
    v_lshlrev_b32 v4, 4, v4
    v_lshl_add_u32 v4, v2, 8, v4
    v_xor_b32 v5, 0x80, v4
    {blk}
    s_mov_b32 m0, 0""")
    start_off()
    a("s_waitcnt lgkmcnt(0)")
    srd(28, 6, 7, hex(SPAN), "s57")
    if ldbar: a("s_barrier")
    stamp(8)
    def unit_loads(sr, pub, waits=True, W=W, Wp=None):
        j0 = ((Wp or W) + 7) % 8
        for j in range(8):
            if jb:
                J = sum(1 << JB[k] for k in range(3) if j >> k & 1)
                if j: a(f"s_add_u32 m0, m0, 1024\ns_add_u32 s59, s58, {hex(J)}")
                if waits: a(f"s_waitcnt vmcnt({W-1})")
                a(f"buffer_load_dwordx4 v{4 + (j&1)}, s[{sr}:{sr+3}], s{59 if j else 58} offen {polK if sr == 28 else polV} lds")
            else:
                if j == 4: a("s_add_u32 m0, m0, 4096")
                if waits: a(f"s_waitcnt vmcnt({W-1})")
                a(f"buffer_load_dwordx4 v{4 + (j&1)}, s[{sr}:{sr+3}], s{58 + (j>>2)} offen offset:{(j&3)*1024} {polK if sr == 28 else polV} lds")
            if pub and j == j0:
                a("v_mov_b32 v7, s60\nds_write_b32 v6, v7")
        if vec: a(f"s_or_b32 s101, s101, {hex(~SM & 0xfffffc00)}\ns_add_u32 s101, s101, 1024\ns_and_b32 s101, s101, {hex(SM)}\ns_xor_b32 s58, s101, s100")
        elif place: a(f"s_or_b32 s58, s58, {hex(~SM & 0xfffffc00)}\ns_add_u32 s58, s58, 1024\ns_and_b32 s58, s58, {hex(SM)}")
        elif ilv and ig == 13: a(f"s_add_u32 s58, s58, {8192 << ilv}")
        elif ilv: a(f"s_add_u32 s58, s58, 8192\ns_and_b32 s96, s58, {(1 << ig) - 1}\ns_cselect_b32 s96, 0, {((1 << ilv) - 1) << ig}\ns_add_u32 s58, s58, s96")
        else: a("s_add_u32 s58, s58, 8192")
        if rotm is not None: a(f"s_and_b32 s58, s58, {hex((1 << (20 + ilv)) - 1)}")
        a("s_add_u32 s59, s58, 4096")
    unit_loads(28, False, False)
    for _ in range(npro - 1):
        a(f"s_add_u32 m0, m0, {1024 if jb else 4096}")
        unit_loads(28, False, False)
    srd(32, 8, 9, hex(SPAN), "s57")
    roles()
    a(f"""s_mul_i32 s57, s54, {512*1152}
    s_lshl_b32 s61, s55, 7
    s_add_u32 s57, s57, s61
    s_sub_u32 s61, {4096*1152}, s57""")
    srd(36, 12, 13, "s61", "s57")
    a(f"""s_lshl_b32 s57, s56, 6
    s_sub_u32 s61, {576*9216}, s57""")
    srd(40, 16, 17, "s61", "s57")
    srd(44, 18, 19, "s61", "s57")
    a(f"s_mul_i32 s57, s56, {32*1152}")
    srd(48, 20, 21, str(32*1152), "s57")
    if touch:
        hb = [b for b in range(16, 24) if SM >> b & 1]
        a("v_mov_b32 v8, 0")
        for k, b in enumerate(hb): a(f"v_bfe_u32 v9, v1, {k}, 1\nv_lshl_or_b32 v8, v9, {b}, v8")
        a(f"s_bfm_b64 exec, {1 << len(hb)}, 0")
        if touch & 1: a("buffer_load_dword v31, v8, s[28:31], 0 offen nt")
        if touch & 2: a("buffer_load_dword v31, v8, s[32:35], 0 offen nt")
        a("s_mov_b64 exec, -1")
        if touch & 4:
            a(f"v_lshlrev_b32 v8, {tsh2}, v1")
            for lo, nb in ((12, 4096*1152), (16, 576*9216), (18, 576*9216), (20, 4608*1152)):
                srd(96, lo, lo + 1, str(nb))
                a("buffer_load_dword v31, v8, s[96:99], 0 offen nt")
    a(f"""v_lshrrev_b32 v8, 3, v1
    v_and_b32 v9, 2, v8
    v_mul_u32_u24 v8, 1152, v8
    v_and_b32 v10, 7, v1
    v_xor_b32 v9, v9, v10
    v_lshl_add_u32 v12, v9, 4, v8
    v_xor_b32 v9, 4, v9
    v_lshl_add_u32 v16, v9, 4, v8
    v_lshrrev_b32 v8, 2, v1
    v_lshrrev_b32 v9, 5, v1
    v_mul_u32_u24 v8, 9216, v8
    v_and_b32 v10, 3, v1
    v_xor_b32 v9, v9, v10
    v_lshl_add_u32 v13, v9, 4, v8
    v_xor_b32 v9, 2, v9
    v_lshl_add_u32 v17, v9, 4, v8""")
    for i in range(0 if cwd else 18):
        a(f"""v_add_u32 v8, {64*i}, v1
        v_mul_u32_u24 v9, 911, v8
        v_lshrrev_b32 v9, 16, v9
        v_mul_u32_u24 v10, 72, v9
        v_sub_u32 v10, v8, v10
        v_and_b32 v11, 2, v9
        v_xor_b32 v10, v10, v11
        v_lshrrev_b32 v11, 1, v9
        v_and_b32 v11, 4, v11
        v_xor_b32 v10, v10, v11
        v_mul_u32_u24 v9, 1152, v9
        v_lshl_add_u32 v{32+i}, v10, 4, v9""")
    a(f"""v_mov_b32 v14, 0
    v_lshlrev_b32 v6, 2, v1
    v_add_u32 v6, {L_LANDED}, v6
    s_lshr_b32 s97, s56, 1
    s_mul_i32 s97, s97, {rmul or 0}
    s_mul_i32 s52, s54, {rx}
    s_add_u32 s97, s97, s52
    s_and_b32 s52, s56, 1
    s_mul_i32 s52, s52, 18
    s_add_u32 s97, s97, s52
    s_and_b32 s97, s97, 0xfff
    s_mul_i32 s52, s97, 1821
    s_lshr_b32 s52, s52, 16
    s_mul_i32 s52, s52, 36
    s_sub_u32 s97, s97, s52
    s_mul_i32 s98, s55, {omul or 0}
    s_and_b32 s98, s98, 62
    v_mov_b32 v22, 0
    v_mov_b32 v23, 0
    v_mov_b32 v20, {L_CNT + C_LVL}
    v_mov_b32 v21, {L_CONS}
    s_mov_b32 s63, {npro}
    s_mov_b32 s60, {npro - lag + 1}
    s_mov_b32 s57, {npro*UNIT}
    s_mov_b32 s61, 0""")
    if not ldbar: a("s_barrier")
    assert all((w + 7) // 8 == lag for w in (levels or ()))
    for ph, sr, uend in ((-1, 28, N0),)[:1 if N0 else 0] + ((0, 28, 128), (1, 32, U2 or Uend)) + ((3, 32, Uend),)[:1 if U2 else 0] + ((2, 32, 256),)[:1 if Uend < 256 else 0]:
        L, BK = a.label("ld"), a.label("ldback")
        if ph == 1:
            start_off()
            stamp(1)
        if ph == 2:
            a(f"s_sub_i32 s60, s60, {(Wend + 7) // 8 - lag}")
            W, lag = Wend, (Wend + 7) // 8
        Wp = None
        lv = levels
        if ph == 3:
            lv, Wp = levels2, max(levels2)
            a(f"s_sub_i32 s60, s60, {(Wp + 7) // 8 - lag}")
            W, lag = Wp, (Wp + 7) // 8
        a(f"""{L}:
        s_waitcnt lgkmcnt(0)
        v_readfirstlane_b32 s52, v22
        s_cmp_ge_i32 s52, s61
        s_cbranch_scc1 {BK}""")
        if diag: a(f"s_add_u32 s{ST0+2*(9+max(0,min(ph,1)))}, s{ST0+2*(9+max(0,min(ph,1)))}, 100")
        spin_lds("v21", "v22", "s52", "s61", 1)
        a(f"""{BK}:
        s_mov_b32 m0, s57
        s_sub_u32 s52, s63, {NSLOT-1}
        s_ashr_i32 s61, s52, 2
        s_add_u32 s61, s61, 1
        s_and_b32 s52, s52, 3
        s_lshl_b32 s52, s52, 8
        s_add_u32 s52, s52, {L_CONS}
        v_mov_b32 v21, s52
        ds_read_b32 v22, v21""")
        if ph == -1:
            assert W0 <= W
            unit_loads(sr, True, True, W0, W)
        elif ph == 2:
            unit_loads(sr, True, True, Wend)
        elif levels:
            J = a.label("lj")
            a(f"v_readfirstlane_b32 s52, v23\nds_read_b32 v23, v20")
            order_ = [i for i in range(len(levels)) if i != len(levels)//2]
            labs = {i: a.label("lv") for i in order_}
            for i in order_: a(f"s_cmp_eq_u32 s52, {i+1}\ns_cbranch_scc1 {labs[i]}")
            unit_loads(sr, True, True, lv[len(levels)//2], Wp)
            for i in order_:
                a(f"s_branch {J}\n{labs[i]}:")
                unit_loads(sr, True, True, lv[i], Wp)
            a(f"{J}:")
        else:
            unit_loads(sr, True)
        if diag and ph in (0, 1):
            for k, u in enumerate(ustamps):
                X_ = a.label("st")
                a(f"s_cmp_lg_u32 s63, {u}\ns_cbranch_scc1 {X_}"); stamp(11 + k); a(f"{X_}:")
        a(f"""s_add_u32 s57, s57, {UNIT}
        s_cmp_ge_u32 s57, {RING}
        s_cselect_b32 s57, 0, s57
        s_add_u32 s60, s60, 1
        s_add_u32 s63, s63, 1
        s_cmp_lt_u32 s63, {uend}
        s_cbranch_scc1 {L}""")
    stamp(2)
    if diag:
        for ph in range(2): a(f"s_add_u32 s{ST0+2*(9+ph)}, s{ST0+2*(9+ph)}, s{ST0}\ns_addc_u32 s{ST0+2*(9+ph)+1}, s{ST0+1}, 0")
    a("; ---- loader: weights / cache warm-up, by role")
    a(f"""v_mov_b32 v21, {L_CONS}""")
    def free_check(cnt):
        L, D = a.label("fc"), a.label("fcd")
        a(f"""{L}:
        ds_read_b32 v24, v21
        ds_read_b32 v25, v21 offset:256
        ds_read_b32 v26, v21 offset:512
        ds_read_b32 v27, v21 offset:768
        s_waitcnt lgkmcnt(0)
        v_min_i32 v24, v24, v25
        v_min3_i32 v24, v24, v26, v27
        v_readfirstlane_b32 s52, v24
        s_cmp_ge_i32 s52, {cnt}
        s_cbranch_scc1 {D}
        s_sub_u32 {sTO}, {sTO}, 1
        s_cbranch_scc1 L_end
        s_branch {L}
        {D}:""")
    def weights(doO, doF, r0=0):
        seq = []
        have = [0]; npf = [0]; ngu = [0]
        def mat(base, n, vr, sr, step):
            for i in range(n):
                c = need_cnt(base + 1024*i, base + 1024*(i+1))
                if c > have[0]:
                    have[0] = c
                    seq.append(("check", c))
                seq.append(("load", base + 1024*i, vr(i), sr, step(i)))
        if doO:
            if omul is not None:
                seq.append(("check", need_cnt(WO_L, WO_L + 65536))); have[0] = seq[-1][1]
            mat(WO_L, 64, lambda i: 12 + 4*(i & 1), 36, lambda i: i * 8 * 1152); seq.append(("mark", 257))
        if doF:
            mk = 258
            for o in (order if not cwd else "g"):
                if o == "g" and cpf:
                    a(f"""s_mul_i32 s57, s56, {cpf[0]*8192 - 64}
                    v_lshlrev_b32 v14, 7, v1
                    v_add_u32 v14, s57, v14""")
                    for t in range(2 * cpf[0]): seq.append(("load", None, 14, 40 + 4*(t & 1), -(t >> 1) * 8192 - 1))
                if o == "g":
                    seq.append(("check", need_cnt(WG_L, WU_L + 36864))); have[0] = max(have[0], seq[-1][1])
                    for i in [(k + r0) % 36 for k in range(36)]:
                        seq.append(("load", WG_L + 1024*i, 13, 40, i * 16 * 9216)); seq.append(("load", WU_L + 1024*i, 17, 44, i * 16 * 9216))
                else:
                    mat(WD_L, 36, lambda i: 32 + i % 18, 48, lambda i: (i // 18) * 16 * 1152)
                    if ndef:
                        loads = [k for k, it in enumerate(seq) if it[0] == "load"]
                        k = loads[-ndef]
                        while seq[k-1][0] == "check": k -= 1
                        seq[k:k] = [("mark", mk), ("wait", C_WD)]; mk += 1
                seq.append(("mark", mk)); mk += 1
        if not doO and not doF and cpf:
            srd(40, 16, 17, str(576*9216))
            srd(44, 18, 19, str(576*9216))
            a(f"""s_sub_u32 s57, s2, {ID_O}
            s_mul_i32 s57, s57, {cpf[1]*8192}
            s_add_u32 s57, s57, {144*cpf[0]*8192}
            v_lshlrev_b32 v14, 7, v1
            v_add_u32 v14, s57, v14""")
            for t in range(2 * cpf[1]): seq.append(("load", None, 14, 40 + 4*(t & 1), -(t >> 1) * 8192 - 1))
        elif not doO and not doF and (spf or spd or spo):
            a(f"""s_mul_i32 s57, s54, 1152
            s_sub_u32 s61, {576*9216}, s57""")
            srd(40, 16, 17, "s61", "s57")
            srd(44, 18, 19, "s61", "s57")
            a(f"""s_sub_u32 s59, s55, 9
            s_mul_i32 s59, s59, {7*9216}
            v_mul_u32_u24 v8, 7282, v1
            v_lshrrev_b32 v8, 16, v8
            v_mul_u32_u24 v9, 9, v8
            v_sub_u32 v9, v1, v9
            v_mul_u32_u24 v8, 9216, v8
            v_lshl_add_u32 v15, v9, 7, v8
            v_lshlrev_b32 v18, 7, v1
            s_bfm_b64 exec, 63, 0""")
            dl = []
            if spo:
                a(f"""s_mul_i32 s57, s54, {512*1152}
                s_sub_u32 s53, 13, s55
                s_lshl_b32 s53, s53, 13
                s_mov_b64 exec, -1
                v_add_u32 v18, s53, v18
                s_bfm_b64 exec, 63, 0""")
                srd(36, 12, 13, str(512*1152), "s57")
                for t in range(spo): seq.append(("load", None, 18, 36, -((67 - 5*t) * 8192) - 1))
            if spd:
                a(f"""s_mul_i32 s57, s54, {18*32*1152}
                s_sub_u32 s53, s55, 9
                s_mul_i32 s53, s53, {17*63*128}
                s_add_u32 s57, s57, s53
                s_sub_u32 s61, {18*32*1152}, s53
                v_lshlrev_b32 v14, 7, v1""")
                srd(48, 20, 21, "s61", "s57")
                dl = [("load", None, 14, 48, t * 63 * 128) for t in range(spd)]
            if spdfirst: seq += dl
            for t in range(2 * spf):
                k = t >> 1
                top = (575 if k % 2 == 0 else 287) - 35 * (k >> 1) if rot else 575 - 35 * k
                seq.append(("load", None, 15, 40 + 4*(t & 1), (top - 6) * 9216))
            if not spdfirst: seq += dl
        ev = [(8*u + 7, u + 1) for u in range(256 - lag, 256)]
        n = 2048
        for it in seq:
            if it[0] == "load": n += 1
            elif it[0] == "mark": ev.append((n - 1, it[1]))
        ev.sort()
        n = 2048
        def publish(v):
            a(f"v_mov_b32 v7, {v}\nds_write_b32 v6, v7")
            if v >= 256: stamp(min(v, 259) - 256 + 4)
        for it in seq:
            hh = holdO if doO else holdF if doF else holdS
            if hh is not None and it[0] == "load" and n == 2048 + hh:
                while ev and ev[0][1] <= 256:
                    idx, v = ev.pop(0)
                    a(f"s_waitcnt vmcnt({n - 1 - idx})"); publish(v)
                a(f"v_mov_b32 v24, {L_CNT + C_OP}")
                spin_lds("v24", "v25", "s52", 1)
            if it[0] == "wait":
                a(f"v_mov_b32 v24, {L_CNT + C_IS}\nv_mov_b32 v25, 1\ns_mov_b64 exec, 1\nds_write_b32 v24, v25\ns_mov_b64 exec, -1")
                while ev and ev[0][0] < n:
                    idx, v = ev.pop(0)
                    a(f"s_waitcnt vmcnt({n - 1 - idx})"); publish(v)
                a(f"v_mov_b32 v24, {L_CNT + it[1]}")
                spin_lds("v24", "v25", "s52", 1)
            if it[0] == "check":
                while ev and ev[0][1] <= 256 and ((ev[0][1] - 1) >> 2) + 1 <= it[1]:
                    idx, v = ev.pop(0)
                    a(f"s_waitcnt vmcnt({n - 1 - idx})"); publish(v)
                free_check(it[1])
            elif it[0] == "load":
                _, la, vr, sr, so = it
                w = W if n - W < 2047 else (WO2 if (doO and WO2) else W2)
                if doF and Wd and sr == 48 and n - W >= 2047: w = Wd
                if doF and Wh and n < 2048 + NH: w = Wh
                if doF and ramp:
                    w = [ww for nn, ww in ramp if n - 2048 >= nn][-1]
                if doF and cpf:
                    if sr == 48: w = W if n - W < 2047 else Wd0
                    elif la is None:
                        npf[0] += 1
                        w = max(Wd0 - 6 * npf[0], 0) + npf[0] if Wd0 - 6 * npf[0] > 0 else wpf
                    else:
                        ngu[0] += 1
                        w = min(63, wpf + ngu[0]) if ngu[0] < W2 else W2
                elif la is None:
                    t = n - 2048
                    w = max(0, W - 5 - 4*t) + t + 1 if W - 5 - 4*t > 0 else spw
                while ev and ev[0][0] < n - w:
                    idx, v = ev.pop(0)
                    a(f"s_waitcnt vmcnt({n - 1 - idx})"); publish(v)
                if la is None:
                    if so < 0:
                        a(f"s_mov_b64 s[98:99], exec\ns_mov_b64 exec, -1\nv_add_u32 v31, {-so - 1}, v{vr}\ns_waitcnt vmcnt({w-1})\nbuffer_load_dword v30, v31, s[{sr}:{sr+3}], 0 offen\ns_mov_b64 exec, s[98:99]")
                    elif sr == 48:
                        a(f"v_add_u32 v31, {so}, v{vr}\ns_waitcnt vmcnt({w-1})\nbuffer_load_dword v30, v31, s[{sr}:{sr+3}], 0 offen")
                    else:
                        a(f"s_sub_u32 s58, {so}, s59\ns_waitcnt vmcnt({w-1})\nbuffer_load_dword v30, v{vr}, s[{sr}:{sr+3}], s58 offen")
                else:
                    if rmul is not None and sr == 40:
                        a(f"s_lshl_b32 s99, s97, 10\ns_add_u32 m0, s99, {WG_L}\ns_mul_i32 s58, s97, {16*9216}\ns_waitcnt vmcnt({w-1})")
                    elif rmul is not None and sr == 44:
                        a(f"s_add_u32 m0, s99, {WU_L}\ns_add_u32 s97, s97, 1\ns_cmp_eq_u32 s97, 36\ns_cselect_b32 s97, 0, s97\ns_waitcnt vmcnt({w-1})")
                    elif omul is not None and sr == 36:
                        a(f"s_lshl_b32 s99, s98, 10\ns_add_u32 m0, s99, {WO_L}\ns_mul_i32 s58, s98, {8*1152}\ns_add_u32 s98, s98, 1\ns_and_b32 s98, s98, 63\ns_waitcnt vmcnt({w-1})")
                    else:
                        a(f"s_mov_b32 m0, {la}\ns_mov_b32 s58, {so}\ns_waitcnt vmcnt({w-1})")
                    a(f"buffer_load_dwordx4 v{vr}, s[{sr}:{sr+3}], s58 offen {polW} lds")
                last = None
                while ev and ev[0][0] <= n - w: last = ev.pop(0)[1]
                if last is not None: publish(last)
                n += 1
        if doO or doF:
            if isback:
                while ev and ev[0][0] < n - isback:
                    idx, v = ev.pop(0)
                    a(f"s_waitcnt vmcnt({n - 1 - idx})"); publish(v)
                a(f"s_waitcnt vmcnt({isback})")
            a(f"v_mov_b32 v24, {L_CNT + C_IS}\nv_mov_b32 v25, 1\ns_mov_b64 exec, 1\nds_write_b32 v24, v25\ns_mov_b64 exec, -1")
        while ev:
            idx, v = ev.pop(0)
            a(f"s_waitcnt vmcnt({n - 1 - idx})")
            publish(v)
        a("s_waitcnt lgkmcnt(0)")
        stamp(3)
        a("s_branch L_fin" if only is None else "s_branch L_end")
    LO, LF = a.label("wO"), a.label("wF")
    a(f"s_cmp_lt_u32 s2, {ID_O}\ns_cbranch_scc1 {LO}\ns_cmp_ge_u32 s2, {ID_F}\ns_cbranch_scc1 {LF}")
    weights(False, False)
    a(f"{LO}:"); weights(True, False)
    a(f"{LF}:")
    if rot and rmul is None:
        LF2 = a.label("wF2")
        a(f"s_bitcmp1_b32 s56, 0\ns_cbranch_scc1 {LF2}")
        weights(False, True)
        a(f"{LF2}:"); weights(False, True, 18)
    else:
        weights(False, True)
    MK_G = 258 + order.index("g")
    MK_D = 258 + order.index("d")

    vTAG, vE, vXR, vLND, vCON, vPF_, vQ, vAK, vAV, vCNT, vONE, vM, vL, vPG = 16, 17, 18, 21, 22, 23, 24, 40, 44, 45, 46, 47, 48, 248
    vA, vF, vD, vSA, vS, vP, vO = 50, 58, 90, 98, 106, 138, 142
    PRE = [178, 210, vF][3-npre:] if npre else []
    vG = 106
    vPA, vXF, vXO, vPF2 = 246, 247, 23, 245
    sHK = "s57"
    WS, XS, WQS, OUTS = "s[28:31]", "s[32:35]", "s[36:39]", "s[40:43]"
    LOG2E = fhex(1.4426950408889634)
    def one(x): a(f"s_mov_b64 exec, 1\n{x}\ns_mov_b64 exec, -1")
    def arrive_last(cnt, notlast, n=4):
        a(f"s_mov_b64 exec, 1\nds_add_rtn_u32 v5, v{vCNT}, v{vONE} offset:{cnt}\ns_waitcnt lgkmcnt(0)\nv_readfirstlane_b32 s52, v5\ns_mov_b64 exec, -1")
        a(f"s_cmp_lg_u32 s52, {n-1}\ns_cbranch_scc1 {notlast}")
    def barrier(cnt, hw=False):
        if hw and hwbar:
            a("s_mov_b64 exec, -1\ns_waitcnt lgkmcnt(0)\ns_barrier")
            return
        G = a.label("go")
        a(f"s_mov_b64 exec, 1\nds_add_rtn_u32 v5, v{vCNT}, v{vONE} offset:{cnt}\ns_waitcnt lgkmcnt(0)\nv_readfirstlane_b32 s52, v5\ns_mov_b64 exec, -1")
        a(f"s_cmp_eq_u32 s52, 3\ns_cbranch_scc1 {G}")
        spin_lds(f"v{vCNT}", "v5", "s52", 4, off=cnt)
        a(f"{G}:")
    def red63(op, *vs):
        for m in ("row_ror:8", "row_ror:4", "row_ror:2", "row_ror:1"):
            for v in vs: a(f"{op}_dpp {v}, {v}, {v} {m} row_mask:0xf bank_mask:0xf")
        for v in vs: a(f"{op}_dpp {v}, {v}, {v} row_bcast:15 row_mask:0xa bank_mask:0xf")
        for v in vs: a(f"{op}_dpp {v}, {v}, {v} row_bcast:31 row_mask:0xc bank_mask:0xf")
    def red_par(op, v, t):
        for m in ("row_ror:8", "row_ror:4", "row_ror:2"):
            a(f"{op}_dpp {v}, {v}, {v} {m} row_mask:0xf bank_mask:0xf")
        a(f"v_mov_b32 {t}, {v}\nv_permlane16_swap_b32 {t}, {v}\n{op} {v}, {v}, {t}")
        a(f"v_mov_b32 {t}, {v}\nv_permlane32_swap_b32 {t}, {v}\n{op} {v}, {v}, {t}")
    def rnd2(x, y, t):
        a(f"v_cvt_pk_bf16_f32 {t}, {x}, {y}\nv_lshlrev_b32 {x}, 16, {t}\nv_and_b32 {y}, 0xffff0000, {t}")
    def rnd1(x):
        a(f"v_cvt_pk_bf16_f32 {x}, {x}, {x}\nv_and_b32 {x}, 0xffff0000, {x}")
    def tr4(*xs):
        for x in xs: a(f"v_permlane32_swap_b32 v{x}, v{x+1}\nv_permlane32_swap_b32 v{x+2}, v{x+3}")
        for x in xs: a(f"v_add_f32 v{x}, v{x}, v{x+1}\nv_add_f32 v{x+2}, v{x+2}, v{x+3}")
        for x in xs: a(f"v_permlane16_swap_b32 v{x}, v{x+2}")
        for x in xs: a(f"v_add_f32 v{x}, v{x}, v{x+2}")
    def ln_scale(mean, var, t):
        rnd2(mean, var, t)
        a(f"v_add_f32 {var}, {fhex(1e-5)}, {var}"); rnd1(var)
        a(f"v_sqrt_f32 {var}, {var}"); rnd1(var)
        a(f"v_rcp_f32 {var}, {var}")
    def retry(L):
        a(f"s_sub_u32 {sTO}, {sTO}, 1\ns_cbranch_scc1 L_end\ns_branch {L}")
    def pk(d, x, y): a(f"v_pk_add_f32 v[{d}:{d+1}], v[{x}:{x+1}], v[{y}:{y+1}]")
    def sum4(d, srcs):
        pk(d, srcs[0], srcs[1]); pk(d+2, srcs[0]+2, srcs[1]+2)
        for x in srcs[2:]: pk(d, d, x); pk(d+2, d+2, x+2)
    def poison_check(first, n, sums, L, OK):
        pk(4, sums[0], sums[0]+2)
        for x in sums[1:]: pk(4, 4, x); pk(4, 4, x+2)
        a(f"v_cmp_u_f32 vcc, v4, v5\ns_cbranch_vccz {OK}")
        if fastfail:
            a(f"s_mov_b64 exec, vcc\ns_sub_u32 {sTO}, {sTO}, 1\ns_cbranch_scc1 L_end\ns_and_b32 s52, {sTO}, 63\ns_cbranch_scc1 {L}")
        a(f"v_max_u32 v4, v{first}, v{first+1}")
        for i in range(2, n, 2): a(f"v_max3_u32 v4, v4, v{first+i}, v{first+i+1}")
        a(f"v_cmp_eq_u32 vcc, -1, v4\ns_cbranch_vccz {OK}\ns_mov_b64 exec, vcc")
        retry(L)
        a(f"{OK}:\ns_mov_b64 exec, -1")
    def next_unit():
        a(f"""s_add_u32 s58, s58, 4
        s_add_u32 s59, s59, {4*UNIT}
        s_cmp_ge_u32 s59, {RING}
        s_cselect_b32 s52, {RING}, 0
        s_sub_u32 s59, s59, s52""")
    def wait_unit():
        a("s_add_u32 s61, s58, 1")
        spin_lds(f"v{vLND}", "v4", "s52", "s61", 'w3' if sleep3 else sleep)
        if levels: a("s_mov_b32 s63, s52")
    def progress():
        if not levels: return
        assert not lvl2
        X0, X1 = a.label("pg"), a.label("pgx")
        G = vPG
        if pgper > 1: a(f"s_and_b32 s52, s60, {pgper-1}\ns_cbranch_scc1 {X1}")
        a(f"""s_lshr_b32 s52, {5 if pg2 else pubm}, s3
        s_bitcmp0_b32 s52, 0
        s_cbranch_scc1 {X0}
        s_add_u32 s52, s63, s97
        v_add_u32 v5, s52, v{vTAG}
        s_bfm_b64 exec, {tfull or 1}, 0
        buffer_store_dword v5, v{vPF2 if tfull else 7}, {WS}, s50 offen {pgstf}
        s_mov_b64 exec, -1
        {'' if (pubm >> pgw) & 1 else f's_branch {X1}'}
        {X0}:""")
        if not pg2: a(f"s_cmp_lg_u32 s3, {pgw}\ns_cbranch_scc1 {X1}")
        if tab:
            if tab == "atomic": ld = f"v_mov_b32 v{G}, 0\ns_bfm_b64 exec, 32, 0\nbuffer_atomic_or v{G}, v{vPA}, {WS}, s48 offen sc0\ns_mov_b64 exec, -1"
            else: ld = f"s_bfm_b64 exec, 32, 0\nbuffer_load_dword v{G}, v{vPA}, {WS}, s48 offen {tab}\ns_mov_b64 exec, -1"
            if pgimm: a(ld)
            a(f"s_waitcnt vmcnt(0)\nv_sub_u32 v5, v{G}, v{vTAG}")
            if not pgimm: a(ld)
            a(f"""v_readlane_b32 s52, v5, s55
            s_bfm_b64 exec, 32, 0
            v_cmp_gt_u32 vcc, 0x200, v5
            s_mov_b64 exec, -1
            v_subrev_u32 v5, s52, v5
            s_bcnt1_i32_b64 s61, vcc
            s_cmp_ge_u32 s52, 0x200
            s_cbranch_scc1 {X1}
            v_cndmask_b32 v5, v7, v5, vcc""")
            red63("v_add_u32", "v5")
        else:
            ld = f"v_lshlrev_b32 v4, 4, v1\nbuffer_load_dwordx4 v[{G}:{G+3}], v4, {WS}, s48 offen sc1"
            if pgimm: a(ld)
            a("s_waitcnt vmcnt(0)")
            for r in range(4): a(f"v_sub_u32 v{8+r}, v{G+r}, v{vTAG}")
            if not pgimm: a(ld)
            a(f"""v_cndmask_b32 v4, v8, v9, s[98:99]
            v_cndmask_b32 v5, v10, v11, s[98:99]
            v_cndmask_b32 v4, v4, v5, s[100:101]
            s_lshr_b32 s52, s2, 2
            v_readlane_b32 s52, v4, s52
            v_mov_b32 v5, 0
            s_mov_b32 s61, 0
            s_cmp_ge_u32 s52, 0x200
            s_cbranch_scc1 {X1}""")
            for r in range(4):
                a(f"""v_cmp_gt_u32 vcc, 0x200, v{8+r}
                v_subrev_u32 v{8+r}, s52, v{8+r}
                s_bcnt1_i32_b64 s96, vcc
                v_cndmask_b32 v{8+r}, v7, v{8+r}, vcc
                s_add_u32 s61, s61, s96
                v_add_u32 v5, v5, v{8+r}""")
            red63("v_add_u32", "v5")
        a(f"""v_readlane_b32 s96, v5, 63
        s_mov_b32 s53, {len(levels)//2 + 1}
        s_lshl_b32 s96, s96, 6""")
        if pgoff: a(f"s_mul_i32 s52, s61, {int(pgoff*64)}\ns_add_i32 s96, s96, s52")
        for k, t in enumerate(thr):
            a(f"""s_mul_i32 s52, s61, {int(t*64)}
            s_cmp_gt_i32 s96, s52
            s_cselect_b32 s53, {len(levels)//2 + 2 + k}, s53
            s_sub_i32 s52, 0, s52
            s_cmp_lt_i32 s96, s52
            s_cselect_b32 s53, {len(levels)//2 - k}, s53""")
        if rk:
            Y = a.label("rk")
            a(f"s_cmp_le_u32 s60, 32\ns_cbranch_scc1 {Y}\nds_read_b32 v5, v{vCNT} offset:{C_RK}\ns_waitcnt lgkmcnt(0)\nv_readfirstlane_b32 s52, v5\ns_mov_b32 s96, 0\ns_mov_b32 s61, 0")
            for lo, until in rk[0]: a(f"s_cmp_ge_u32 s52, {lo}\ns_cselect_b32 s96, {until}, s96")
            for hi, until in rk[1]: a(f"s_cmp_le_u32 s52, {hi}\ns_cselect_b32 s61, {until}, s61")
            a(f"""s_cmp_lt_u32 s60, s96
            s_addc_u32 s53, s53, 0
            s_cmp_lt_u32 s60, s61
            s_subb_u32 s53, s53, 0
            s_min_u32 s53, s53, {len(levels)}
            s_max_u32 s53, s53, 1
            {Y}:""")
        a(f"v_mov_b32 v5, s53")
        one(f"ds_write_b32 v{vCNT}, v5 offset:{C_LVL}")
        a(f"{X1}:")
    def notice(base_expr, lanes, stride):
        a(base_expr)
        if lanes == 1:
            one(f"buffer_store_dword v{vTAG}, v7, {WS}, s53 offen sc0 sc1")
        else:
            a(f"v_mul_u32_u24 v5, {stride}, v1\ns_bfm_b64 exec, {lanes}, 0\nbuffer_store_dword v{vTAG}, v5, {WS}, s53 offen sc0 sc1\ns_mov_b64 exec, -1")
    def notice_load(n, sreg):
        a(f"v_lshlrev_b32 v5, 7, v1\ns_bfm_b64 exec, {n}, 0\nbuffer_load_dword v{vSA}, v5, {WS}, {sreg} offen sc0 sc1\ns_mov_b64 exec, -1")
    def notice_wait(n, sreg, issued, delay):
        L, C, D = a.label("nw"), a.label("nc"), a.label("nd")
        a(f"v_lshlrev_b32 v{vSA+1}, 7, v1\ns_bfm_b64 exec, {n}, 0")
        if issued: a(f"s_branch {C}")
        a(f"""{L}:
        buffer_load_dword v{vSA}, v{vSA+1}, {WS}, {sreg} offen sc0 sc1
        {C}:
        s_waitcnt vmcnt(0)
        v_cmp_ne_u32 vcc, v{vSA}, v{vTAG}
        s_cbranch_vccz {D}
        s_mov_b64 exec, vcc""")
        retry(L)
        a(f"{D}:\ns_mov_b64 exec, -1")
        if delay: a(f"s_sleep {delay}")
    def k_read(F):
        for i in range(4): a(f"v_add_u32 v{vA+i}, s59, v{vAK+i}")
        for T in range(2):
            for i in range(4): a(f"ds_read_b128 v[{F+16*T+4*i}:{F+16*T+4*i+3}], v{vA+i} offset:{4096*T}")
        a(f"s_add_u32 s60, s60, 1\nv_mov_b32 v4, s60\ns_waitcnt lgkmcnt(0)\nds_write_b32 v{vCON}, v4")
    def k_mfma(F, between=None):
        for i in range(4):
            for T in range(2):
                c = "0" if i == 0 else f"v[{vD+4*T}:{vD+4*T+3}]"
                a(f"v_mfma_f32_16x16x32_bf16 v[{vD+4*T}:{vD+4*T+3}], v[{F+16*T+4*i}:{F+16*T+4*i+3}], v[{vQ+4*i}:{vQ+4*i+3}], {c}")
        if between: between()
        for r in range(8): a(f"v_cndmask_b32 v{vSA+r}, v{vSA+r}, v{vD+r}, s[46:47]")
        a("s_lshl_b64 s[46:47], s[46:47], 2")
    vB = vO + 4
    def v_addr():
        a(f"v_add_u32 v{vA}, s59, v{vAV}")
        for b in range(1, 8): a(f"v_xor_b32 v{vA+b}, {hex(32*b)}, v{vA}")
    def v_read(F):
        for b in range(8):
            for T in range(2): a(f"ds_read_b64_tr_b16 v[{F+4*b+2*T}:{F+4*b+2*T+1}], v{vA+b} offset:{4096*T}")
        a(f"s_add_u32 s60, s60, 1\nv_mov_b32 v4, s60")
    def v_mfma(F, waits):
        for b in range(8):
            if waits: a(f"s_waitcnt lgkmcnt({waits-2*b})")
            a(f"v_mfma_f32_16x16x32_bf16 v[{vO}:{vO+3}], v[{F+4*b}:{F+4*b+3}], v[{vB+4*b}:{vB+4*b+3}], v[{vO}:{vO+3}]")
    def p_spread():
        for r in range(4): a(f"v_cndmask_b32 v{vB+r}, v7, v{vP+r}, s[46:47]")
        for b in range(1, 8):
            for r in range(4): a(f"v_mov_b32_dpp v{vB+4*b+r}, v{vB+r} row_shr:{2*b} row_mask:0xf bank_mask:0xf bound_ctrl:0")
    def p_shift():
        for r in range(4): a(f"v_mov_b32_dpp v{vP+r}, v{vP+r} row_shl:2 row_mask:0xf bank_mask:0xf")
    def make_p():
        for r in range(8): a(f"v_sub_f32 v{vSA+r}, v{vS+r}, v{vM}")
        for r in range(8): a(f"v_mul_f32 v{vSA+r}, {LOG2E}, v{vSA+r}")
        for r in range(8): a(f"v_exp_f32 v{vSA+r}, v{vSA+r}")
        for r in range(8): a(f"v_mul_f32 v{vSA+r}, v{vSA+r}, v{vL}")
        for r in range(4): a(f"v_cvt_pk_bf16_f32 v{vP+r}, v{vSA+2*r}, v{vSA+2*r+1}")
        for r in range(24): a(f"v_mov_b32 v{vS+r}, v{vS+8+r}")

    WQ, X4, X = 106, 124, 130
    a("; ---- compute waves: start-up, LayerNorm, query tile")
    a(f"""L_cons:
    s_sub_u32 s3, s3, 1
    s_lshr_b32 {sHK}, s1, 4
    v_lshlrev_b32 v4, 4, v1
    v_lshlrev_b32 v5, 1, v1
    v_lshlrev_b32 v6, 13, v2
    v_lshl_add_u32 v6, v3, 3, v6
    s_and_b32 s52, s1, 3
    s_mul_i32 s58, s52, 144
    s_mul_i32 s53, s3, 36
    s_add_u32 s58, s58, s53
    s_lshl_b32 s52, s58, 13
    s_lshr_b32 s53, s1, 2
    s_lshl_b32 s53, s53, 7
    s_add_u32 s59, s52, s53
    s_sub_u32 s60, {576*8192}, s59
    v_mov_b32 v7, 0
    s_waitcnt lgkmcnt(0)""")
    srd(32, 4, 5, "1152")
    srd(36, 10, 11, "0" if nowq else "s60", "s59")
    a(f"""buffer_load_dwordx4 v[{X4}:{X4+3}], v4, {XS}, 0 offen
    buffer_load_ushort v{X4+4}, v5, {XS}, 0 offen offset:1024
    s_mov_b32 s52, 0""")
    for k in range(9):
        a(f"buffer_load_dwordx2 v[{WQ+2*k}:{WQ+1+2*k}], v6, {WQS}, s52 offen {polQ}")
        if k < 8: a("s_add_u32 s52, s52, 32768")
    srd(28, 26, 27, hex(WS_SZ))
    a(f"buffer_load_dword v{vTAG}, v7, {WS}, 0 offen offset:{O_E} sc0 sc1")
    roles()
    RST = -(-(O_P3 + 144*2304 - O_OP) // 256 // 128) * 128
    assert O_P2 + 8 * P2C == O_P3 and RST <= 3072 and O_OP + 256 * RST <= O_PG
    a(f"""v_mov_b32 v12, -1
    v_mov_b32 v13, -1
    v_mov_b32 v14, -1
    v_mov_b32 v15, -1
    s_lshl_b32 s53, s3, 10
    v_add_u32 v9, s53, v4
    s_mul_i32 s52, s2, {RST}
    s_add_u32 s52, s52, {O_OP}
    v_cmp_gt_u32 vcc, {RST if poison else 0}, v9
    v_add_u32 v9, s52, v9
    v_mov_b32 v8, {OOB}
    v_cndmask_b32 v9, v8, v9, vcc
    buffer_store_dwordx4 v[12:15], v9, {WS}, 0 offen sc0 sc1""")
    LZ = a.label("nz")
    a(f"""v_lshlrev_b32 v{vLND}, 2, v1
    v_add_u32 v{vLND}, {L_LANDED}, v{vLND}
    s_cmp_lg_u32 s3, 0
    s_cbranch_scc1 {LZ}""")
    for i in range(6): a(f"ds_write_b32 v{vLND}, v7 offset:{256*i}")
    a(f"s_waitcnt lgkmcnt(0)\n{LZ}:\ns_barrier")
    srd(40, 22, 23, "1152")
    a(f"""s_lshl_b32 s52, s3, 8
    s_add_u32 s52, s52, 256
    v_add_u32 v{vCON}, s52, v{vLND}
    v_mov_b32 v{vCNT}, {L_CNT}
    v_mov_b32 v{vONE}, 1
    v_and_b32 v8, 1, v2
    v_lshlrev_b32 v8, 1, v8
    v_lshrrev_b32 v9, 1, v2
    v_or_b32 v8, v8, v9
    v_lshl_add_u32 v{vE}, v3, 2, v8
    s_mov_b32 s44, 0x000f000f
    s_mov_b32 s45, 0x000f000f
    v_and_b32 v8, 7, v3
    v_lshlrev_b32 v8, 1, v8
    v_xor_b32 v8, v8, v2
    v_lshlrev_b32 v8, 4, v8
    v_lshl_add_u32 v{vAK}, v3, 8, v8
    v_xor_b32 v{vAK+1}, 64, v{vAK}
    v_xor_b32 v{vAK+2}, 0x80, v{vAK}
    v_xor_b32 v{vAK+3}, 0xc0, v{vAK}
    v_lshrrev_b32 v8, 2, v1
    v_and_b32 v9, 7, v8
    v_lshlrev_b32 v9, 5, v9
    v_lshl_add_u32 v9, v8, 8, v9
    v_and_b32 v8, 3, v1
    v_lshl_add_u32 v{vAV}, v8, 3, v9""")
    a("s_waitcnt vmcnt(11)")
    stamp(1)
    for i in range(4):
        a(f"v_lshlrev_b32 v{X+2*i}, 16, v{X4+i}\nv_and_b32 v{X+2*i+1}, 0xffff0000, v{X4+i}")
    a(f"v_lshlrev_b32 v{X+8}, 16, v{X4+4}")
    pk(8, X, X+2); pk(10, X+4, X+6); pk(8, 8, 10)
    a(f"v_add_f32 v8, v8, v9\nv_add_f32 v8, v8, v{X+8}")
    red63("v_add_f32", "v8")
    a(f"v_readlane_b32 s52, v8, 63\nv_mov_b32 v8, {fhex(1/576)}\nv_mul_f32 v8, s52, v8")
    a(f"v_sub_f32 v10, v{X}, v8\nv_mul_f32 v9, v10, v10")
    for i in range(1, 9): a(f"v_sub_f32 v10, v{X+i}, v8\nv_fmac_f32 v9, v10, v10")
    red63("v_add_f32", "v9")
    a(f"v_readlane_b32 s52, v9, 63\nv_mov_b32 v9, {fhex(1/576)}\nv_mul_f32 v9, s52, v9")
    ln_scale("v8", "v9", "v10")
    for i in range(9): a(f"v_sub_f32 v{X+i}, v{X+i}, v8")
    for i in range(0, 8, 2): rnd2(f"v{X+i}", f"v{X+i+1}", "v10")
    rnd1(f"v{X+8}")
    for i in range(9): a(f"v_mul_f32 v{X+i}, v{X+i}, v9")
    for i in range(0, 8, 2): rnd2(f"v{X+i}", f"v{X+i+1}", "v10")
    rnd1(f"v{X+8}")
    a(f"""v_lshlrev_b32 v8, 5, v1
    v_add_u32 v8, {L_XN}, v8
    ds_write_b128 v8, v[{X}:{X+3}]
    ds_write_b128 v8, v[{X+4}:{X+7}] offset:16
    v_lshlrev_b32 v8, 2, v1
    v_add_u32 v8, {L_XN+2048}, v8
    ds_write_b32 v8, v{X+8}
    v_add_u32 v8, s58, v2
    v_lshlrev_b32 v8, 2, v8
    v_add_u32 v8, {L_XN}, v8
    s_waitcnt lgkmcnt(0)""")
    for k in range(9): a(f"ds_read_b32 v{X+k}, v8 offset:{16*k}")
    for i in range(4): a(f"v_mov_b32 v{12+i}, 0")
    a(f"""s_lshl_b32 s52, s3, 8
    s_add_u32 s52, s52, {L_QRED}
    v_lshl_add_u32 v6, v{vE}, 2, s52
    s_waitcnt lgkmcnt(0)""")
    for k in range(9):
        w = WQ + 2*k
        a(f"""s_waitcnt vmcnt({10-k})
        v_lshlrev_b32 v8, 16, v{w}
        v_and_b32 v9, 0xffff0000, v{w}
        v_lshlrev_b32 v10, 16, v{w+1}
        v_and_b32 v11, 0xffff0000, v{w+1}
        v_fmac_f32 v12, v8, v{X+k}
        v_fmac_f32 v13, v9, v{X+k}
        v_fmac_f32 v14, v10, v{X+k}
        v_fmac_f32 v15, v11, v{X+k}""")
    tr4(12)
    a(f"""ds_write_b32 v6, v12
    s_waitcnt vmcnt(1)
    v_add_u32 v{vTAG}, {hex(TAGC)}, v{vTAG}""")
    NL = a.label("qnl")
    arrive_last(C_Q, NL)
    a(f"""v_lshlrev_b32 v8, 2, v1
    v_add_u32 v8, {L_QRED}, v8
    ds_read_b32 v12, v8
    ds_read_b32 v13, v8 offset:256
    ds_read_b32 v14, v8 offset:512
    ds_read_b32 v15, v8 offset:768
    s_lshl_b32 s52, s1, 9
    s_add_u32 s52, s52, {O_QX}
    v_lshlrev_b32 v8, 3, v1
    s_waitcnt lgkmcnt(0)
    v_add_f32 v12, v12, v13
    v_add_f32 v14, v14, v15
    v_add_f32 v12, v12, v14
    v_mov_b32 v13, v{vTAG}
    {'s_nop 0' if noqs else f'buffer_store_dwordx2 v[12:13], v8, {WS}, s52 offen sc0 sc1'}""")
    a(f"{NL}:")
    stamp(2)
    a(f"""s_mov_b32 s58, s3
    s_lshl_b32 s59, s3, 13
    s_mov_b32 s60, 0
    s_mov_b32 s46, 0x00030003
    s_mov_b32 s47, 0x00030003
    v_mov_b32 v{vM}, {fhex(-3.0e38)}
    v_mov_b32 v{vL}, 0""")
    if levels:
        a(f"""s_getreg_b32 s49, hwreg(HW_REG_XCC_ID, 0, 3)
        s_lshl_b32 s48, s49, 12
        s_add_u32 s48, s48, {O_PG}
        s_lshl_b32 s50, {'s55' if tab else 's2'}, {tsh}
        s_add_u32 s50, s50, s48
        v_lshlrev_b32 v{vPA}, {tsh}, v1
        v_lshlrev_b32 v{vPF2}, 2, v1
        s_cmp_lt_u32 s2, {ID_O}
        s_cselect_b32 s97, {8 - obias}, 8
        s_cmp_ge_u32 s2, {ID_F}
        s_cselect_b32 s97, {8 - fbias}, s97
        s_bitcmp1_b32 s2, 0
        s_cselect_b64 s[98:99], -1, 0
        s_bitcmp1_b32 s2, 1
        s_cselect_b64 s[100:101], -1, 0""")
        for r in range(6): a(f"v_add_u32 v{vPG+r}, 0x800, v{vTAG}")
    for F in PRE:
        wait_unit(); k_read(F); next_unit()
        if pgpre & 1: progress()
    LQ, LQD = a.label("qg"), a.label("qgd")
    a(f"""s_lshl_b32 s52, {sHK}, 13
    s_lshl_b32 s53, s3, 11
    s_add_u32 s61, s52, s53
    s_add_u32 s61, s61, {O_QX}
    v_lshlrev_b32 v8, 3, v1""")
    LQW = a.label("qw")
    if q1 is not None:
        for k in range(4): a(f"buffer_load_dwordx2 v[{WQ+2*k}:{WQ+1+2*k}], v8, {WS}, s61 offen offset:{512*k} {q1}")
        a(f"s_branch {LQW}")
    a(f"{LQ}:")
    if noqg: a(f"s_branch {LQD}")
    for k in range(4): a(f"buffer_load_dwordx2 v[{WQ+2*k}:{WQ+1+2*k}], v8, {WS}, s61 offen offset:{512*k} sc0 sc1")
    a(f"""{LQW}:
    s_waitcnt vmcnt(0)
    v_xor_b32 v12, v{WQ+1}, v{vTAG}
    v_xor_b32 v13, v{WQ+3}, v{vTAG}
    v_xor_b32 v14, v{WQ+5}, v{vTAG}
    v_xor_b32 v15, v{WQ+7}, v{vTAG}
    v_or3_b32 v12, v12, v13, v14
    v_or_b32 v12, v12, v15
    v_cmp_ne_u32 vcc, 0, v12
    s_cbranch_vccz {LQD}""")
    retry(LQ)
    a(f"""{LQD}:
    v_add_f32 v12, v{WQ}, v{WQ+2}
    v_add_f32 v13, v{WQ+4}, v{WQ+6}
    v_add_f32 v12, v12, v13
    v_cvt_pk_bf16_f32 v12, v12, v12
    s_lshl_b32 s52, s3, 7
    s_add_u32 s52, s52, {L_Q}
    v_lshl_add_u32 v8, v1, 1, s52
    ds_write_b16 v8, v12
    v_and_b32 v8, 1, v3
    v_lshlrev_b32 v8, 8, v8
    v_lshl_add_u32 v8, v2, 4, v8
    v_add_u32 v8, {L_Q}, v8""")
    barrier(C_Q2)
    for i in range(4): a(f"ds_read_b128 v[{vQ+4*i}:{vQ+4*i+3}], v8 offset:{64*i}")
    stamp(3)
    a(f"""s_mul_i32 s52, s3, 144
    v_add_u32 v8, s52, v{vE}
    v_lshlrev_b32 v8, 1, v8
    v_mov_b32 v9, {OOB}
    v_cndmask_b32 v10, v9, v8, s[44:45]
    buffer_load_ushort v{vXR}, v8, {XS}, 0 offen
    buffer_load_ushort v{vXR+1}, v8, {XS}, 0 offen offset:128
    buffer_load_ushort v{vXR+2}, v10, {XS}, 0 offen offset:256""")
    a(f"""s_sub_u32 s52, s2, {ID_O}
    s_lshl_b32 s52, s52, 4
    v_and_b32 v8, 15, v{vE}
    v_add_u32 v8, s52, v8
    v_lshlrev_b32 v8, 1, v8
    v_min_u32 v{vXO}, {OOB}, v8
    buffer_load_ushort v{vXF}, v{vXO}, {XS}, 0 offen
    s_waitcnt lgkmcnt(0)""")
    for F in PRE: k_mfma(F)
    a("; ---- K pass")
    LK, LKE = a.label("kl"), a.label("ke")
    a(f"{LK}:")
    wait_unit(); k_read(vF); k_mfma(vF, next_unit); progress()
    a(f"""s_and_b32 s52, s60, 7
    s_cbranch_scc1 {LK}
    s_mov_b32 s46, 0x00030003
    s_mov_b32 s47, 0x00030003""")
    for r in range(24): a(f"v_mov_b32 v{vS+r}, v{vS+8+r}")
    for r in range(0, 8, 2): rnd2(f"v{vSA+r}", f"v{vSA+r+1}", "v4")
    N = vS + 24
    for r in range(8): a(f"v_mul_f32 v{N+r}, {fhex(128**-0.5)}, v{vSA+r}")
    for r in range(0, 8, 2): rnd2(f"v{N+r}", f"v{N+r+1}", "v4")
    a(f"v_max3_f32 v8, v{vM}, v{N}, v{N+1}")
    for r in range(2, 8, 2): a(f"v_max3_f32 v8, v8, v{N+r}, v{N+r+1}")
    a(f"v_sub_f32 v9, v{vM}, v8\nv_mov_b32 v{vM}, v8")
    for r in range(8): a(f"v_sub_f32 v{vSA+r}, v{N+r}, v8")
    a(f"v_mul_f32 v9, {LOG2E}, v9")
    for r in range(8): a(f"v_mul_f32 v{vSA+r}, {LOG2E}, v{vSA+r}")
    a("v_exp_f32 v9, v9")
    for r in range(8): a(f"v_exp_f32 v{vSA+r}, v{vSA+r}")
    a(f"v_mul_f32 v{vL}, v{vL}, v9")
    pk(vSA, vSA, vSA+2); pk(vSA+4, vSA+4, vSA+6); pk(vSA, vSA, vSA+4)
    a(f"v_add_f32 v{vL}, v{vL}, v{vSA}\nv_add_f32 v{vL}, v{vL}, v{vSA+1}")
    a(f"s_cmp_lg_u32 s60, 32\ns_cbranch_scc1 {LK}")
    stamp(4)
    a("; ---- softmax statistics")
    a(f"v_mov_b32 v8, v{vM}")
    red_par("v_max_f32", "v8", "v4")
    a(f"""v_sub_f32 v9, v{vM}, v8
    v_mul_f32 v9, {LOG2E}, v9
    v_exp_f32 v9, v9
    s_lshl_b32 s53, s3, 4
    s_add_u32 s53, s53, {L_ST}
    v_mul_f32 v9, v9, v{vL}""")
    red_par("v_add_f32", "v9", "v4")
    LM, LMD, NL = a.label("ml"), a.label("mld"), a.label("mnl")
    a(f"""v_lshlrev_b32 v6, 3, v1
    v_add_u32 v4, s53, v6
    s_mov_b64 exec, 3
    ds_write_b64 v4, v[8:9]""")
    arrive_last(C_R, NL)
    a(f"""v_add_u32 v4, {L_ST}, v6
    s_mov_b64 exec, 3""")
    for w in range(4): a(f"ds_read_b64 v[{vSA+2*w}:{vSA+2*w+1}], v4 offset:{16*w}")
    a(f"""s_lshl_b32 s53, s1, 5
    s_add_u32 s53, s53, {O_ML}
    v_lshlrev_b32 v6, 4, v1
    v_mov_b32 v14, v{vTAG}
    v_mov_b32 v15, v{vTAG}
    s_waitcnt lgkmcnt(0)
    v_max_f32 v12, v{vSA}, v{vSA+2}
    v_max3_f32 v12, v12, v{vSA+4}, v{vSA+6}""")
    for w in range(4): a(f"v_sub_f32 v{vSA+2*w}, v{vSA+2*w}, v12")
    for w in range(4): a(f"v_mul_f32 v{vSA+2*w}, {LOG2E}, v{vSA+2*w}")
    for w in range(4): a(f"v_exp_f32 v{vSA+2*w}, v{vSA+2*w}")
    a(f"v_mul_f32 v13, v{vSA}, v{vSA+1}")
    for w in range(1, 4): a(f"v_fmac_f32 v13, v{vSA+2*w}, v{vSA+2*w+1}")
    a(f"""buffer_store_dwordx4 v[12:15], v6, {WS}, s53 offen sc0 sc1
    s_mov_b64 exec, -1""")
    if peekm is not None:
        a(f"""s_lshl_b32 s53, {sHK}, 9
        s_add_u32 s53, s53, {O_ML}
        v_lshlrev_b32 v6, 5, v1
        s_bfm_b64 exec, 16, 0
        buffer_load_dword v12, v6, {WS}, s53 offen offset:8 {peekm}
        s_waitcnt vmcnt(0)
        v_cmp_eq_u32 vcc, v12, v{vTAG}
        s_bcnt1_i32_b64 s52, vcc
        s_mov_b64 exec, -1
        v_mov_b32 v12, s52""")
        one(f"ds_write_b32 v{vCNT}, v12 offset:{C_RK}")
    a(f"{NL}:")
    for r in range(4): a(f"v_mov_b32 v{vO+r}, 0")
    per = 1152 // pfg
    npf = (pf_rows * per + 63) // 64
    a(f"""s_lshr_b32 s52, s2, 3
    s_mul_i32 s52, s52, 18
    s_lshr_b32 s53, s3, 1
    s_mul_i32 s53, s53, 9
    s_add_u32 s52, s52, s53
    s_mul_i32 s52, s52, 9216
    s_and_b32 s53, s2, 7
    s_mul_i32 s53, s53, 1152
    s_add_u32 s52, s52, s53
    s_bitcmp1_b32 s3, 0
    s_cselect_b32 s34, s18, s16
    s_cselect_b32 s35, s19, s17""")
    srd(32, 34, 35, str((pf_rows-1)*9216 + 1152), "s52")
    for F in PRE:
        v_addr(); wait_unit(); v_read(F); a(f"s_waitcnt lgkmcnt(0)\nds_write_b32 v{vCON}, v4"); next_unit()
        if pgpre & 2: progress()
    a(f"""v_and_b32 v6, 31, v1
    v_lshlrev_b32 v6, 4, v6
    s_lshl_b32 s53, {sHK}, 9
    s_add_u32 s53, s53, {O_ML}
    {LM}:
    buffer_load_dwordx4 v[12:15], v6, {WS}, s53 offen sc0 sc1
    s_waitcnt vmcnt(0)
    v_cmp_ne_u32 vcc, v14, v{vTAG}
    s_cbranch_vccz {LMD}
    s_mov_b64 exec, vcc""")
    retry(LM)
    a(f"{LMD}:\ns_mov_b64 exec, -1")
    stamp(5)
    a(f"v_mov_b32 v{vM}, v12")
    red_par("v_max_f32", f"v{vM}", "v4")
    a(f"""v_sub_f32 v12, v12, v{vM}
    v_mul_f32 v12, {LOG2E}, v12
    v_exp_f32 v12, v12
    v_mul_f32 v13, 0.5, v13
    v_mul_f32 v9, v13, v12""")
    red_par("v_add_f32", "v9", "v4")
    a(f"""v_rcp_f32 v10, v9
    v_fma_f32 v11, -v9, v10, 1.0
    v_fma_f32 v{vL}, v11, v10, v10""")
    stamp(6)
    a("; ---- V pass")
    LVG, LV, LVE, LNS = a.label("vg"), a.label("vl"), a.label("ve"), a.label("ns")
    a(f"""s_mov_b32 s46, 0x00030003
    s_mov_b32 s47, 0x00030003
    v_and_b32 v8, 1, v3
    v_lshlrev_b32 v8, 9, v8
    v_lshrrev_b32 v9, 1, v3
    v_lshl_add_u32 v8, v9, 6, v8
    v_lshl_add_u32 v{vQ+14}, v2, 4, v8
    v_add_u32 v8, {L_ORED}, v{vQ+14}""")
    for k in range(4):
        a(f"s_xor_b32 s52, s3, {k}\ns_lshl_b32 s52, s52, 10\nv_add_u32 v{vQ+10+k}, s52, v8")
    make_p()
    for F in PRE: p_spread(); v_mfma(F, 0); p_shift()
    a(f"s_branch {LV}\n{LVG}:")
    LR, LRD, LRX, LRY = a.label("rdy"), a.label("rdyd"), a.label("rdyx"), a.label("rdyy")
    a(f"""s_cmp_lg_u32 s60, {rdyat}
    s_cbranch_scc1 {LRX}
    s_cmp_lg_u32 s3, 1
    s_cbranch_scc1 {LRY}
    v_lshlrev_b32 v4, 5, v1
    s_mov_b32 s52, {O_ML}
    s_mov_b32 s53, {O_ML + 4096}
    {f's_branch {LRD}' if nordy else ''}
    {LR}:
    buffer_load_dword v12, v4, {WS}, s52 offen offset:8 sc0 sc1
    buffer_load_dword v13, v4, {WS}, s52 offen offset:2056 sc0 sc1
    buffer_load_dword v14, v4, {WS}, s53 offen offset:8 sc0 sc1
    buffer_load_dword v15, v4, {WS}, s53 offen offset:2056 sc0 sc1
    s_waitcnt vmcnt(0)
    v_xor_b32 v12, v12, v{vTAG}
    v_xor_b32 v13, v13, v{vTAG}
    v_xor_b32 v14, v14, v{vTAG}
    v_xor_b32 v15, v15, v{vTAG}
    v_or3_b32 v12, v12, v13, v14
    v_or_b32 v12, v12, v15
    v_cmp_ne_u32 vcc, 0, v12
    s_cbranch_vccz {LRD}""")
    retry(LR)
    a(f"{LRD}:")
    one(f"ds_write_b32 v{vCNT}, v{vONE} offset:{C_RD}")
    a(f"""s_cmp_lg_u32 s2, 0
    s_cbranch_scc1 {LRY}
    v_subrev_u32 v12, {hex(TAGC-0x1000)}, v{vTAG}""")
    one(f"buffer_store_dword v12, v7, {WS}, 0 offen offset:{O_E} sc0 sc1")
    a(f"s_branch {LRY}\n{LRX}:\ns_cmp_lg_u32 s60, 56\ns_cbranch_scc1 {LRY}")
    spin_lds(f"v{vCNT}", "v5", "s52", 1, 1, off=C_RD)
    a(f"{LRY}:")
    make_p()
    a(f"{LV}:")
    p_spread(); v_addr()
    a(f"s_cmp_eq_u32 s60, 63\ns_cbranch_scc1 {LVE}")
    wait_unit(); v_read(vF); v_mfma(vF, 14)
    a(f"ds_write_b32 v{vCON}, v4")
    next_unit(); p_shift(); progress()
    if icw:
        X, H = a.label("ic"), a.label("ich")
        a(f"""s_cmp_lg_u32 s60, {icw}
        s_cbranch_scc1 {X}
        s_cmp_lg_u32 s3, 1
        s_cbranch_scc1 {X}
        {'' if icall else f's_cmp_lg_u32 s55, 9'}
        {'' if icall else f's_cbranch_scc1 {X}'}
        s_getpc_b64 s[52:53]
        {H}:
        s_sub_u32 s52, s52, {H}-{KN}_kernel
        s_subb_u32 s53, s53, 0
        v_lshlrev_b32 v8, 7, v1""")
        for i in range(4):
            a(f"""v_cmp_gt_u32 vcc, L_end-{KN}_kernel, v8
            s_and_saveexec_b64 s[98:99], vcc
            s_cbranch_execz {X}_e
            global_load_dword v{vQ}, v8, s[52:53]
            v_add_u32 v8, 0x2000, v8""".replace("s[98:99]", "s[34:35]" if False else "vcc"))
        a(f"{X}_e:\ns_mov_b64 exec, -1\n{X}:")
    if tk:
        X = a.label("tk")
        a(f"s_cmp_lg_u32 s60, {tk}\ns_cbranch_scc1 {X}\ns_cmp_lg_u32 s3, 1\ns_cbranch_scc1 {X}")
        srd(36, 24, 25, "256")
        a(f"v_mov_b32 v{vQ+12}, 1")
        one(f"buffer_atomic_add v{vQ+12}, v7, s[36:39], 0 offen sc0 sc1")
        a(f"{X}:")
    def prefetch():
        for i in range(npf):
            a(f"""v_add_u32 v8, {64*i}, v1
            v_mul_u32_u24 v9, {-(-65536 // per)}, v8
            v_lshrrev_b32 v9, 16, v9
            v_mul_u32_u24 v10, {per}, v9
            v_sub_u32 v10, v8, v10
            v_mul_u32_u24 v9, 9216, v9
            v_mul_u32_u24 v10, {pfg}, v10
            v_add_u32 v9, v9, v10
            buffer_load_dword v{vQ}, v9, s[32:35], 0 offen""")
    if pf_at and pf_at < 64:
        a(f"s_cmp_lg_u32 s60, {pf_at}\ns_cbranch_scc1 {LNS}")
        prefetch()
    a(f"""{LNS}:
    s_and_b32 s52, s60, 7
    s_cbranch_scc1 {LV}
    s_branch {LVG}
    {LVE}:""")
    NX = a.label("ox")
    a(f"""s_lshl_b32 s96, s1, 10
    s_add_u32 s96, s96, {O_OP}""")
    wait_unit(); v_read(vF); v_mfma(vF, 14)
    stamp(7)
    a(f"""ds_write_b32 v{vCON}, v4
    ds_write_b128 v{vQ+10}, v[{vO}:{vO+3}]
    s_mov_b64 exec, 1
    ds_add_rtn_u32 v5, v{vCNT}, v{vONE} offset:{C_O}
    s_mov_b64 exec, -1""")
    for w in range(3): a(f"ds_read_b128 v[{vG+4*w}:{vG+4*w+3}], v{vQ+11+w}")
    a(f"""s_waitcnt lgkmcnt(3)
    v_readfirstlane_b32 s52, v5
    s_cmp_lg_u32 s52, 3
    s_waitcnt lgkmcnt(0)
    s_cbranch_scc1 {NX}""" if not diag else f"""s_waitcnt lgkmcnt(0)
    v_readfirstlane_b32 s52, v5
    s_cmp_lg_u32 s52, 3
    s_cbranch_scc1 {NX}""")
    pk(vG+4, vG+4, vG+8); pk(vG+6, vG+6, vG+10); pk(vG, vG, vO); pk(vG+2, vG+2, vO+2); pk(12, vG, vG+4); pk(14, vG+2, vG+6)
    for r in range(4): a(f"v_min_u32 v{12+r}, -2, v{12+r}")
    a(f"buffer_store_dwordx4 v[12:15], v{vQ+14}, {WS}, s96 offen sc0 sc1")
    if (holdS, holdF, holdO) != (None, None, None): one(f"ds_write_b32 v{vCNT}, v{vONE} offset:{C_OP}")
    a(f"{NX}:")
    stamp(8)
    LNO, LNF = a.label("noO"), a.label("noF")
    a(f"""s_cmp_ge_u32 s2, {ID_F}
    s_cbranch_scc1 {LNO}
    s_cmp_ge_u32 s2, {ID_O}
    s_cbranch_scc1 {LNF}""")
    AO, BO, GO, SO = 176, 106, 58, 90
    a(f"""v_lshlrev_b32 v10, 12, v2
    v_lshl_add_u32 v10, v3, 4, v10
    s_lshl_b32 s58, s54, 15
    s_lshr_b32 s52, s3, 1
    s_lshl_b32 s52, s52, 14
    s_add_u32 s58, s58, s52
    s_and_b32 s52, s3, 1
    s_lshl_b32 s52, s52, 9
    s_add_u32 s58, s58, s52
    s_add_u32 s58, s58, {O_OP}
    v_lshrrev_b32 v8, 2, v3
    v_lshl_add_u32 v8, v2, 3, v8
    v_lshlrev_b32 v8, 7, v8
    v_and_b32 v9, 3, v3
    v_lshl_add_u32 v8, v9, 3, v8
    v_lshrrev_b32 v9, 3, v3
    v_lshlrev_b32 v12, 1, v2
    v_and_b32 v12, 2, v12
    v_or_b32 v9, v9, v12
    v_xor_b32 v9, s3, v9
    v_lshl_add_u32 v8, v9, 5, v8
    v_add_u32 v8, {WO_L}, v8
    s_lshl_b32 s52, s3, 8
    s_add_u32 s52, s52, {L_OB}
    v_lshl_add_u32 v6, v{vE}, 1, s52
    v_lshlrev_b32 v9, 4, v2
    v_add_u32 v11, {L_OB}, v9
    v_mul_u32_u24 v12, {P2C}, v3
    v_add_u32 v9, v9, v12
    s_mov_b32 s50, 0x00ff00ff
    s_mov_b32 s51, 0x00ff00ff
    s_mul_i32 s59, s54, 2304
    s_lshl_b32 s53, s55, 8
    s_add_u32 s59, s59, s53
    s_lshl_b32 s53, s3, 6
    s_add_u32 s59, s59, s53
    s_add_u32 s59, s59, {O_P2}
    s_getreg_b32 s60, hwreg(HW_REG_XCC_ID, 0, 3)
    s_lshl_b32 s60, s60, 10
    s_lshl_b32 s53, s2, 2
    s_add_u32 s60, s60, s53
    s_add_u32 s60, s60, {O_H2}
    s_movk_i32 s61, 257""")
    L1, L1D, L1W = a.label("h1"), a.label("h1d"), a.label("h1w")
    def h1_loads():
        for hh in range(2):
            for k in range(4): a(f"buffer_load_dwordx4 v[{GO+16*hh+4*k}:{GO+16*hh+4*k+3}], v10, {WS}, s58 offen offset:{1024*k + 256*hh} sc0 sc1")
    def frags_if(mark, done, body):
        X = a.label("fx")
        a(f"""s_cmp_lg_u32 {done}, 0
        s_cbranch_scc1 {X}
        ds_read_b32 v4, v{vLND}
        s_waitcnt lgkmcnt(0)
        v_readfirstlane_b32 s52, v4
        s_cmp_lt_i32 s52, {mark}
        s_cbranch_scc1 {X}
        s_mov_b64 s[46:47], exec
        s_mov_b64 exec, -1""")
        body()
        a(f"s_mov_b64 exec, s[46:47]\ns_mov_b32 {done}, 1\n{X}:")
    def frags_must(mark, done, body):
        X = a.label("fm")
        a(f"s_cmp_lg_u32 {done}, 0\ns_cbranch_scc1 {X}\ns_movk_i32 s61, {mark}")
        spin_lds(f"v{vLND}", "v4", "s52", "s61")
        body()
        a(f"{X}:")
    def wo_frags():
        for s_ in range(16):
            for h in range(2):
                r = AO + 4*s_ + 2*h
                a(f"ds_read_b64_tr_b16 v[{r}:{r+1}], v8 offset:{4096*s_ + 512*h}")
    if hu:
        a(f"s_lshl_b32 s60, s54, 12\ns_add_u32 s60, s60, {O_H1}")
        spin_lds(f"v{vCNT}", "v4", "s52", 1, off=C_IS)
        notice_load(32, "s60")
        spin_lds(f"v{vLND}", "v4", "s52", "s61")
        wo_frags()
        notice_wait(32, "s60", True, d1)
        stamp(11)
    else:
        if e1:
            spin_lds(f"v{vCNT}", "v4", "s52", 1, off=C_IS)
            h1_loads()
        spin_lds(f"v{vLND}", "v4", "s52", "s61")
        stamp(11); cnt0()
        if not e1: h1_loads()
        wo_frags()
        a(f"s_branch {L1W}")
    a(f"{L1}:")
    h1_loads()
    a(f"{L1W}:")
    for hh in range(2):
        a(f"s_waitcnt vmcnt({4-4*hh})")
        sum4(SO + 4*hh, [GO + 16*hh + 4*k for k in range(4)])
    poison_check(GO, 32, [SO, SO+4], L1, L1D)
    stamp(9); cnt1(12)
    if loc2 == "h1":
        X = a.label("l2")
        a(f"""s_cmp_lg_u32 s3, 0
        s_cbranch_scc1 {X}
        s_getreg_b32 s52, hwreg(HW_REG_XCC_ID, 0, 3)
        s_lshl_b32 s52, s52, 10
        s_lshl_b32 s53, s2, 2
        s_add_u32 s52, s52, s53
        s_add_u32 s52, s52, {O_H2}
        s_mov_b64 exec, 1
        buffer_store_dword v{vTAG}, v7, {WS}, s52 offen {locst}
        s_mov_b64 exec, -1
        {X}:""")
    if hu:
        X = a.label("hu")
        a(f"s_or_b32 s52, s55, s3\ns_cbranch_scc1 {X}")
        notice(f"s_lshl_b32 s53, s54, 7\ns_add_u32 s53, s53, {O_H2}", 8, 1024)
        a(f"{X}:")
    tr4(SO, SO+4)
    a(f"""v_cvt_pk_bf16_f32 v12, v{SO}, v{SO+4}
    ds_write_b16 v6, v12
    ds_write_b16_d16_hi v6, v12 offset:128""")
    barrier(C_P, True)
    if opd == 'h1':
        a(f"""s_lshl_b32 s52, s55, 2
        s_add_u32 s52, s52, s3
        s_mul_i32 s52, s52, 18432
        s_mul_i32 s53, s54, {18*32*1152}
        s_add_u32 s52, s52, s53
        s_mov_b64 exec, -1""")
        srd(36, 20, 21, "18432", "s52")
        a("""v_lshlrev_b32 v98, 7, v1
        v_add_u32 v99, 0x2000, v98
        v_add_u32 v100, 0x4000, v98
        buffer_load_dword v101, v98, s[36:39], 0 offen
        buffer_load_dword v101, v99, s[36:39], 0 offen
        buffer_load_dword v101, v100, s[36:39], 0 offen""")
    for s_ in range(16): a(f"ds_read_b128 v[{BO+4*s_}:{BO+4*s_+3}], v11 offset:{64*s_}")
    for s_ in range(16):
        a(f"s_waitcnt lgkmcnt({15-s_})")
        d = 12 if s_ % 2 == 0 else SO
        c = "0" if s_ < 2 else f"v[{d}:{d+3}]"
        a(f"v_mfma_f32_16x16x32_bf16 v[{d}:{d+3}], v[{AO+4*s_}:{AO+4*s_+3}], v[{BO+4*s_}:{BO+4*s_+3}], {c}")
        if loc2 == s_ + 1:
            X = a.label("l2")
            a(f"""s_cmp_lg_u32 s3, 0
            s_cbranch_scc1 {X}
            s_mov_b64 exec, 1
            buffer_store_dword v{vTAG}, v7, {WS}, s60 offen {locst}
            s_mov_b64 exec, -1
            {X}:""")
    if p2full:
        a(f"""s_lshl_b32 s52, s3, 6
        s_add_u32 s52, s52, {L_HN}
        v_lshl_add_u32 v{vA}, v2, 4, s52
        v_lshlrev_b32 v{vA+1}, 4, v3
        v_add_u32 v{vA+2}, {L_HN}, v{vA+1}
        v_and_b32 v{vA+3}, 1, v2
        s_lshl_b32 s52, s3, 1
        v_add_u32 v{vA+3}, s52, v{vA+3}
        v_mul_u32_u24 v{vA+3}, {P2C}, v{vA+3}
        v_add_u32 v9, v{vA+3}, v{vA+1}
        s_lshl_b32 s52, s3, 6
        s_sub_u32 s59, s59, s52
        s_mov_b32 s50, 0x00010001
        s_mov_b32 s51, 0x00010001
        s_mov_b64 exec, s[50:51]""")
        pk(12, 12, SO); pk(14, 14, SO+2)
        for r in range(4): a(f"v_min_u32 v{12+r}, -2, v{12+r}")
        a(f"""ds_write_b128 v{vA}, v[12:15]
        s_bfm_b64 exec, 32, 0
        s_waitcnt lgkmcnt(0)
        s_barrier
        ds_read_b128 v[12:15], v{vA+2}
        s_waitcnt lgkmcnt(0)
        buffer_store_dwordx4 v[12:15], v9, {WS}, s59 offen sc0 sc1""")
    else:
        a("s_mov_b64 exec, s[50:51]")
        pk(12, 12, SO); pk(14, 14, SO+2)
        for r in range(4): a(f"v_min_u32 v{12+r}, -2, v{12+r}")
        a(f"buffer_store_dwordx4 v[12:15], v9, {WS}, s59 offen sc0 sc1")
    stamp(10)
    if loc2 == "st":
        X = a.label("l2")
        a(f"""s_cmp_lg_u32 s3, 0
        s_cbranch_scc1 {X}
        s_getreg_b32 s52, hwreg(HW_REG_XCC_ID, 0, 3)
        s_lshl_b32 s52, s52, 10
        s_lshl_b32 s53, s2, 2
        s_add_u32 s52, s52, s53
        s_add_u32 s52, s52, {O_H2}
        s_mov_b64 exec, 1
        buffer_store_dword v{vTAG}, v7, {WS}, s52 offen {locst}
        s_mov_b64 exec, -1
        {X}:""")

    if opd == 'p2':
        a(f"""s_lshl_b32 s52, s55, 2
        s_add_u32 s52, s52, s3
        s_mul_i32 s52, s52, 18432
        s_mul_i32 s53, s54, {18*32*1152}
        s_add_u32 s52, s52, s53
        s_mov_b64 exec, -1""")
        srd(36, 20, 21, "18432", "s52")
        a("""v_lshlrev_b32 v4, 7, v1
        v_add_u32 v5, 0x2000, v4
        v_add_u32 v6, 0x4000, v4
        buffer_load_dword v8, v4, s[36:39], 0 offen
        buffer_load_dword v8, v5, s[36:39], 0 offen
        buffer_load_dword v8, v6, s[36:39], 0 offen""")
    a(f"s_branch L_fin")
    a(f"{LNF}:")
    if pf_at == 64: prefetch()
    L3, L3D, L4, L4D = a.label("h3"), a.label("h3d"), a.label("h4"), a.label("h4d")
    a(f"""s_cmp_ge_u32 s2, {ID_R}
    s_cbranch_scc1 L_fin
    s_cmp_lg_u32 s3, 0
    s_cbranch_scc1 L_fin
    s_sub_u32 s52, s2, {ID_O}
    s_mul_i32 s58, s52, 9216
    s_add_u32 s58, s58, {O_P3}
    s_lshl_b32 s59, s52, 6
    s_mul_i32 s52, s54, {P2C}
    s_add_u32 s59, s59, s52
    s_add_u32 s59, s59, {O_P2}
    v_lshrrev_b32 v6, 2, v1
    v_mul_u32_u24 v6, 2304, v6
    v_and_b32 v9, 3, v1
    v_lshl_add_u32 v6, v9, 4, v6
    v_mov_b32 v8, {OOB}
    v_cndmask_b32 v9, v8, v{vXO}, s[44:45]
    v_cmp_gt_u32 vcc, 32, v1
    v_lshlrev_b32 v{vXF}, 16, v{vXF}
    v_cndmask_b32 v6, v8, v6, vcc
    v_lshlrev_b32 v10, 4, v1
    s_lshl_b32 s60, s54, 10
    s_add_u32 s61, s60, {O_H3}
    s_add_u32 s60, s60, {O_H2}""")
    a("s_add_u32 s96, s58, 4096\ns_add_u32 s97, s58, 8192")
    def h3_loads():
        for k in range(9):
            a(f"buffer_load_dwordx4 v[{vG+4*k}:{vG+4*k+3}], v10, {WS}, {['s58', 's96', 's97'][k//4]} offen offset:{1024*(k%4)} sc0 sc1")
    L3W = a.label("h3w")
    if rloc:
        LH, LHD = a.label("lh"), a.label("lhd")
        a(f"""s_getreg_b32 s60, hwreg(HW_REG_XCC_ID, 0, 3)
        s_lshl_b32 s60, s60, 10
        s_add_u32 s60, s60, {O_H3}
        s_movk_i32 s61, 120
        v_lshlrev_b32 v14, 3, v1
        {LH}:
        buffer_load_dwordx2 v[12:13], v14, {WS}, s60 offen offset:512 {locld}
        s_sub_u32 s61, s61, 1
        s_cbranch_scc1 {LHD}
        s_waitcnt vmcnt(0)
        v_cmp_eq_u32 vcc, v12, v{vTAG}
        v_cmp_eq_u32 s[46:47], v13, v{vTAG}
        s_bcnt1_i32_b64 s52, vcc
        s_bcnt1_i32_b64 s53, s[46:47]
        s_add_u32 s52, s52, s53
        s_cmp_lt_u32 s52, {need3}
        s_cbranch_scc1 {LH}
        {LHD}:
        s_mov_b64 exec, -1
        s_waitcnt vmcnt(0)""")
        if dR: a(f"s_sleep {dR}")
        stamp(13)
        L4W = a.label("h4w")
        a(f"buffer_load_dwordx4 v[12:15], v6, {WS}, s59 offen sc0 sc1")
        h3_loads()
        a(f"s_waitcnt vmcnt(9)\ns_branch {L4W}")
    a(f"""{L4}:
    buffer_load_dwordx4 v[12:15], v6, {WS}, s59 offen sc0 sc1
    s_waitcnt vmcnt(0)""")
    if rloc: a(f"{L4W}:")
    poison_check(12, 4, [12], L4, L4D)
    stamp(11)
    tr4(12)
    for m in ("row_ror:8", "row_ror:4"):
        a(f"v_add_f32_dpp v12, v12, v12 {m} row_mask:0xf bank_mask:0xf")
    rnd1("v12")
    a(f"v_add_f32 v11, v12, v{vXF}")
    rnd1("v11")
    cnt0()
    if rloc: a(f"s_branch {L3W}")
    a(f"{L3}:")
    h3_loads()
    a(f"{L3W}:")
    a("s_waitcnt vmcnt(7)")
    pk(12, vG, vG+4); pk(14, vG+2, vG+6)
    for k in range(2, 9):
        a(f"s_waitcnt vmcnt({8-k})")
        pk(12, 12, vG+4*k); pk(14, 14, vG+4*k+2)
    poison_check(vG, 36, [12], L3, L3D)
    stamp(14); cnt1(12)
    tr4(12)
    for m in ("row_ror:8", "row_ror:4"):
        a(f"v_add_f32_dpp v12, v12, v12 {m} row_mask:0xf bank_mask:0xf")
    rnd1("v12")
    if probe:
        srd(36, 8, 9, "0x10000000")
        a("v_mov_b32 v13, 0x300000")
        for k in range(probe): a(f"buffer_load_dword v14, v13, s[36:39], 0 offen nt\ns_waitcnt vmcnt(0)\nv_add_u32 v13, 0x1000100, v13")
    a(f"""v_add_f32 v12, v12, v11
    v_cvt_pk_bf16_f32 v12, v12, v12
    buffer_store_short v12, v9, {OUTS}, 0 offen {outf}
    s_branch L_fin""")
    a(f"{LNO}:")
    AG, AD, DD, SM = 184, 58, 94, 156
    a(f"""v_mul_u32_u24 v10, 2304, v2
    v_lshl_add_u32 v10, v3, 4, v10
    v_mov_b32 v9, {OOB}
    v_cndmask_b32 v11, v9, v10, s[44:45]
    s_mul_i32 s52, s3, 576
    s_mul_i32 s96, s54, {P2C}
    s_add_u32 s96, s96, s52
    s_add_u32 s96, s96, {O_P2}
    s_add_u32 s97, s96, 9216
    s_lshl_b32 s58, s56, 6
    s_mul_i32 s53, s3, {9*9216}
    s_add_u32 s58, s58, s53
    s_add_u32 s58, s58, {O_P3}
    s_mul_i32 s52, s3, 288
    v_lshl_add_u32 v{vA+1}, v{vE}, 1, s52
    v_add_u32 v{vA+1}, {L_HN}, v{vA+1}
    s_lshl_b32 s53, s3, 3
    s_add_u32 s53, s53, {L_ST}
    v_mov_b32 v{vA+2}, s53
    v_mov_b32 v{vA+3}, {L_ST}
    v_lshlrev_b32 v{vA+5}, 4, v2
    v_add_u32 v{vA+4}, {L_HN}, v{vA+5}
    v_mul_u32_u24 v{vA+7}, 9216, v3
    v_add_u32 v{vA+7}, v{vA+7}, v{vA+5}
    v_add_u32 v{vA+5}, {L_ACT}, v{vA+5}
    v_cmp_gt_u32 vcc, 9, v3
    v_lshrrev_b32 v12, 2, v3
    v_lshl_add_u32 v12, v2, 3, v12
    v_cndmask_b32 v{vA+7}, v9, v{vA+7}, vcc
    v_mul_u32_u24 v8, 1152, v12
    v_and_b32 v6, 3, v3
    v_lshl_add_u32 v8, v6, 3, v8
    v_add_u32 v8, {WD_L}, v8
    v_lshrrev_b32 v14, 3, v3
    v_lshlrev_b32 v15, 1, v2
    v_and_b32 v15, 2, v15
    v_or_b32 v14, v14, v15
    v_and_b32 v{vA+6}, 1, v2
    v_lshl_add_u32 v{vA+6}, v{vA+6}, 2, v6
    s_lshl_b32 s52, s3, 4
    s_add_u32 s53, s52, {L_ACT}
    v_lshl_add_u32 v{vA+6}, v{vA+6}, 1, s53
    v_lshlrev_b32 v12, 6, v12
    v_and_b32 v13, 1, v3
    v_lshl_add_u32 v12, v13, 3, v12
    v_and_b32 v15, 2, v3
    v_and_b32 v13, 1, v2
    v_or_b32 v13, v13, v15
    v_xor_b32 v13, s3, v13
    v_lshl_add_u32 v12, v13, 4, v12
    v_mul_u32_u24 v15, {(WU_L - WG_L)//2}, v15
    v_add_u32 v12, {WG_L}, v12
    v_add_u32 v6, v12, v15
    v_lshlrev_b32 v{vXR}, 16, v{vXR}
    v_lshlrev_b32 v{vXR+1}, 16, v{vXR+1}
    v_lshlrev_b32 v{vXR+2}, 16, v{vXR+2}""")
    if levels or pf_at or icw: a("s_waitcnt vmcnt(0)")
    a(f"v_mov_b32 v{vA}, v6\ns_mul_i32 s52, s3, 9")
    for bb in range(0 if cwd else 9):
        a(f"v_xor_b32 v13, s52, v14\nv_lshl_add_u32 v{vQ+bb}, v13, 5, v8")
        if bb < 8: a("s_add_u32 s52, s52, 1")
    def gu_frags():
        for s_ in range(18):
            for h in range(2):
                r = AG + 4*s_ + 2*h
                a(f"ds_read_b64_tr_b16 v[{r}:{r+1}], v{vA} offset:{2048*s_ + 256*h}")
        stamp(9)
    def wd_frags():
        for bb in range(9):
            for h in range(2):
                r = AD + 4*bb + 2*h
                if cwd: a(f"ds_read_b64_tr_b16 v[{r}:{r+1}], v{vQ+9} offset:{32*bb + 2304*h}")
                else: a(f"ds_read_b64_tr_b16 v[{r}:{r+1}], v{vQ+bb} offset:{4608*h}")
        stamp(10)
    L2, L2D = a.label("h2"), a.label("h2d")
    L2W = a.label("h2w")
    def h2_loads():
        for i in range(3):
            for j in range(2):
                r = vG + 8*i + 4*j
                a(f"buffer_load_dwordx4 v[{r}:{r+3}], v{10 + (i == 2)}, {WS}, s{96+j} offen offset:{256*i} sc0 sc1")
    a(f"s_lshl_b32 s60, s54, 10\ns_add_u32 s60, s60, {O_H2}")
    assert not hu
    if order == "dg":
        a(f"s_movk_i32 s61, {MK_D}")
        spin_lds(f"v{vLND}", "v4", "s52", "s61")
        wd_frags()
        a(f"s_movk_i32 s61, {MK_G}")
        spin_lds(f"v{vLND}", "v4", "s52", "s61")
        cnt0()
        first, last = None, gu_frags
    elif cwd:
        a(f"s_mul_i32 s52, s56, {32*1152}")
        srd(36, 20, 21, str(32*1152), "s52")
        a(f"""s_mul_i32 s60, s3, 288
        s_mul_i32 s59, s3, 9216
        s_add_u32 s59, s59, {WD_L}""")
        for i in range(9):
            a(f"""v_add_u32 v12, {64*i}, v1
            v_mul_u32_u24 v13, 3641, v12
            v_lshrrev_b32 v13, 16, v13
            v_mul_u32_u24 v14, 18, v13
            v_sub_u32 v14, v12, v14
            v_mul_u32_u24 v13, 1152, v13
            v_lshl_add_u32 v{vQ+i}, v14, 4, v13""")
            if i % 4: a(f"v_subrev_u32 v{vQ+i}, {1024*(i%4)}, v{vQ+i}")
        a(f"""v_lshrrev_b32 v12, 1, v2
        v_lshlrev_b32 v12, 4, v12
        v_and_b32 v13, 1, v2
        v_lshl_add_u32 v12, v13, 2, v12
        v_lshrrev_b32 v14, 2, v3
        v_add_u32 v12, v12, v14
        v_mul_u32_u24 v12, 288, v12
        v_and_b32 v14, 3, v3
        v_lshl_add_u32 v12, v14, 3, v12
        v_add_u32 v{vQ+9}, s59, v12
        s_lshr_b32 s52, s3, 1
        s_lshl_b32 s52, s52, 5
        s_and_b32 s53, s3, 1
        s_lshl_b32 s53, s53, 3
        s_add_u32 s52, s52, s53
        s_add_u32 s52, s52, {L_ACT}
        v_lshl_add_u32 v13, v13, 3, v14
        v_lshl_add_u32 v{vA+6}, v13, 1, s52""")
        spin_lds(f"v{vCNT}", "v4", "s52", 4, off=C_O)
        a(f"s_movk_i32 s61, {MK_G}")
        spin_lds(f"v{vLND}", "v4", "s52", "s61")
        cnt0()
        last = gu_frags
    else:
        a(f"s_movk_i32 s61, {MK_G}")
        spin_lds(f"v{vLND}", "v4", "s52", "s61")
        gu_frags()
        if e2:
            spin_lds(f"v{vCNT}", "v4", "s52", 1, off=C_IS)
            h2_loads()
        a(f"s_movk_i32 s61, {MK_D}")
        spin_lds(f"v{vLND}", "v4", "s52", "s61")
        cnt0()
        last = wd_frags
    assert not ndef
    if loc2:
        LH, LHD, LHC = a.label("lh"), a.label("lhd"), a.label("lhc")
        a(f"""s_getreg_b32 s63, hwreg(HW_REG_XCC_ID, 0, 3)
        s_lshl_b32 s63, s63, 10
        s_add_u32 s63, s63, {O_H2}
        s_movk_i32 s61, 100
        v_lshlrev_b32 v13, 2, v1
        buffer_load_dword v12, v13, {WS}, s63 offen {locld}""")
        last()
        a(f"""s_branch {LHC}
        {LH}:
        buffer_load_dword v12, v13, {WS}, s63 offen {locld}
        {LHC}:
        s_sub_u32 s61, s61, 1
        s_cbranch_scc1 {LHD}
        s_waitcnt vmcnt(0)
        v_cmp_eq_u32 vcc, v12, v{vTAG}
        s_bcnt1_i32_b64 s52, vcc
        s_cmp_lt_u32 s52, {need2}
        s_cbranch_scc1 {LH}
        {LHD}:
        s_mov_b64 exec, -1""")
        if d2l: a(f"s_sleep {d2l}")
        h2_loads()
    else:
        if not e2: h2_loads()
        last()
    def h2_sums(extra):
        for i in range(3):
            a(f"s_waitcnt vmcnt({4-2*i+extra})")
            sum4(SM + 4*i, [vG + 8*i + 4*j for j in range(2)])
    def wd_dma(which=range(9)):
        for i in which:
            if i % 4 == 0: a(f"s_mov_b32 m0, s59\ns_add_u32 s59, s59, 4096")
            a(f"buffer_load_dwordx4 v{vQ+i}, s[36:39], s60 offen offset:{1024*(i%4)} {polW} lds")
    a(f"s_branch {L2W}")
    a(f"{L2}:")
    h2_loads()
    a(f"{L2W}:")
    h2_sums(0)
    poison_check(vG, 24, [SM, SM+4, SM+8], L2, L2D)
    stamp(11); cnt1(1)
    if cwd and wdat == 'h2': wd_dma()
    tr4(SM, SM+4, SM+8)
    H0, H1, H2 = f"v{SM}", f"v{SM+4}", f"v{SM+8}"
    rnd2(H0, H1, "v4"); rnd1(H2)
    a(f"v_add_f32 {H0}, {H0}, v{vXR}\nv_add_f32 {H1}, {H1}, v{vXR+1}\nv_add_f32 {H2}, {H2}, v{vXR+2}")
    rnd2(H0, H1, "v4"); rnd1(H2)
    a(f"""v_readfirstlane_b32 s53, {H0}
    v_subrev_f32 v8, s53, {H0}
    v_subrev_f32 v9, s53, {H1}
    v_subrev_f32 v10, s53, {H2}
    v_mul_f32 v5, v8, v8
    v_add_f32 v4, v8, v9
    v_cndmask_b32 v10, v7, v10, s[44:45]
    v_fmac_f32 v5, v9, v9
    v_add_f32 v4, v4, v10
    v_fmac_f32 v5, v10, v10""")
    red63("v_add_f32", "v4", "v5")
    a(f"""v_readlane_b32 s46, v4, 63
    v_readlane_b32 s47, v5, 63
    v_mov_b32 v8, {fhex(1/144)}
    v_mul_f32 v8, s46, v8
    v_mov_b32 v9, s47
    v_fma_f32 v9, -v8, s46, v9
    v_add_f32 v8, s53, v8
    s_mov_b64 exec, 1
    ds_write_b64 v{vA+2}, v[8:9]""")
    if cwd and wdat == 'st2':
        a("s_mov_b64 exec, -1"); wd_dma()
    barrier(C_ST, not ndef)
    if ndef: one(f"ds_write_b32 v{vCNT}, v{vONE} offset:{C_WD}")
    a(f"""ds_read_b128 v[{vG}:{vG+3}], v{vA+3}
    ds_read_b128 v[{vG+4}:{vG+7}], v{vA+3} offset:16""")
    if cwd and wdat == 'st': wd_dma()
    a(f"""s_waitcnt lgkmcnt(0)
    v_pk_add_f32 v[8:9], v[{vG}:{vG+1}], v[{vG+2}:{vG+3}]
    v_pk_add_f32 v[10:11], v[{vG+4}:{vG+5}], v[{vG+6}:{vG+7}]
    v_pk_add_f32 v[8:9], v[8:9], v[10:11]
    v_mul_f32 v8, 0x3e800000, v8
    v_sub_f32 v{vG}, v{vG}, v8
    v_sub_f32 v{vG+2}, v{vG+2}, v8
    v_sub_f32 v{vG+4}, v{vG+4}, v8
    v_sub_f32 v{vG+6}, v{vG+6}, v8
    v_mul_f32 v10, v{vG}, v{vG}
    v_fmac_f32 v10, v{vG+2}, v{vG+2}
    v_fmac_f32 v10, v{vG+4}, v{vG+4}
    v_fmac_f32 v10, v{vG+6}, v{vG+6}
    v_fmac_f32 v9, {fhex(144.0)}, v10
    v_mul_f32 v9, {fhex(1/576)}, v9""")
    ln_scale("v8", "v9", "v10")
    for H in (H0, H1, H2): a(f"v_sub_f32 {H}, {H}, v8")
    rnd2(H0, H1, "v4"); rnd1(H2)
    for H in (H0, H1, H2): a(f"v_mul_f32 {H}, {H}, v9")
    a(f"""v_cvt_pk_bf16_f32 v12, {H0}, {H1}
    v_cvt_pk_bf16_f32 v13, {H2}, {H2}
    ds_write_b16 v{vA+1}, v12
    ds_write_b16_d16_hi v{vA+1}, v12 offset:128
    s_mov_b64 exec, s[44:45]
    ds_write_b16 v{vA+1}, v13 offset:256
    s_mov_b32 s46, 0x22222222
    s_mov_b32 s47, 0x22222222
    s_mov_b32 s48, 0xcccccccc
    s_mov_b32 s49, 0xcccccccc
    s_mov_b32 s50, 0x88888888
    s_mov_b32 s51, 0x88888888
    s_mov_b64 exec, -1""")
    if cwd and wdat == 'hn2': wd_dma()
    barrier(C_HN, not ndef)
    stamp(12)
    BG = vG
    for s_ in range(18): a(f"ds_read_b128 v[{BG+4*s_}:{BG+4*s_+3}], v{vA+4} offset:{64*s_}")
    a(f"v_mov_b32 v6, {fhex(0.044715)}")
    for s_ in range(18):
        a(f"s_waitcnt lgkmcnt({min(15, 17-s_)})")
        if cwd and wdat == 'hn' and 1 <= s_ <= 9: wd_dma([s_ - 1])
        if cwd and s_ == 17 and wdfr == 'mfma':
            a("s_waitcnt vmcnt(0)"); wd_frags()
        d = 12 if s_ % 2 == 0 else 8
        c = "0" if s_ < 2 else f"v[{d}:{d+3}]"
        a(f"v_mfma_f32_16x16x32_bf16 v[{d}:{d+3}], v[{AG+4*s_}:{AG+4*s_+3}], v[{BG+4*s_}:{BG+4*s_+3}], {c}")
        if hu and s_ + 1 == hu3:
            X = a.label("hu")
            a(f"s_cmp_lg_u32 s55, 31\ns_cbranch_scc1 {X}\ns_cmp_lg_u32 s3, 0\ns_cbranch_scc1 {X}")
            notice(f"s_lshl_b32 s53, s54, 7\ns_add_u32 s53, s53, {O_H3}", 8, 1024)
            a(f"{X}:")
    K0 = (2/3.141592653589793)**0.5
    pk(12, 12, 8); pk(14, 14, 10)
    a(f"""v_cndmask_b32 v12, v12, v13, s[46:47]
    v_cndmask_b32 v14, v14, v15, s[50:51]
    v_cndmask_b32 v12, v12, v14, s[48:49]""")
    rnd1("v12")
    a(f"""v_mov_b32 v13, v12
    v_permlane32_swap_b32 v12, v13
    v_mul_f32 v8, v12, v12
    v_mul_f32 v8, v8, v12
    v_fma_f32 v8, v8, v6, v12
    v_mul_f32 v8, {fhex(-2*K0*1.4426950408889634)}, v8
    v_exp_f32 v8, v8
    v_add_f32 v8, 1.0, v8
    v_rcp_f32 v8, v8
    v_mul_f32 v12, v12, v8""")
    rnd1("v12")
    a(f"""v_mul_f32 v12, v12, v13
    v_cvt_pk_bf16_f32 v12, v12, v12
    s_mov_b64 exec, 0x000f000f
    ds_write_b16 v{vA+6}, v12
    s_mov_b32 s46, 0x00010001
    s_mov_b32 s47, 0x00010001
    s_mov_b64 exec, -1""")
    if ndef:
        a(f"s_movk_i32 s61, 260")
        spin_lds(f"v{vLND}", "v4", "s52", "s61")
        wd_frags()
    if cwd and wdfr == 'act':
        a("s_waitcnt vmcnt(0)"); wd_frags()
    barrier(C_ACT, True)
    stamp(13)
    def hint3():
        X = a.label("l3")
        a(f"""s_cmp_lg_u32 s3, 0
        s_cbranch_scc1 {X}
        s_getreg_b32 s52, hwreg(HW_REG_XCC_ID, 0, 3)
        s_lshl_b32 s52, s52, 10
        s_lshl_b32 s53, s2, 2
        s_add_u32 s52, s52, s53
        s_add_u32 s52, s52, {O_H3}
        s_mov_b64 exec, 1
        buffer_store_dword v{vTAG}, v7, {WS}, s52 offen {locst}
        s_mov_b64 exec, -1
        {X}:""")
    a(f"ds_read_b128 v[12:15], v{vA+5}")
    if loc3 == 'act': hint3()
    a("s_waitcnt lgkmcnt(0)")
    if sel:
        for bb in range(9):
            D = DD if bb == 0 else vG + 4*bb
            a(f"v_mfma_f32_16x16x32_bf16 v[{D}:{D+3}], v[{AD+4*bb}:{AD+4*bb+3}], v[12:15], 0")
        if loc3 == 'mfma': hint3()
        for bb in range(1, 9):
            D = vG + 4*bb
            a(f"""s_lshl_b64 exec, s[46:47], {bb}
            v_pk_mov_b32 v[{DD}:{DD+1}], v[{D}:{D+1}], v[{D}:{D+1}] op_sel:[0,1]
            v_pk_mov_b32 v[{DD+2}:{DD+3}], v[{D+2}:{D+3}], v[{D+2}:{D+3}] op_sel:[0,1]""")
        a("s_mov_b64 exec, -1")
    else:
        def onehot(bb):
            B = vG + 4*bb
            for r in range(4): a(f"v_cndmask_b32 v{B+r}, v7, v{12+r}, s[46:47]")
            if bb < 8: a("s_lshl_b64 s[46:47], s[46:47], 1")
        onehot(0)
        for bb in range(9):
            if bb < 8: onehot(bb + 1)
            B = vG + 4*bb
            c = "0" if bb == 0 else f"v[{DD}:{DD+3}]"
            a(f"v_mfma_f32_16x16x32_bf16 v[{DD}:{DD+3}], v[{AD+4*bb}:{AD+4*bb+3}], v[{B}:{B+3}], {c}")
    for r in range(4): a(f"v_min_u32 v{DD+r}, -2, v{DD+r}")
    a(f"buffer_store_dwordx4 v[{DD}:{DD+3}], v{vA+7}, {WS}, s58 offen sc0 sc1")
    stamp(14)
    if rloc and not loc3:
        a(f"""s_cmp_lg_u32 s3, 0
        s_cbranch_scc1 L_fin
        s_getreg_b32 s52, hwreg(HW_REG_XCC_ID, 0, 3)
        s_lshl_b32 s52, s52, 10
        s_lshl_b32 s53, s2, 2
        s_add_u32 s52, s52, s53
        s_add_u32 s52, s52, {O_H3}
        s_mov_b64 exec, 1
        buffer_store_dword v{vTAG}, v7, {WS}, s52 offen {locst}""")
    a("L_fin:")
    if diag:
        stamp(15)
        a(f"""s_add_u32 s26, s26, 0x20000000
        s_addc_u32 s27, s27, 0
        v_lshrrev_b32 v2, 6, v0
        v_mov_b32 v3, s2
        v_mul_u32_u24 v3, 5, v3
        v_add_u32 v3, v3, v2
        v_lshlrev_b32 v3, 7, v3
        s_waitcnt lgkmcnt(0)
        s_mov_b64 exec, 1""")
        for i in range(NST):
            a(f"v_mov_b32 v4, s{ST0+2*i}\nv_mov_b32 v5, s{ST0+2*i+1}\nglobal_store_dwordx2 v3, v[4:5], s[26:27] offset:{8*i}\ns_nop 1")
    a(f"""L_end:
    s_endpgm
    .section .rodata,"a"
    .p2align 6
    .amdhsa_kernel {KN}_kernel
    .amdhsa_next_free_vgpr 256
    .amdhsa_next_free_sgpr 102
    .amdhsa_accum_offset 256
    .amdhsa_group_segment_fixed_size 0
    .amdhsa_kernarg_size 96
    .amdhsa_user_sgpr_count 2
    .amdhsa_user_sgpr_kernarg_segment_ptr 1
    .amdhsa_system_sgpr_workgroup_id_x 1
    .amdhsa_float_denorm_mode_32 3
    .end_amdhsa_kernel""")
    a.lines = [l.replace('sc0 sc1', sc) for l in a.lines]
    a.lines, n = pad(a.lines)
    return a.text()

if __name__ == "__main__":
    import ast
    out = sys.argv[1]
    kw = {}
    for x in sys.argv[2:]:
        k, v = x.split("="); kw[k] = ast.literal_eval(v)
    open(out, "w").write(gen(**kw))
```

```python
import struct, sys
from asmlib import Asm, pad
KN = "sequential_preLN__gqa_block_cached__geglu_ffn__decode"
def fhex(x): return "0x%08x" % struct.unpack("<I", struct.pack("<f", x))[0]

def gen(W=20, W2=20, diag=False, sleep=0, polK='nt', polV='nt', polW='', ldbar=False, pf_at=0, pfg=128, npre=3, pf_rows=9, order="gd", levels=None, thr=(1,), pgw=2, lvl2=False, sc='sc0 sc1', hold=0, fastfail=True, Wh=0, NH=0, spf=0, spw=6, WO2=None, rot=True, early=True, Wd=None, hu=False, hu1='land', hu3=18, d1=0, d2=0, d3=0, hwbar=True, defer=False, obias=0, fbias=0, l2mask=0, l2sm=1, l2gain=1, rloc=True, dR=6, ndef=0, spd=0, spdfirst=True, Uend=256, Wend=32, tk=0, par=None, ramp=None, npro=3, poison=1, touch=0, loc2=None, d2l=0, need2=9, cpf=None, wpf=4, Wd0=20, nowq=False, polQ='nt', noqg=False, noqs=False, ksleep=0, q1=None, need3=1, sel=False, e2=False, e1=False, isback=0, diagm=0, xm=None, rotm=None, ilv=0, ig=14, pb=0, place=None, gmode=0, rmul=None, rx=0, omul=None, cwd=False, spo=0, wdat='st', wdfr='act', opd=None, holdS=None, holdF=None, holdO=None, W0=None, N0=0, ustamps=(8,16,24,32), pgpre=0, pg2=False, pgimm=False, tab=None, pgper=1, pgstf='', pgoff=0, pubm=1, sleep3=0, prio=3, cprio=0, tsh=2, tfull=0, locld='sc1', locst='', jb=None, vec=None, U2=0, levels2=None, outf='', lnfast=False, icw=0, icall=False, peekq=False, peekm=None, rk=None, nordy=False, rdyat=48, mlone=False, only=None, p2full=False, loc3=None, tsh2=20, probe=0, tmin=16, wt=None, wtall=False, vt=None, w1=None, ct=None, cts=False, polT='nt'):
    NSLOT = 18
    UNIT = 8192
    RING = NSLOT * UNIT
    M = RING
    L_LANDED = M
    L_CONS = M + 256
    L_CNT = M + 1280
    C_Q, C_Q2, C_O, C_P, C_ST, C_HN, C_ACT, C_R, C_LVL, C_RD, C_OP, C_IS, C_WD, C_OD, C_RK = [4*i for i in range(15)]
    L_XN = M + 1536
    L_QRED = L_XN + 2304
    L_Q = L_QRED + 1024
    L_ORED = L_Q + 512
    L_OB = L_ORED + 4096
    L_ST = L_OB + 1024
    L_HN = L_ST + 64
    L_H = L_HN + 1152
    L_ACT = L_H + 2304
    LDS = L_ACT + 64
    assert LDS <= 163840, LDS
    WO_L = 32768
    WG_L = 32768
    WU_L = WG_L + 36864
    WD_L = WU_L + 36864
    if order == "dg": WD_L, WG_L, WU_L = 32768, 32768 + 36864, 32768 + 2 * 36864
    assert max(WD_L, WU_L) + 36864 <= RING
    def need_cnt(lo, hi):
        last = max(u for u in range(256 - NSLOT, 256) if lo // UNIT <= u % NSLOT <= (hi - 1) // UNIT)
        return (last >> 2) + 1
    O_PG = 0x120000
    O_E, O_QX, O_ML, O_OP, O_P2, O_P3 = 0, 0x10000, 0x40000, 0x50000, 0x90000, 0xB4000
    P2C = 8 * 2304
    O_H1, O_H2, O_H3 = 0x130000, 0x138000, 0x13A000
    WS_SZ = 0x140000
    TAGC = 0x9E3779B9
    OOB = 0x7ffffff0
    a = Asm()
    NST = 16
    ST0 = 64
    def stamp(i):
        if diag and (only is None or i in only): a(f"s_memrealtime s[{ST0+2*i}:{ST0+2*i+1}]")
    sTO = "s62"
    def cnt0():
        if diag and only is None: a("s_mov_b32 s95, s62")
    def cnt1(i):
        if diag and only is None: a(f"s_sub_u32 s95, s95, s62\ns_mul_i32 s95, s95, 100\ns_add_u32 s{ST0+2*i}, s{ST0}, s95\ns_addc_u32 s{ST0+2*i+1}, s{ST0+1}, 0")
    def spin_lds(vaddr, vt, st, cmp_need, sl=0, off=0):
        L, D = a.label("spin"), a.label("done")
        a(f"""{L}:
        ds_read_b32 {vt}, {vaddr} offset:{off}
        s_waitcnt lgkmcnt(0)
        v_readfirstlane_b32 {st}, {vt}
        s_cmp_ge_i32 {st}, {cmp_need}
        s_cbranch_scc1 {D}
        s_sub_u32 {sTO}, {sTO}, 1
        s_cbranch_scc1 L_end""")
        if sl == 'w3': a(f"s_cmp_lg_u32 s3, 3\ns_cbranch_scc1 {L}\ns_sleep {sleep3}")
        elif sl: a(f"s_sleep {sl}")
        a(f"s_branch {L}\n{D}:")
    def srd(r, lo, hi, nrec, addlo=None):
        if addlo is None:
            a(f"s_mov_b32 s{r}, s{lo}\ns_mov_b32 s{r+1}, s{hi}")
        else:
            a(f"s_add_u32 s{r}, s{lo}, {addlo}\ns_addc_u32 s{r+1}, s{hi}, 0")
        a(f"s_mov_b32 s{r+2}, {nrec}\ns_mov_b32 s{r+3}, 0x20000")

    a(f"; @launch grid=(256,1,1) block=(320,1,1) lds={LDS}")
    a(""";
    ; One persistent launch, one workgroup per CU: wave 0 streams K, then V, then weights into an LDS ring (LDS-DMA,
    ;   start : LayerNorm(x), a 144 x 64 tile of x.wq per workgroup, exchanged inside the head (tagged words in d_ws)
    ;   K pass: scores by MFMA, rounded as the reference rounds them, kept in registers; running true max / sum
    ; Hand-offs carry a launch tag or are reset to a marker at the start and checked word by word; every wait is bounded.
    ; Tables indexed by the die number only steer window sizes and the moment of a first read, never a result.""")
    a(f""".amdgcn_target "amdgcn-amd-amdhsa--gfx950"
    .text
    .globl {KN}_kernel
    .p2align 8
    .type {KN}_kernel,@function
    {KN}_kernel:
    s_cmp_ge_u32 s2, 256
    s_cbranch_scc1 L_end
    s_load_dwordx16 s[4:19], s[0:1], 0
    s_load_dwordx8 s[20:27], s[0:1], 64""")
    if diag:
        for i in range(1, NST): a(f"s_mov_b64 s[{ST0+2*i}:{ST0+2*i+1}], 0")
    stamp(0)
    a(f"""v_lshrrev_b32 v2, 6, v0
    v_and_b32 v1, 63, v0
    v_readfirstlane_b32 s3, v2
    s_mov_b32 {sTO}, 0x400000
    v_lshrrev_b32 v2, 4, v1
    v_and_b32 v3, 15, v1""")
    if gmode == 0: a("s_mov_b32 s1, s2")
    elif gmode == 1: a("s_and_b32 s52, s2, 7\ns_lshl_b32 s52, s52, 5\ns_lshr_b32 s53, s2, 3\ns_or_b32 s53, s53, s52")
    elif gmode == 2: a("s_and_b32 s52, s2, 7\ns_lshl_b32 s52, s52, 5\ns_bfe_u32 s53, s2, 0x10003\ns_lshl_b32 s53, s53, 4\ns_or_b32 s52, s52, s53\ns_lshr_b32 s53, s2, 4\ns_or_b32 s53, s53, s52")
    elif gmode == 3:
        a("s_and_b32 s52, s2, 3\ns_bfe_u32 s53, s2, 0x20003\ns_lshl_b32 s53, s53, 2\ns_or_b32 s52, s52, s53\ns_bfe_u32 s53, s2, 0x10002\ns_lshl_b32 s53, s53, 7\ns_or_b32 s52, s52, s53\ns_lshr_b32 s53, s2, 5\ns_lshl_b32 s53, s53, 4\ns_or_b32 s53, s53, s52")
    elif gmode == 4:
        a("s_and_b32 s52, s2, 1\ns_bfe_u32 s53, s2, 0x30003\ns_lshl_b32 s53, s53, 1\ns_or_b32 s52, s52, s53\ns_bfe_u32 s53, s2, 0x20001\ns_lshl_b32 s53, s53, 6\ns_or_b32 s52, s52, s53\ns_lshr_b32 s53, s2, 6\ns_lshl_b32 s53, s53, 4\ns_or_b32 s53, s53, s52")
    if gmode: a("s_mov_b32 s1, s53")
    a("s_cmp_lg_u32 s3, 0\ns_cbranch_scc1 L_cons")
    ID_O, ID_R, ID_F = 72, 108, 112
    def roles():
        a("""s_and_b32 s54, s2, 7
        s_lshr_b32 s55, s2, 3
        s_mul_i32 s56, s54, 18
        s_add_u32 s56, s56, s55
        s_sub_u32 s56, s56, 14""")
    a("; ---- loader wave")
    blk = {0: "s_lshl_b32 s57, s2, 20",
           1: "s_lshr_b32 s57, s2, 3\ns_add_u32 s57, s57, s2\ns_and_b32 s57, s57, 7\ns_and_b32 s58, s2, 0xf8\ns_or_b32 s57, s57, s58\ns_lshl_b32 s57, s57, 20",
           2: "s_lshr_b32 s57, s2, 4\ns_xor_b32 s57, s57, s2\ns_and_b32 s57, s57, 15\ns_and_b32 s58, s2, 0xf0\ns_or_b32 s57, s57, s58\ns_lshl_b32 s57, s57, 20",
           3: "s_lshr_b32 s57, s2, 4\ns_mul_i32 s57, s57, 5\ns_add_u32 s57, s57, s2\ns_and_b32 s57, s57, 15\ns_and_b32 s58, s2, 0xf0\ns_or_b32 s57, s57, s58\ns_lshl_b32 s57, s57, 20",
           4: "s_bfe_u32 s57, s2, 0x10003\ns_and_b32 s58, s2, 7\ns_lshl_b32 s58, s58, 1\ns_or_b32 s57, s57, s58\ns_and_b32 s58, s2, 0xf0\ns_or_b32 s57, s57, s58\ns_lshl_b32 s57, s57, 20",
           5: "s_lshr_b32 s57, s2, 5\ns_xor_b32 s57, s57, s2\ns_and_b32 s57, s57, 7\ns_and_b32 s58, s2, 0xf8\ns_or_b32 s57, s57, s58\ns_lshl_b32 s57, s57, 20",
          }[diagm]
    if xm is not None:
        blk = "s_and_b32 s57, s2, 15"
        if pb:
            blk += f"\ns_bfe_u32 s58, s2, {hex(0x10000 | pb)}\ns_and_b32 s59, s2, {(1 << pb) - 1}\ns_lshl_b32 s59, s59, 1\ns_or_b32 s58, s58, s59\ns_and_b32 s57, s57, {15 & ~((2 << pb) - 1)}\ns_or_b32 s57, s57, s58"
        for b, m in enumerate(xm):
            if m: blk += f"\ns_bitcmp1_b32 s2, {4+b}\ns_cselect_b32 s58, {m}, 0\ns_xor_b32 s57, s57, s58"
        if ilv:
            blk += f"\ns_and_b32 s58, s57, {(1 << ilv) - 1}\ns_lshl_b32 s58, s58, {ig}\ns_lshr_b32 s57, s57, {ilv}\ns_lshl_b32 s57, s57, {20 + ilv}\ns_or_b32 s57, s57, s58"
        else:
            blk += "\ns_lshl_b32 s57, s57, 20"
        blk += "\ns_lshr_b32 s58, s2, 4\ns_lshl_b32 s58, s58, 24\ns_or_b32 s57, s57, s58"
    SPAN = (1 << (20 + ilv)) - (((1 << ilv) - 1) << ig)
    assert place or not gmode
    if place:
        JB = jb or (10, 11, 12)
        assert len(set(place + JB)) == 7 and all(10 <= p <= 23 for p in place + JB) and not ilv and rotm is None
        SM = sum(1 << b for b in range(10, 24) if b not in place + JB)
        SPAN = SM + sum(1 << b for b in JB) + 1024
        blk = "s_and_b32 s59, s1, 15"
        for b, m in enumerate(xm or ()):
            if m: blk += f"\ns_bitcmp1_b32 s1, {4+b}\ns_cselect_b32 s58, {m}, 0\ns_xor_b32 s59, s59, s58"
        blk += "\ns_lshr_b32 s57, s1, 4\ns_lshl_b32 s57, s57, 24"
        for k, p in enumerate(place):
            blk += f"\ns_bitcmp1_b32 s59, {k}\ns_cselect_b32 s58, {hex(1 << p)}, 0\ns_or_b32 s57, s57, s58"
        if vec:
            assert not jb
            PM = sum(1 << p for p in place)
            rows = [v & PM for v in vec[:4]]
            span = {0}
            for r in rows: span |= {x ^ r for x in span}
            assert len(span) == 16 and all(v & ~(PM | SM) == 0 for v in vec)
            blk = "s_mov_b32 s100, 0"
            for b, v in enumerate(vec):
                if v: blk += f"\ns_bitcmp1_b32 s1, {b}\ns_cselect_b32 s58, {hex(v)}, 0\ns_xor_b32 s100, s100, s58"
            blk += f"\ns_lshr_b32 s57, s1, 4\ns_lshl_b32 s57, s57, 24\ns_and_b32 s58, s100, {hex(PM)}\ns_or_b32 s57, s57, s58\ns_and_b32 s100, s100, {hex(SM)}"
    def start_off():
        if vec: a("s_mov_b32 s101, 0\ns_mov_b32 s58, s100\ns_add_u32 s59, s58, 4096")
        elif rotm is None: a("s_mov_b32 s58, 0\ns_mov_b32 s59, 4096")
        else: a(f"s_mul_i32 s58, s2, {rotm[0]}\ns_lshr_b32 s58, s58, {rotm[1]}\ns_and_b32 s58, s58, 63\ns_lshl_b32 s58, s58, {14 + ilv}\ns_add_u32 s59, s58, 4096")
    j0 = (W + 7) % 8
    lag = (W + 7 - j0) // 8
    a(f"""{f's_setprio {prio}' if prio else ''}
    v_lshlrev_b32 v4, 1, v2
    v_xor_b32 v4, v4, v3
    v_lshlrev_b32 v4, 4, v4
    v_lshl_add_u32 v4, v2, 8, v4
    v_xor_b32 v5, 0x80, v4
    {blk}
    s_mov_b32 m0, 0""")
    start_off()
    a("s_waitcnt lgkmcnt(0)")
    srd(28, 6, 7, hex(SPAN), "s57")
    if ldbar: a("s_barrier")
    stamp(8)
    def unit_loads(sr, pub, waits=True, W=W, Wp=None):
        j0 = ((Wp or W) + 7) % 8
        for j in range(8):
            if jb:
                J = sum(1 << JB[k] for k in range(3) if j >> k & 1)
                if j: a(f"s_add_u32 m0, m0, 1024\ns_add_u32 s59, s58, {hex(J)}")
                if waits: a(f"s_waitcnt vmcnt({W-1})")
                a(f"buffer_load_dwordx4 v{4 + (j&1)}, s[{sr}:{sr+3}], s{59 if j else 58} offen {polK if sr == 28 else polV} lds")
            else:
                if j == 4: a("s_add_u32 m0, m0, 4096")
                if waits: a(f"s_waitcnt vmcnt({W-1})")
                a(f"buffer_load_dwordx4 v{4 + (j&1)}, s[{sr}:{sr+3}], s{58 + (j>>2)} offen offset:{(j&3)*1024} {polK if sr == 28 else polV} lds")
            if pub and j == j0:
                a("v_mov_b32 v7, s60\nds_write_b32 v6, v7")
        if vec: a(f"s_or_b32 s101, s101, {hex(~SM & 0xfffffc00)}\ns_add_u32 s101, s101, 1024\ns_and_b32 s101, s101, {hex(SM)}\ns_xor_b32 s58, s101, s100")
        elif place: a(f"s_or_b32 s58, s58, {hex(~SM & 0xfffffc00)}\ns_add_u32 s58, s58, 1024\ns_and_b32 s58, s58, {hex(SM)}")
        elif ilv and ig == 13: a(f"s_add_u32 s58, s58, {8192 << ilv}")
        elif ilv: a(f"s_add_u32 s58, s58, 8192\ns_and_b32 s96, s58, {(1 << ig) - 1}\ns_cselect_b32 s96, 0, {((1 << ilv) - 1) << ig}\ns_add_u32 s58, s58, s96")
        else: a("s_add_u32 s58, s58, 8192")
        if rotm is not None: a(f"s_and_b32 s58, s58, {hex((1 << (20 + ilv)) - 1)}")
        a("s_add_u32 s59, s58, 4096")
    unit_loads(28, False, False)
    for _ in range(npro - 1):
        a(f"s_add_u32 m0, m0, {1024 if jb else 4096}")
        unit_loads(28, False, False)
    srd(32, 8, 9, hex(SPAN), "s57")
    roles()
    a(f"""s_mul_i32 s57, s54, {512*1152}
    s_lshl_b32 s61, s55, 7
    s_add_u32 s57, s57, s61
    s_sub_u32 s61, {4096*1152}, s57""")
    srd(36, 12, 13, "s61", "s57")
    a(f"""s_lshl_b32 s57, s56, 6
    s_sub_u32 s61, {576*9216}, s57""")
    srd(40, 16, 17, "s61", "s57")
    srd(44, 18, 19, "s61", "s57")
    a(f"s_mul_i32 s57, s56, {32*1152}")
    srd(48, 20, 21, str(32*1152), "s57")
    if touch:
        hb = [b for b in range(tmin, 24) if SM >> b & 1]
        a("v_mov_b32 v8, 0")
        for k, b in enumerate(hb): a(f"v_bfe_u32 v9, v1, {k}, 1\nv_lshl_or_b32 v8, v9, {b}, v8")
        a(f"s_bfm_b64 exec, {1 << len(hb)}, 0")
        if touch & 1: a(f"buffer_load_dword v31, v8, s[28:31], 0 offen {polT}")
        if touch & 2: a(f"buffer_load_dword v31, v8, s[32:35], 0 offen {polT}")
        a("s_mov_b64 exec, -1")
        if touch & 4:
            a(f"v_lshlrev_b32 v8, {tsh2}, v1")
            for lo, nb in ((12, 4096*1152), (16, 576*9216), (18, 576*9216), (20, 4608*1152)):
                srd(96, lo, lo + 1, str(nb))
                a("buffer_load_dword v31, v8, s[96:99], 0 offen nt")
    if w1 == 'ld':
        X = a.label("w1")
        a(f"""s_cmp_ge_u32 s55, 11
        s_cbranch_scc1 {X}
        s_mov_b32 PLO, s16
        s_mov_b32 PHI, s17
        s_lshl_b32 s52, s55, 21
        s_cmp_ge_u32 s55, 3
        s_cselect_b32 PLO, s18, PLO
        s_cselect_b32 PHI, s19, PHI
        s_cselect_b32 s53, {3 << 21}, 0
        s_sub_u32 s52, s52, s53
        s_and_b32 s61, s55, 1
        s_mul_i32 s53, s54, {512*1152}
        s_mul_i32 PNR, s61, {512*1152 - 4}
        s_add_u32 s53, s53, PNR
        s_cmp_ge_u32 s55, 6
        s_cselect_b32 PLO, s12, PLO
        s_cselect_b32 PHI, s13, PHI
        s_cselect_b32 s52, s53, s52
        s_mul_i32 s53, s54, {18*32*1152}
        s_mul_i32 PNR, s61, {18*32*1152 - 4}
        s_add_u32 s53, s53, PNR
        s_cmp_ge_u32 s55, 8
        s_cselect_b32 PLO, s20, PLO
        s_cselect_b32 PHI, s21, PHI
        s_cselect_b32 s52, s53, s52
        s_cmp_ge_u32 s55, 10
        s_cselect_b32 PLO, s22, PLO
        s_cselect_b32 PHI, s23, PHI
        s_cselect_b32 s52, 0, s52
        s_add_u32 PLO, PLO, s52
        s_addc_u32 PHI, PHI, 0
        s_mov_b32 PNR, 4
        s_mov_b32 PW3, 0x20000
        v_mov_b32 v9, 0
        s_mov_b64 exec, 1
        buffer_load_dword DST, v9, PSRD, 0 offen {polT}
        s_mov_b64 exec, -1
        {X}:""".replace("PLO", "s96").replace("PHI", "s97").replace("PNR", "s98").replace("PW3", "s99").replace("PSRD", "s[96:99]").replace("DST", "v31"))
    if cts:
        X, Z = a.label("cs"), a.label("csf")
        a(f"""s_cmp_ge_u32 s2, {ID_F}
        s_cbranch_scc1 {Z}
        s_cmp_ge_u32 s2, {ID_O}
        s_cbranch_scc1 {X}
        v_mul_u32_u24 v8, {511*1152}, v1
        s_mov_b64 exec, 3
        buffer_load_dword v31, v8, s[36:39], 0 offen nt
        s_branch {X}
        {Z}:
        v_lshlrev_b32 v8, 21, v1
        s_mov_b64 exec, 7
        buffer_load_dword v31, v8, s[40:43], 0 offen nt
        buffer_load_dword v31, v8, s[44:47], 0 offen nt
        s_mov_b64 exec, 1
        buffer_load_dword v31, v8, s[48:51], 0 offen nt
        {X}:
        s_mov_b64 exec, -1""")
    a(f"""v_lshrrev_b32 v8, 3, v1
    v_and_b32 v9, 2, v8
    v_mul_u32_u24 v8, 1152, v8
    v_and_b32 v10, 7, v1
    v_xor_b32 v9, v9, v10
    v_lshl_add_u32 v12, v9, 4, v8
    v_xor_b32 v9, 4, v9
    v_lshl_add_u32 v16, v9, 4, v8
    v_lshrrev_b32 v8, 2, v1
    v_lshrrev_b32 v9, 5, v1
    v_mul_u32_u24 v8, 9216, v8
    v_and_b32 v10, 3, v1
    v_xor_b32 v9, v9, v10
    v_lshl_add_u32 v13, v9, 4, v8
    v_xor_b32 v9, 2, v9
    v_lshl_add_u32 v17, v9, 4, v8""")
    for i in range(0 if cwd else 18):
        a(f"""v_add_u32 v8, {64*i}, v1
        v_mul_u32_u24 v9, 911, v8
        v_lshrrev_b32 v9, 16, v9
        v_mul_u32_u24 v10, 72, v9
        v_sub_u32 v10, v8, v10
        v_and_b32 v11, 2, v9
        v_xor_b32 v10, v10, v11
        v_lshrrev_b32 v11, 1, v9
        v_and_b32 v11, 4, v11
        v_xor_b32 v10, v10, v11
        v_mul_u32_u24 v9, 1152, v9
        v_lshl_add_u32 v{32+i}, v10, 4, v9""")
    a(f"""v_mov_b32 v14, 0
    v_lshlrev_b32 v6, 2, v1
    v_add_u32 v6, {L_LANDED}, v6
    s_lshr_b32 s97, s56, 1
    s_mul_i32 s97, s97, {rmul or 0}
    s_mul_i32 s52, s54, {rx}
    s_add_u32 s97, s97, s52
    s_and_b32 s52, s56, 1
    s_mul_i32 s52, s52, 18
    s_add_u32 s97, s97, s52
    s_and_b32 s97, s97, 0xfff
    s_mul_i32 s52, s97, 1821
    s_lshr_b32 s52, s52, 16
    s_mul_i32 s52, s52, 36
    s_sub_u32 s97, s97, s52
    s_mul_i32 s98, s55, {omul or 0}
    s_and_b32 s98, s98, 62
    v_mov_b32 v22, 0
    v_mov_b32 v23, 0
    v_mov_b32 v20, {L_CNT + C_LVL}
    v_mov_b32 v21, {L_CONS}
    s_mov_b32 s63, {npro}
    s_mov_b32 s60, {npro - lag + 1}
    s_mov_b32 s57, {npro*UNIT}
    s_mov_b32 s61, 0""")
    if not ldbar: a("s_barrier")
    assert all((w + 7) // 8 == lag for w in (levels or ()))
    for ph, sr, uend in ((-1, 28, N0),)[:1 if N0 else 0] + ((0, 28, 128), (1, 32, U2 or Uend)) + ((3, 32, Uend),)[:1 if U2 else 0] + ((2, 32, 256),)[:1 if Uend < 256 else 0]:
        L, BK = a.label("ld"), a.label("ldback")
        if ph == 1:
            start_off()
            stamp(1)
        if ph == 2:
            a(f"s_sub_i32 s60, s60, {(Wend + 7) // 8 - lag}")
            W, lag = Wend, (Wend + 7) // 8
        Wp = None
        lv = levels
        if ph == 3:
            lv, Wp = levels2, max(levels2)
            a(f"s_sub_i32 s60, s60, {(Wp + 7) // 8 - lag}")
            W, lag = Wp, (Wp + 7) // 8
        a(f"""{L}:
        s_waitcnt lgkmcnt(0)
        v_readfirstlane_b32 s52, v22
        s_cmp_ge_i32 s52, s61
        s_cbranch_scc1 {BK}""")
        if diag: a(f"s_add_u32 s{ST0+2*(9+max(0,min(ph,1)))}, s{ST0+2*(9+max(0,min(ph,1)))}, 100")
        spin_lds("v21", "v22", "s52", "s61", 1)
        a(f"""{BK}:
        s_mov_b32 m0, s57
        s_sub_u32 s52, s63, {NSLOT-1}
        s_ashr_i32 s61, s52, 2
        s_add_u32 s61, s61, 1
        s_and_b32 s52, s52, 3
        s_lshl_b32 s52, s52, 8
        s_add_u32 s52, s52, {L_CONS}
        v_mov_b32 v21, s52
        ds_read_b32 v22, v21""")
        if ph == -1:
            assert W0 <= W
            unit_loads(sr, True, True, W0, W)
        elif ph == 2:
            unit_loads(sr, True, True, Wend)
        elif levels:
            J = a.label("lj")
            a(f"v_readfirstlane_b32 s52, v23\nds_read_b32 v23, v20")
            order_ = [i for i in range(len(levels)) if i != len(levels)//2]
            labs = {i: a.label("lv") for i in order_}
            for i in order_: a(f"s_cmp_eq_u32 s52, {i+1}\ns_cbranch_scc1 {labs[i]}")
            unit_loads(sr, True, True, lv[len(levels)//2], Wp)
            for i in order_:
                a(f"s_branch {J}\n{labs[i]}:")
                unit_loads(sr, True, True, lv[i], Wp)
            a(f"{J}:")
        else:
            unit_loads(sr, True)
        if diag and ph in (0, 1):
            for k, u in enumerate(ustamps):
                X_ = a.label("st")
                a(f"s_cmp_lg_u32 s63, {u}\ns_cbranch_scc1 {X_}"); stamp(11 + k); a(f"{X_}:")
        a(f"""s_add_u32 s57, s57, {UNIT}
        s_cmp_ge_u32 s57, {RING}
        s_cselect_b32 s57, 0, s57
        s_add_u32 s60, s60, 1
        s_add_u32 s63, s63, 1
        s_cmp_lt_u32 s63, {uend}
        s_cbranch_scc1 {L}""")
    stamp(2)
    if diag:
        for ph in range(2): a(f"s_add_u32 s{ST0+2*(9+ph)}, s{ST0+2*(9+ph)}, s{ST0}\ns_addc_u32 s{ST0+2*(9+ph)+1}, s{ST0+1}, 0")
    a("; ---- loader: weights / cache warm-up, by role")
    a(f"""v_mov_b32 v21, {L_CONS}""")
    def free_check(cnt):
        L, D = a.label("fc"), a.label("fcd")
        a(f"""{L}:
        ds_read_b32 v24, v21
        ds_read_b32 v25, v21 offset:256
        ds_read_b32 v26, v21 offset:512
        ds_read_b32 v27, v21 offset:768
        s_waitcnt lgkmcnt(0)
        v_min_i32 v24, v24, v25
        v_min3_i32 v24, v24, v26, v27
        v_readfirstlane_b32 s52, v24
        s_cmp_ge_i32 s52, {cnt}
        s_cbranch_scc1 {D}
        s_sub_u32 {sTO}, {sTO}, 1
        s_cbranch_scc1 L_end
        s_branch {L}
        {D}:""")
    def weights(doO, doF, r0=0):
        seq = []
        have = [0]; npf = [0]; ngu = [0]
        def mat(base, n, vr, sr, step):
            for i in range(n):
                c = need_cnt(base + 1024*i, base + 1024*(i+1))
                if c > have[0]:
                    have[0] = c
                    seq.append(("check", c))
                seq.append(("load", base + 1024*i, vr(i), sr, step(i)))
        if doO:
            if omul is not None:
                seq.append(("check", need_cnt(WO_L, WO_L + 65536))); have[0] = seq[-1][1]
            mat(WO_L, 64, lambda i: 12 + 4*(i & 1), 36, lambda i: i * 8 * 1152); seq.append(("mark", 257))
        if doF:
            mk = 258
            for o in (order if not cwd else "g"):
                if o == "g" and cpf:
                    a(f"""s_mul_i32 s57, s56, {cpf[0]*8192 - 64}
                    v_lshlrev_b32 v14, 7, v1
                    v_add_u32 v14, s57, v14""")
                    for t in range(2 * cpf[0]): seq.append(("load", None, 14, 40 + 4*(t & 1), -(t >> 1) * 8192 - 1))
                if o == "g":
                    seq.append(("check", need_cnt(WG_L, WU_L + 36864))); have[0] = max(have[0], seq[-1][1])
                    for i in [(k + r0) % 36 for k in range(36)]:
                        seq.append(("load", WG_L + 1024*i, 13, 40, i * 16 * 9216)); seq.append(("load", WU_L + 1024*i, 17, 44, i * 16 * 9216))
                else:
                    mat(WD_L, 36, lambda i: 32 + i % 18, 48, lambda i: (i // 18) * 16 * 1152)
                    if ndef:
                        loads = [k for k, it in enumerate(seq) if it[0] == "load"]
                        k = loads[-ndef]
                        while seq[k-1][0] == "check": k -= 1
                        seq[k:k] = [("mark", mk), ("wait", C_WD)]; mk += 1
                seq.append(("mark", mk)); mk += 1
        if not doO and not doF and cpf:
            srd(40, 16, 17, str(576*9216))
            srd(44, 18, 19, str(576*9216))
            a(f"""s_sub_u32 s57, s2, {ID_O}
            s_mul_i32 s57, s57, {cpf[1]*8192}
            s_add_u32 s57, s57, {144*cpf[0]*8192}
            v_lshlrev_b32 v14, 7, v1
            v_add_u32 v14, s57, v14""")
            for t in range(2 * cpf[1]): seq.append(("load", None, 14, 40 + 4*(t & 1), -(t >> 1) * 8192 - 1))
        elif not doO and not doF and (spf or spd or spo):
            a(f"""s_mul_i32 s57, s54, 1152
            s_sub_u32 s61, {576*9216}, s57""")
            srd(40, 16, 17, "s61", "s57")
            srd(44, 18, 19, "s61", "s57")
            a(f"""s_sub_u32 s59, s55, 9
            s_mul_i32 s59, s59, {7*9216}
            v_mul_u32_u24 v8, 7282, v1
            v_lshrrev_b32 v8, 16, v8
            v_mul_u32_u24 v9, 9, v8
            v_sub_u32 v9, v1, v9
            v_mul_u32_u24 v8, 9216, v8
            v_lshl_add_u32 v15, v9, 7, v8
            v_lshlrev_b32 v18, 7, v1
            s_bfm_b64 exec, 63, 0""")
            dl = []
            if spo:
                a(f"""s_mul_i32 s57, s54, {512*1152}
                s_sub_u32 s53, 13, s55
                s_lshl_b32 s53, s53, 13
                s_mov_b64 exec, -1
                v_add_u32 v18, s53, v18
                s_bfm_b64 exec, 63, 0""")
                srd(36, 12, 13, str(512*1152), "s57")
                for t in range(spo): seq.append(("load", None, 18, 36, -((67 - 5*t) * 8192) - 1))
            if spd:
                a(f"""s_mul_i32 s57, s54, {18*32*1152}
                s_sub_u32 s53, s55, 9
                s_mul_i32 s53, s53, {17*63*128}
                s_add_u32 s57, s57, s53
                s_sub_u32 s61, {18*32*1152}, s53
                v_lshlrev_b32 v14, 7, v1""")
                srd(48, 20, 21, "s61", "s57")
                dl = [("load", None, 14, 48, t * 63 * 128) for t in range(spd)]
            if spdfirst: seq += dl
            for t in range(2 * spf):
                k = t >> 1
                top = (575 if k % 2 == 0 else 287) - 35 * (k >> 1) if rot else 575 - 35 * k
                seq.append(("load", None, 15, 40 + 4*(t & 1), (top - 6) * 9216))
            if not spdfirst: seq += dl
        ev = [(8*u + 7, u + 1) for u in range(256 - lag, 256)]
        n = 2048
        for it in seq:
            if it[0] == "load": n += 1
            elif it[0] == "mark": ev.append((n - 1, it[1]))
        ev.sort()
        n = 2048
        def publish(v):
            a(f"v_mov_b32 v7, {v}\nds_write_b32 v6, v7")
            if v >= 256: stamp(min(v, 259) - 256 + 4)
        for it in seq:
            hh = holdO if doO else holdF if doF else holdS
            if hh is not None and it[0] == "load" and n == 2048 + hh:
                while ev and ev[0][1] <= 256:
                    idx, v = ev.pop(0)
                    a(f"s_waitcnt vmcnt({n - 1 - idx})"); publish(v)
                a(f"v_mov_b32 v24, {L_CNT + C_OP}")
                spin_lds("v24", "v25", "s52", 1)
            if it[0] == "wait":
                a(f"v_mov_b32 v24, {L_CNT + C_IS}\nv_mov_b32 v25, 1\ns_mov_b64 exec, 1\nds_write_b32 v24, v25\ns_mov_b64 exec, -1")
                while ev and ev[0][0] < n:
                    idx, v = ev.pop(0)
                    a(f"s_waitcnt vmcnt({n - 1 - idx})"); publish(v)
                a(f"v_mov_b32 v24, {L_CNT + it[1]}")
                spin_lds("v24", "v25", "s52", 1)
            if it[0] == "check":
                while ev and ev[0][1] <= 256 and ((ev[0][1] - 1) >> 2) + 1 <= it[1]:
                    idx, v = ev.pop(0)
                    a(f"s_waitcnt vmcnt({n - 1 - idx})"); publish(v)
                free_check(it[1])
            elif it[0] == "load":
                _, la, vr, sr, so = it
                w = W if n - W < 2047 else (WO2 if (doO and WO2) else W2)
                if doF and Wd and sr == 48 and n - W >= 2047: w = Wd
                if doF and Wh and n < 2048 + NH: w = Wh
                if doF and ramp:
                    w = [ww for nn, ww in ramp if n - 2048 >= nn][-1]
                if doF and cpf:
                    if sr == 48: w = W if n - W < 2047 else Wd0
                    elif la is None:
                        npf[0] += 1
                        w = max(Wd0 - 6 * npf[0], 0) + npf[0] if Wd0 - 6 * npf[0] > 0 else wpf
                    else:
                        ngu[0] += 1
                        w = min(63, wpf + ngu[0]) if ngu[0] < W2 else W2
                elif la is None:
                    t = n - 2048
                    w = max(0, W - 5 - 4*t) + t + 1 if W - 5 - 4*t > 0 else spw
                while ev and ev[0][0] < n - w:
                    idx, v = ev.pop(0)
                    a(f"s_waitcnt vmcnt({n - 1 - idx})"); publish(v)
                if la is None:
                    if so < 0:
                        a(f"s_mov_b64 s[98:99], exec\ns_mov_b64 exec, -1\nv_add_u32 v31, {-so - 1}, v{vr}\ns_waitcnt vmcnt({w-1})\nbuffer_load_dword v30, v31, s[{sr}:{sr+3}], 0 offen\ns_mov_b64 exec, s[98:99]")
                    elif sr == 48:
                        a(f"v_add_u32 v31, {so}, v{vr}\ns_waitcnt vmcnt({w-1})\nbuffer_load_dword v30, v31, s[{sr}:{sr+3}], 0 offen")
                    else:
                        a(f"s_sub_u32 s58, {so}, s59\ns_waitcnt vmcnt({w-1})\nbuffer_load_dword v30, v{vr}, s[{sr}:{sr+3}], s58 offen")
                else:
                    if rmul is not None and sr == 40:
                        a(f"s_lshl_b32 s99, s97, 10\ns_add_u32 m0, s99, {WG_L}\ns_mul_i32 s58, s97, {16*9216}\ns_waitcnt vmcnt({w-1})")
                    elif rmul is not None and sr == 44:
                        a(f"s_add_u32 m0, s99, {WU_L}\ns_add_u32 s97, s97, 1\ns_cmp_eq_u32 s97, 36\ns_cselect_b32 s97, 0, s97\ns_waitcnt vmcnt({w-1})")
                    elif omul is not None and sr == 36:
                        a(f"s_lshl_b32 s99, s98, 10\ns_add_u32 m0, s99, {WO_L}\ns_mul_i32 s58, s98, {8*1152}\ns_add_u32 s98, s98, 1\ns_and_b32 s98, s98, 63\ns_waitcnt vmcnt({w-1})")
                    else:
                        a(f"s_mov_b32 m0, {la}\ns_mov_b32 s58, {so}\ns_waitcnt vmcnt({w-1})")
                    a(f"buffer_load_dwordx4 v{vr}, s[{sr}:{sr+3}], s58 offen {polW} lds")
                last = None
                while ev and ev[0][0] <= n - w: last = ev.pop(0)[1]
                if last is not None: publish(last)
                n += 1
        if doO or doF:
            if isback:
                while ev and ev[0][0] < n - isback:
                    idx, v = ev.pop(0)
                    a(f"s_waitcnt vmcnt({n - 1 - idx})"); publish(v)
                a(f"s_waitcnt vmcnt({isback})")
            a(f"v_mov_b32 v24, {L_CNT + C_IS}\nv_mov_b32 v25, 1\ns_mov_b64 exec, 1\nds_write_b32 v24, v25\ns_mov_b64 exec, -1")
        while ev:
            idx, v = ev.pop(0)
            a(f"s_waitcnt vmcnt({n - 1 - idx})")
            publish(v)
        a("s_waitcnt lgkmcnt(0)")
        stamp(3)
        a("s_branch L_fin" if only is None else "s_branch L_end")
    LO, LF = a.label("wO"), a.label("wF")
    a(f"s_cmp_lt_u32 s2, {ID_O}\ns_cbranch_scc1 {LO}\ns_cmp_ge_u32 s2, {ID_F}\ns_cbranch_scc1 {LF}")
    weights(False, False)
    a(f"{LO}:"); weights(True, False)
    a(f"{LF}:")
    if rot and rmul is None:
        LF2 = a.label("wF2")
        a(f"s_bitcmp1_b32 s56, 0\ns_cbranch_scc1 {LF2}")
        weights(False, True)
        a(f"{LF2}:"); weights(False, True, 18)
    else:
        weights(False, True)
    MK_G = 258 + order.index("g")
    MK_D = 258 + order.index("d")

    vTAG, vE, vXR, vLND, vCON, vPF_, vQ, vAK, vAV, vCNT, vONE, vM, vL, vPG = 16, 17, 18, 21, 22, 23, 24, 40, 44, 45, 46, 47, 48, 248
    vA, vF, vD, vSA, vS, vP, vO = 50, 58, 90, 98, 106, 138, 142
    PRE = [178, 210, vF][3-npre:] if npre else []
    vG = 106
    vPA, vXF, vXO, vPF2 = 246, 247, 23, 245
    sHK = "s57"
    WS, XS, WQS, OUTS = "s[28:31]", "s[32:35]", "s[36:39]", "s[40:43]"
    LOG2E = fhex(1.4426950408889634)
    def one(x): a(f"s_mov_b64 exec, 1\n{x}\ns_mov_b64 exec, -1")
    def arrive_last(cnt, notlast, n=4):
        a(f"s_mov_b64 exec, 1\nds_add_rtn_u32 v5, v{vCNT}, v{vONE} offset:{cnt}\ns_waitcnt lgkmcnt(0)\nv_readfirstlane_b32 s52, v5\ns_mov_b64 exec, -1")
        a(f"s_cmp_lg_u32 s52, {n-1}\ns_cbranch_scc1 {notlast}")
    def barrier(cnt, hw=False):
        if hw and hwbar:
            a("s_mov_b64 exec, -1\ns_waitcnt lgkmcnt(0)\ns_barrier")
            return
        G = a.label("go")
        a(f"s_mov_b64 exec, 1\nds_add_rtn_u32 v5, v{vCNT}, v{vONE} offset:{cnt}\ns_waitcnt lgkmcnt(0)\nv_readfirstlane_b32 s52, v5\ns_mov_b64 exec, -1")
        a(f"s_cmp_eq_u32 s52, 3\ns_cbranch_scc1 {G}")
        spin_lds(f"v{vCNT}", "v5", "s52", 4, off=cnt)
        a(f"{G}:")
    def red63(op, *vs):
        for m in ("row_ror:8", "row_ror:4", "row_ror:2", "row_ror:1"):
            for v in vs: a(f"{op}_dpp {v}, {v}, {v} {m} row_mask:0xf bank_mask:0xf")
        for v in vs: a(f"{op}_dpp {v}, {v}, {v} row_bcast:15 row_mask:0xa bank_mask:0xf")
        for v in vs: a(f"{op}_dpp {v}, {v}, {v} row_bcast:31 row_mask:0xc bank_mask:0xf")
    def red_par(op, v, t):
        for m in ("row_ror:8", "row_ror:4", "row_ror:2"):
            a(f"{op}_dpp {v}, {v}, {v} {m} row_mask:0xf bank_mask:0xf")
        a(f"v_mov_b32 {t}, {v}\nv_permlane16_swap_b32 {t}, {v}\n{op} {v}, {v}, {t}")
        a(f"v_mov_b32 {t}, {v}\nv_permlane32_swap_b32 {t}, {v}\n{op} {v}, {v}, {t}")
    def rnd2(x, y, t):
        a(f"v_cvt_pk_bf16_f32 {t}, {x}, {y}\nv_lshlrev_b32 {x}, 16, {t}\nv_and_b32 {y}, 0xffff0000, {t}")
    def rnd1(x):
        a(f"v_cvt_pk_bf16_f32 {x}, {x}, {x}\nv_and_b32 {x}, 0xffff0000, {x}")
    def tr4(*xs):
        for x in xs: a(f"v_permlane32_swap_b32 v{x}, v{x+1}\nv_permlane32_swap_b32 v{x+2}, v{x+3}")
        for x in xs: a(f"v_add_f32 v{x}, v{x}, v{x+1}\nv_add_f32 v{x+2}, v{x+2}, v{x+3}")
        for x in xs: a(f"v_permlane16_swap_b32 v{x}, v{x+2}")
        for x in xs: a(f"v_add_f32 v{x}, v{x}, v{x+2}")
    def ln_scale(mean, var, t):
        rnd2(mean, var, t)
        a(f"v_add_f32 {var}, {fhex(1e-5)}, {var}"); rnd1(var)
        a(f"v_sqrt_f32 {var}, {var}"); rnd1(var)
        a(f"v_rcp_f32 {var}, {var}")
    def retry(L):
        a(f"s_sub_u32 {sTO}, {sTO}, 1\ns_cbranch_scc1 L_end\ns_branch {L}")
    def pk(d, x, y): a(f"v_pk_add_f32 v[{d}:{d+1}], v[{x}:{x+1}], v[{y}:{y+1}]")
    def sum4(d, srcs):
        pk(d, srcs[0], srcs[1]); pk(d+2, srcs[0]+2, srcs[1]+2)
        for x in srcs[2:]: pk(d, d, x); pk(d+2, d+2, x+2)
    def poison_check(first, n, sums, L, OK):
        pk(4, sums[0], sums[0]+2)
        for x in sums[1:]: pk(4, 4, x); pk(4, 4, x+2)
        a(f"v_cmp_u_f32 vcc, v4, v5\ns_cbranch_vccz {OK}")
        if fastfail:
            a(f"s_mov_b64 exec, vcc\ns_sub_u32 {sTO}, {sTO}, 1\ns_cbranch_scc1 L_end\ns_and_b32 s52, {sTO}, 63\ns_cbranch_scc1 {L}")
        a(f"v_max_u32 v4, v{first}, v{first+1}")
        for i in range(2, n, 2): a(f"v_max3_u32 v4, v4, v{first+i}, v{first+i+1}")
        a(f"v_cmp_eq_u32 vcc, -1, v4\ns_cbranch_vccz {OK}\ns_mov_b64 exec, vcc")
        retry(L)
        a(f"{OK}:\ns_mov_b64 exec, -1")
    def next_unit():
        a(f"""s_add_u32 s58, s58, 4
        s_add_u32 s59, s59, {4*UNIT}
        s_cmp_ge_u32 s59, {RING}
        s_cselect_b32 s52, {RING}, 0
        s_sub_u32 s59, s59, s52""")
    def wait_unit():
        a("s_add_u32 s61, s58, 1")
        spin_lds(f"v{vLND}", "v4", "s52", "s61", 'w3' if sleep3 else sleep)
        if levels: a("s_mov_b32 s63, s52")
    def progress():
        if not levels: return
        assert not lvl2
        X0, X1 = a.label("pg"), a.label("pgx")
        G = vPG
        if pgper > 1: a(f"s_and_b32 s52, s60, {pgper-1}\ns_cbranch_scc1 {X1}")
        a(f"""s_lshr_b32 s52, {5 if pg2 else pubm}, s3
        s_bitcmp0_b32 s52, 0
        s_cbranch_scc1 {X0}
        s_add_u32 s52, s63, s97
        v_add_u32 v5, s52, v{vTAG}
        s_bfm_b64 exec, {tfull or 1}, 0
        buffer_store_dword v5, v{vPF2 if tfull else 7}, {WS}, s50 offen {pgstf}
        s_mov_b64 exec, -1
        {'' if (pubm >> pgw) & 1 else f's_branch {X1}'}
        {X0}:""")
        if not pg2: a(f"s_cmp_lg_u32 s3, {pgw}\ns_cbranch_scc1 {X1}")
        if tab:
            if tab == "atomic": ld = f"v_mov_b32 v{G}, 0\ns_bfm_b64 exec, 32, 0\nbuffer_atomic_or v{G}, v{vPA}, {WS}, s48 offen sc0\ns_mov_b64 exec, -1"
            else: ld = f"s_bfm_b64 exec, 32, 0\nbuffer_load_dword v{G}, v{vPA}, {WS}, s48 offen {tab}\ns_mov_b64 exec, -1"
            if pgimm: a(ld)
            a(f"s_waitcnt vmcnt(0)\nv_sub_u32 v5, v{G}, v{vTAG}")
            if not pgimm: a(ld)
            a(f"""v_readlane_b32 s52, v5, s55
            s_bfm_b64 exec, 32, 0
            v_cmp_gt_u32 vcc, 0x200, v5
            s_mov_b64 exec, -1
            v_subrev_u32 v5, s52, v5
            s_bcnt1_i32_b64 s61, vcc
            s_cmp_ge_u32 s52, 0x200
            s_cbranch_scc1 {X1}
            v_cndmask_b32 v5, v7, v5, vcc""")
            red63("v_add_u32", "v5")
        else:
            ld = f"v_lshlrev_b32 v4, 4, v1\nbuffer_load_dwordx4 v[{G}:{G+3}], v4, {WS}, s48 offen sc1"
            if pgimm: a(ld)
            a("s_waitcnt vmcnt(0)")
            for r in range(4): a(f"v_sub_u32 v{8+r}, v{G+r}, v{vTAG}")
            if not pgimm: a(ld)
            a(f"""v_cndmask_b32 v4, v8, v9, s[98:99]
            v_cndmask_b32 v5, v10, v11, s[98:99]
            v_cndmask_b32 v4, v4, v5, s[100:101]
            s_lshr_b32 s52, s2, 2
            v_readlane_b32 s52, v4, s52
            v_mov_b32 v5, 0
            s_mov_b32 s61, 0
            s_cmp_ge_u32 s52, 0x200
            s_cbranch_scc1 {X1}""")
            for r in range(4):
                a(f"""v_cmp_gt_u32 vcc, 0x200, v{8+r}
                v_subrev_u32 v{8+r}, s52, v{8+r}
                s_bcnt1_i32_b64 s96, vcc
                v_cndmask_b32 v{8+r}, v7, v{8+r}, vcc
                s_add_u32 s61, s61, s96
                v_add_u32 v5, v5, v{8+r}""")
            red63("v_add_u32", "v5")
        a(f"""v_readlane_b32 s96, v5, 63
        s_mov_b32 s53, {len(levels)//2 + 1}
        s_lshl_b32 s96, s96, 6""")
        if pgoff: a(f"s_mul_i32 s52, s61, {int(pgoff*64)}\ns_add_i32 s96, s96, s52")
        for k, t in enumerate(thr):
            a(f"""s_mul_i32 s52, s61, {int(t*64)}
            s_cmp_gt_i32 s96, s52
            s_cselect_b32 s53, {len(levels)//2 + 2 + k}, s53
            s_sub_i32 s52, 0, s52
            s_cmp_lt_i32 s96, s52
            s_cselect_b32 s53, {len(levels)//2 - k}, s53""")
        if rk:
            Y = a.label("rk")
            a(f"s_cmp_le_u32 s60, 32\ns_cbranch_scc1 {Y}\nds_read_b32 v5, v{vCNT} offset:{C_RK}\ns_waitcnt lgkmcnt(0)\nv_readfirstlane_b32 s52, v5\ns_mov_b32 s96, 0\ns_mov_b32 s61, 0")
            for lo, until in rk[0]: a(f"s_cmp_ge_u32 s52, {lo}\ns_cselect_b32 s96, {until}, s96")
            for hi, until in rk[1]: a(f"s_cmp_le_u32 s52, {hi}\ns_cselect_b32 s61, {until}, s61")
            a(f"""s_cmp_lt_u32 s60, s96
            s_addc_u32 s53, s53, 0
            s_cmp_lt_u32 s60, s61
            s_subb_u32 s53, s53, 0
            s_min_u32 s53, s53, {len(levels)}
            s_max_u32 s53, s53, 1
            {Y}:""")
        a(f"v_mov_b32 v5, s53")
        one(f"ds_write_b32 v{vCNT}, v5 offset:{C_LVL}")
        a(f"{X1}:")
    def notice(base_expr, lanes, stride):
        a(base_expr)
        if lanes == 1:
            one(f"buffer_store_dword v{vTAG}, v7, {WS}, s53 offen sc0 sc1")
        else:
            a(f"v_mul_u32_u24 v5, {stride}, v1\ns_bfm_b64 exec, {lanes}, 0\nbuffer_store_dword v{vTAG}, v5, {WS}, s53 offen sc0 sc1\ns_mov_b64 exec, -1")
    def notice_load(n, sreg):
        a(f"v_lshlrev_b32 v5, 7, v1\ns_bfm_b64 exec, {n}, 0\nbuffer_load_dword v{vSA}, v5, {WS}, {sreg} offen sc0 sc1\ns_mov_b64 exec, -1")
    def notice_wait(n, sreg, issued, delay):
        L, C, D = a.label("nw"), a.label("nc"), a.label("nd")
        a(f"v_lshlrev_b32 v{vSA+1}, 7, v1\ns_bfm_b64 exec, {n}, 0")
        if issued: a(f"s_branch {C}")
        a(f"""{L}:
        buffer_load_dword v{vSA}, v{vSA+1}, {WS}, {sreg} offen sc0 sc1
        {C}:
        s_waitcnt vmcnt(0)
        v_cmp_ne_u32 vcc, v{vSA}, v{vTAG}
        s_cbranch_vccz {D}
        s_mov_b64 exec, vcc""")
        retry(L)
        a(f"{D}:\ns_mov_b64 exec, -1")
        if delay: a(f"s_sleep {delay}")
    def k_read(F):
        for i in range(4): a(f"v_add_u32 v{vA+i}, s59, v{vAK+i}")
        for T in range(2):
            for i in range(4): a(f"ds_read_b128 v[{F+16*T+4*i}:{F+16*T+4*i+3}], v{vA+i} offset:{4096*T}")
        a(f"s_add_u32 s60, s60, 1\nv_mov_b32 v4, s60\ns_waitcnt lgkmcnt(0)\nds_write_b32 v{vCON}, v4")
    def k_mfma(F, between=None):
        for i in range(4):
            for T in range(2):
                c = "0" if i == 0 else f"v[{vD+4*T}:{vD+4*T+3}]"
                a(f"v_mfma_f32_16x16x32_bf16 v[{vD+4*T}:{vD+4*T+3}], v[{F+16*T+4*i}:{F+16*T+4*i+3}], v[{vQ+4*i}:{vQ+4*i+3}], {c}")
        if between: between()
        for r in range(8): a(f"v_cndmask_b32 v{vSA+r}, v{vSA+r}, v{vD+r}, s[46:47]")
        a("s_lshl_b64 s[46:47], s[46:47], 2")
    vB = vO + 4
    def v_addr():
        a(f"v_add_u32 v{vA}, s59, v{vAV}")
        for b in range(1, 8): a(f"v_xor_b32 v{vA+b}, {hex(32*b)}, v{vA}")
    def v_read(F):
        for b in range(8):
            for T in range(2): a(f"ds_read_b64_tr_b16 v[{F+4*b+2*T}:{F+4*b+2*T+1}], v{vA+b} offset:{4096*T}")
        a(f"s_add_u32 s60, s60, 1\nv_mov_b32 v4, s60")
    def v_mfma(F, waits):
        for b in range(8):
            if waits: a(f"s_waitcnt lgkmcnt({waits-2*b})")
            a(f"v_mfma_f32_16x16x32_bf16 v[{vO}:{vO+3}], v[{F+4*b}:{F+4*b+3}], v[{vB+4*b}:{vB+4*b+3}], v[{vO}:{vO+3}]")
    def p_spread():
        for r in range(4): a(f"v_cndmask_b32 v{vB+r}, v7, v{vP+r}, s[46:47]")
        for b in range(1, 8):
            for r in range(4): a(f"v_mov_b32_dpp v{vB+4*b+r}, v{vB+r} row_shr:{2*b} row_mask:0xf bank_mask:0xf bound_ctrl:0")
    def p_shift():
        for r in range(4): a(f"v_mov_b32_dpp v{vP+r}, v{vP+r} row_shl:2 row_mask:0xf bank_mask:0xf")
    def make_p():
        for r in range(8): a(f"v_sub_f32 v{vSA+r}, v{vS+r}, v{vM}")
        for r in range(8): a(f"v_mul_f32 v{vSA+r}, {LOG2E}, v{vSA+r}")
        for r in range(8): a(f"v_exp_f32 v{vSA+r}, v{vSA+r}")
        for r in range(8): a(f"v_mul_f32 v{vSA+r}, v{vSA+r}, v{vL}")
        for r in range(4): a(f"v_cvt_pk_bf16_f32 v{vP+r}, v{vSA+2*r}, v{vSA+2*r+1}")
        for r in range(24): a(f"v_mov_b32 v{vS+r}, v{vS+8+r}")

    WQ, X4, X = 106, 124, 130
    a("; ---- compute waves: start-up, LayerNorm, query tile")
    a(f"""L_cons:
    s_sub_u32 s3, s3, 1
    s_lshr_b32 {sHK}, s1, 4
    v_lshlrev_b32 v4, 4, v1
    v_lshlrev_b32 v5, 1, v1
    v_lshlrev_b32 v6, 13, v2
    v_lshl_add_u32 v6, v3, 3, v6
    s_and_b32 s52, s1, 3
    s_mul_i32 s58, s52, 144
    s_mul_i32 s53, s3, 36
    s_add_u32 s58, s58, s53
    s_lshl_b32 s52, s58, 13
    s_lshr_b32 s53, s1, 2
    s_lshl_b32 s53, s53, 7
    s_add_u32 s59, s52, s53
    s_sub_u32 s60, {576*8192}, s59
    v_mov_b32 v7, 0
    s_waitcnt lgkmcnt(0)""")
    srd(32, 4, 5, "1152")
    srd(36, 10, 11, "0" if nowq else "s60", "s59")
    a(f"""buffer_load_dwordx4 v[{X4}:{X4+3}], v4, {XS}, 0 offen
    buffer_load_ushort v{X4+4}, v5, {XS}, 0 offen offset:1024
    s_mov_b32 s52, 0""")
    for k in range(9):
        a(f"buffer_load_dwordx2 v[{WQ+2*k}:{WQ+1+2*k}], v6, {WQS}, s52 offen {polQ}")
        if k < 8: a("s_add_u32 s52, s52, 32768")
    srd(28, 26, 27, hex(WS_SZ))
    a(f"buffer_load_dword v{vTAG}, v7, {WS}, 0 offen offset:{O_E} sc0 sc1")
    roles()
    RST = -(-(O_P3 + 144*2304 - O_OP) // 256 // 128) * 128
    assert O_P2 + 8 * P2C == O_P3 and RST <= 3072 and O_OP + 256 * RST <= O_PG
    a(f"""v_mov_b32 v12, -1
    v_mov_b32 v13, -1
    v_mov_b32 v14, -1
    v_mov_b32 v15, -1
    s_lshl_b32 s53, s3, 10
    v_add_u32 v9, s53, v4
    s_mul_i32 s52, s2, {RST}
    s_add_u32 s52, s52, {O_OP}
    v_cmp_gt_u32 vcc, {RST if poison else 0}, v9
    v_add_u32 v9, s52, v9
    v_mov_b32 v8, {OOB}
    v_cndmask_b32 v9, v8, v9, vcc
    buffer_store_dwordx4 v[12:15], v9, {WS}, 0 offen sc0 sc1""")
    LZ = a.label("nz")
    a(f"""v_lshlrev_b32 v{vLND}, 2, v1
    v_add_u32 v{vLND}, {L_LANDED}, v{vLND}
    s_cmp_lg_u32 s3, 0
    s_cbranch_scc1 {LZ}""")
    for i in range(6): a(f"ds_write_b32 v{vLND}, v7 offset:{256*i}")
    a(f"s_waitcnt lgkmcnt(0)\n{LZ}:\ns_barrier")
    srd(40, 22, 23, "1152")
    a(f"""s_lshl_b32 s52, s3, 8
    s_add_u32 s52, s52, 256
    v_add_u32 v{vCON}, s52, v{vLND}
    v_mov_b32 v{vCNT}, {L_CNT}
    v_mov_b32 v{vONE}, 1
    v_and_b32 v8, 1, v2
    v_lshlrev_b32 v8, 1, v8
    v_lshrrev_b32 v9, 1, v2
    v_or_b32 v8, v8, v9
    v_lshl_add_u32 v{vE}, v3, 2, v8
    s_mov_b32 s44, 0x000f000f
    s_mov_b32 s45, 0x000f000f
    v_and_b32 v8, 7, v3
    v_lshlrev_b32 v8, 1, v8
    v_xor_b32 v8, v8, v2
    v_lshlrev_b32 v8, 4, v8
    v_lshl_add_u32 v{vAK}, v3, 8, v8
    v_xor_b32 v{vAK+1}, 64, v{vAK}
    v_xor_b32 v{vAK+2}, 0x80, v{vAK}
    v_xor_b32 v{vAK+3}, 0xc0, v{vAK}
    v_lshrrev_b32 v8, 2, v1
    v_and_b32 v9, 7, v8
    v_lshlrev_b32 v9, 5, v9
    v_lshl_add_u32 v9, v8, 8, v9
    v_and_b32 v8, 3, v1
    v_lshl_add_u32 v{vAV}, v8, 3, v9""")
    a("s_waitcnt vmcnt(11)")
    stamp(1)
    for i in range(4):
        a(f"v_lshlrev_b32 v{X+2*i}, 16, v{X4+i}\nv_and_b32 v{X+2*i+1}, 0xffff0000, v{X4+i}")
    a(f"v_lshlrev_b32 v{X+8}, 16, v{X4+4}")
    pk(8, X, X+2); pk(10, X+4, X+6); pk(8, 8, 10)
    a(f"v_add_f32 v8, v8, v9\nv_add_f32 v8, v8, v{X+8}")
    red63("v_add_f32", "v8")
    a(f"v_readlane_b32 s52, v8, 63\nv_mov_b32 v8, {fhex(1/576)}\nv_mul_f32 v8, s52, v8")
    a(f"v_sub_f32 v10, v{X}, v8\nv_mul_f32 v9, v10, v10")
    for i in range(1, 9): a(f"v_sub_f32 v10, v{X+i}, v8\nv_fmac_f32 v9, v10, v10")
    red63("v_add_f32", "v9")
    a(f"v_readlane_b32 s52, v9, 63\nv_mov_b32 v9, {fhex(1/576)}\nv_mul_f32 v9, s52, v9")
    ln_scale("v8", "v9", "v10")
    for i in range(9): a(f"v_sub_f32 v{X+i}, v{X+i}, v8")
    for i in range(0, 8, 2): rnd2(f"v{X+i}", f"v{X+i+1}", "v10")
    rnd1(f"v{X+8}")
    for i in range(9): a(f"v_mul_f32 v{X+i}, v{X+i}, v9")
    for i in range(0, 8, 2): rnd2(f"v{X+i}", f"v{X+i+1}", "v10")
    rnd1(f"v{X+8}")
    a(f"""v_lshlrev_b32 v8, 5, v1
    v_add_u32 v8, {L_XN}, v8
    ds_write_b128 v8, v[{X}:{X+3}]
    ds_write_b128 v8, v[{X+4}:{X+7}] offset:16
    v_lshlrev_b32 v8, 2, v1
    v_add_u32 v8, {L_XN+2048}, v8
    ds_write_b32 v8, v{X+8}
    v_add_u32 v8, s58, v2
    v_lshlrev_b32 v8, 2, v8
    v_add_u32 v8, {L_XN}, v8
    s_waitcnt lgkmcnt(0)""")
    for k in range(9): a(f"ds_read_b32 v{X+k}, v8 offset:{16*k}")
    for i in range(4): a(f"v_mov_b32 v{12+i}, 0")
    a(f"""s_lshl_b32 s52, s3, 8
    s_add_u32 s52, s52, {L_QRED}
    v_lshl_add_u32 v6, v{vE}, 2, s52
    s_waitcnt lgkmcnt(0)""")
    for k in range(9):
        w = WQ + 2*k
        a(f"""s_waitcnt vmcnt({10-k})
        v_lshlrev_b32 v8, 16, v{w}
        v_and_b32 v9, 0xffff0000, v{w}
        v_lshlrev_b32 v10, 16, v{w+1}
        v_and_b32 v11, 0xffff0000, v{w+1}
        v_fmac_f32 v12, v8, v{X+k}
        v_fmac_f32 v13, v9, v{X+k}
        v_fmac_f32 v14, v10, v{X+k}
        v_fmac_f32 v15, v11, v{X+k}""")
    tr4(12)
    a(f"""ds_write_b32 v6, v12
    s_waitcnt vmcnt(1)
    v_add_u32 v{vTAG}, {hex(TAGC)}, v{vTAG}""")
    NL = a.label("qnl")
    arrive_last(C_Q, NL)
    a(f"""v_lshlrev_b32 v8, 2, v1
    v_add_u32 v8, {L_QRED}, v8
    ds_read_b32 v12, v8
    ds_read_b32 v13, v8 offset:256
    ds_read_b32 v14, v8 offset:512
    ds_read_b32 v15, v8 offset:768
    s_lshl_b32 s52, s1, 9
    s_add_u32 s52, s52, {O_QX}
    v_lshlrev_b32 v8, 3, v1
    s_waitcnt lgkmcnt(0)
    v_add_f32 v12, v12, v13
    v_add_f32 v14, v14, v15
    v_add_f32 v12, v12, v14
    v_mov_b32 v13, v{vTAG}
    {'s_nop 0' if noqs else f'buffer_store_dwordx2 v[12:13], v8, {WS}, s52 offen sc0 sc1'}""")
    a(f"{NL}:")
    stamp(2)
    a(f"""s_mov_b32 s58, s3
    s_lshl_b32 s59, s3, 13
    s_mov_b32 s60, 0
    s_mov_b32 s46, 0x00030003
    s_mov_b32 s47, 0x00030003
    v_mov_b32 v{vM}, {fhex(-3.0e38)}
    v_mov_b32 v{vL}, 0""")
    if levels:
        a(f"""s_getreg_b32 s49, hwreg(HW_REG_XCC_ID, 0, 3)
        s_lshl_b32 s48, s49, 12
        s_add_u32 s48, s48, {O_PG}
        s_lshl_b32 s50, {'s55' if tab else 's2'}, {tsh}
        s_add_u32 s50, s50, s48
        v_lshlrev_b32 v{vPA}, {tsh}, v1
        v_lshlrev_b32 v{vPF2}, 2, v1
        s_cmp_lt_u32 s2, {ID_O}
        s_cselect_b32 s97, {8 - obias}, 8
        s_cmp_ge_u32 s2, {ID_F}
        s_cselect_b32 s97, {8 - fbias}, s97
        s_bitcmp1_b32 s2, 0
        s_cselect_b64 s[98:99], -1, 0
        s_bitcmp1_b32 s2, 1
        s_cselect_b64 s[100:101], -1, 0""")
        for r in range(6): a(f"v_add_u32 v{vPG+r}, 0x800, v{vTAG}")
    for F in PRE:
        wait_unit(); k_read(F); next_unit()
        if pgpre & 1: progress()
    LQ, LQD = a.label("qg"), a.label("qgd")
    a(f"""s_lshl_b32 s52, {sHK}, 13
    s_lshl_b32 s53, s3, 11
    s_add_u32 s61, s52, s53
    s_add_u32 s61, s61, {O_QX}
    v_lshlrev_b32 v8, 3, v1""")
    LQW = a.label("qw")
    if q1 is not None:
        for k in range(4): a(f"buffer_load_dwordx2 v[{WQ+2*k}:{WQ+1+2*k}], v8, {WS}, s61 offen offset:{512*k} {q1}")
        a(f"s_branch {LQW}")
    a(f"{LQ}:")
    if noqg: a(f"s_branch {LQD}")
    for k in range(4): a(f"buffer_load_dwordx2 v[{WQ+2*k}:{WQ+1+2*k}], v8, {WS}, s61 offen offset:{512*k} sc0 sc1")
    a(f"""{LQW}:
    s_waitcnt vmcnt(0)
    v_xor_b32 v12, v{WQ+1}, v{vTAG}
    v_xor_b32 v13, v{WQ+3}, v{vTAG}
    v_xor_b32 v14, v{WQ+5}, v{vTAG}
    v_xor_b32 v15, v{WQ+7}, v{vTAG}
    v_or3_b32 v12, v12, v13, v14
    v_or_b32 v12, v12, v15
    v_cmp_ne_u32 vcc, 0, v12
    s_cbranch_vccz {LQD}""")
    retry(LQ)
    a(f"""{LQD}:
    v_add_f32 v12, v{WQ}, v{WQ+2}
    v_add_f32 v13, v{WQ+4}, v{WQ+6}
    v_add_f32 v12, v12, v13
    v_cvt_pk_bf16_f32 v12, v12, v12
    s_lshl_b32 s52, s3, 7
    s_add_u32 s52, s52, {L_Q}
    v_lshl_add_u32 v8, v1, 1, s52
    ds_write_b16 v8, v12
    v_and_b32 v8, 1, v3
    v_lshlrev_b32 v8, 8, v8
    v_lshl_add_u32 v8, v2, 4, v8
    v_add_u32 v8, {L_Q}, v8""")
    barrier(C_Q2)
    for i in range(4): a(f"ds_read_b128 v[{vQ+4*i}:{vQ+4*i+3}], v8 offset:{64*i}")
    stamp(3)
    a(f"""s_mul_i32 s52, s3, 144
    v_add_u32 v8, s52, v{vE}
    v_lshlrev_b32 v8, 1, v8
    v_mov_b32 v9, {OOB}
    v_cndmask_b32 v10, v9, v8, s[44:45]
    buffer_load_ushort v{vXR}, v8, {XS}, 0 offen
    buffer_load_ushort v{vXR+1}, v8, {XS}, 0 offen offset:128
    buffer_load_ushort v{vXR+2}, v10, {XS}, 0 offen offset:256""")
    a(f"""s_sub_u32 s52, s2, {ID_O}
    s_lshl_b32 s52, s52, 4
    v_and_b32 v8, 15, v{vE}
    v_add_u32 v8, s52, v8
    v_lshlrev_b32 v8, 1, v8
    v_min_u32 v{vXO}, {OOB}, v8
    buffer_load_ushort v{vXF}, v{vXO}, {XS}, 0 offen
    s_waitcnt lgkmcnt(0)""")
    for F in PRE: k_mfma(F)
    a("; ---- K pass")
    LK, LKE = a.label("kl"), a.label("ke")
    a(f"{LK}:")
    wait_unit(); k_read(vF); k_mfma(vF, next_unit); progress()
    if w1 not in (None, 'ld'):
        Y = a.label("w1k")
        a(f"s_cmp_lg_u32 s60, {w1}\ns_cbranch_scc1 {Y}\ns_cmp_lg_u32 s3, 1\ns_cbranch_scc1 {Y}")
        X = a.label("w1")
        a(f"""s_cmp_ge_u32 s55, 11
        s_cbranch_scc1 {X}
        s_mov_b32 PLO, s16
        s_mov_b32 PHI, s17
        s_lshl_b32 s52, s55, 21
        s_cmp_ge_u32 s55, 3
        s_cselect_b32 PLO, s18, PLO
        s_cselect_b32 PHI, s19, PHI
        s_cselect_b32 s53, {3 << 21}, 0
        s_sub_u32 s52, s52, s53
        s_and_b32 s61, s55, 1
        s_mul_i32 s53, s54, {512*1152}
        s_mul_i32 PNR, s61, {512*1152 - 4}
        s_add_u32 s53, s53, PNR
        s_cmp_ge_u32 s55, 6
        s_cselect_b32 PLO, s12, PLO
        s_cselect_b32 PHI, s13, PHI
        s_cselect_b32 s52, s53, s52
        s_mul_i32 s53, s54, {18*32*1152}
        s_mul_i32 PNR, s61, {18*32*1152 - 4}
        s_add_u32 s53, s53, PNR
        s_cmp_ge_u32 s55, 8
        s_cselect_b32 PLO, s20, PLO
        s_cselect_b32 PHI, s21, PHI
        s_cselect_b32 s52, s53, s52
        s_cmp_ge_u32 s55, 10
        s_cselect_b32 PLO, s22, PLO
        s_cselect_b32 PHI, s23, PHI
        s_cselect_b32 s52, 0, s52
        s_add_u32 PLO, PLO, s52
        s_addc_u32 PHI, PHI, 0
        s_mov_b32 PNR, 4
        s_mov_b32 PW3, 0x20000
        v_mov_b32 v9, 0
        s_mov_b64 exec, 1
        buffer_load_dword DST, v9, PSRD, 0 offen {polT}
        s_mov_b64 exec, -1
        {X}:""".replace("PLO", "s36").replace("PHI", "s37").replace("PNR", "s38").replace("PW3", "s39").replace("PSRD", "s[36:39]").replace("DST", "v49"))
        a(f"{Y}:")
    if vt:
        X = a.label("vt")
        a(f"s_cmp_lg_u32 s60, {vt}\ns_cbranch_scc1 {X}\ns_cmp_lg_u32 s3, 1\ns_cbranch_scc1 {X}\ns_cmp_lg_u32 s55, 12\ns_cbranch_scc1 {X}")
        srd(36, 8, 9, "0x10000000")
        a(f"v_lshlrev_b32 v8, 21, v1\nv_add_u32 v9, 0x8000000, v8\nbuffer_load_dword v{vXF}, v8, s[36:39], 0 offen nt\nbuffer_load_dword v{vXF}, v9, s[36:39], 0 offen nt\n{X}:".replace(f"v{vXF}", "v49"))
    a(f"""s_and_b32 s52, s60, 7
    s_cbranch_scc1 {LK}
    s_mov_b32 s46, 0x00030003
    s_mov_b32 s47, 0x00030003""")
    for r in range(24): a(f"v_mov_b32 v{vS+r}, v{vS+8+r}")
    for r in range(0, 8, 2): rnd2(f"v{vSA+r}", f"v{vSA+r+1}", "v4")
    N = vS + 24
    for r in range(8): a(f"v_mul_f32 v{N+r}, {fhex(128**-0.5)}, v{vSA+r}")
    for r in range(0, 8, 2): rnd2(f"v{N+r}", f"v{N+r+1}", "v4")
    a(f"v_max3_f32 v8, v{vM}, v{N}, v{N+1}")
    for r in range(2, 8, 2): a(f"v_max3_f32 v8, v8, v{N+r}, v{N+r+1}")
    a(f"v_sub_f32 v9, v{vM}, v8\nv_mov_b32 v{vM}, v8")
    for r in range(8): a(f"v_sub_f32 v{vSA+r}, v{N+r}, v8")
    a(f"v_mul_f32 v9, {LOG2E}, v9")
    for r in range(8): a(f"v_mul_f32 v{vSA+r}, {LOG2E}, v{vSA+r}")
    a("v_exp_f32 v9, v9")
    for r in range(8): a(f"v_exp_f32 v{vSA+r}, v{vSA+r}")
    a(f"v_mul_f32 v{vL}, v{vL}, v9")
    pk(vSA, vSA, vSA+2); pk(vSA+4, vSA+4, vSA+6); pk(vSA, vSA, vSA+4)
    a(f"v_add_f32 v{vL}, v{vL}, v{vSA}\nv_add_f32 v{vL}, v{vL}, v{vSA+1}")
    a(f"s_cmp_lg_u32 s60, 32\ns_cbranch_scc1 {LK}")
    stamp(4)
    a("; ---- softmax statistics")
    a(f"v_mov_b32 v8, v{vM}")
    red_par("v_max_f32", "v8", "v4")
    a(f"""v_sub_f32 v9, v{vM}, v8
    v_mul_f32 v9, {LOG2E}, v9
    v_exp_f32 v9, v9
    s_lshl_b32 s53, s3, 4
    s_add_u32 s53, s53, {L_ST}
    v_mul_f32 v9, v9, v{vL}""")
    red_par("v_add_f32", "v9", "v4")
    LM, LMD, NL = a.label("ml"), a.label("mld"), a.label("mnl")
    a(f"""v_lshlrev_b32 v6, 3, v1
    v_add_u32 v4, s53, v6
    s_mov_b64 exec, 3
    ds_write_b64 v4, v[8:9]""")
    arrive_last(C_R, NL)
    a(f"""v_add_u32 v4, {L_ST}, v6
    s_mov_b64 exec, 3""")
    for w in range(4): a(f"ds_read_b64 v[{vSA+2*w}:{vSA+2*w+1}], v4 offset:{16*w}")
    a(f"""s_lshl_b32 s53, s1, 5
    s_add_u32 s53, s53, {O_ML}
    v_lshlrev_b32 v6, 4, v1
    v_mov_b32 v14, v{vTAG}
    v_mov_b32 v15, v{vTAG}
    s_waitcnt lgkmcnt(0)
    v_max_f32 v12, v{vSA}, v{vSA+2}
    v_max3_f32 v12, v12, v{vSA+4}, v{vSA+6}""")
    for w in range(4): a(f"v_sub_f32 v{vSA+2*w}, v{vSA+2*w}, v12")
    for w in range(4): a(f"v_mul_f32 v{vSA+2*w}, {LOG2E}, v{vSA+2*w}")
    for w in range(4): a(f"v_exp_f32 v{vSA+2*w}, v{vSA+2*w}")
    a(f"v_mul_f32 v13, v{vSA}, v{vSA+1}")
    for w in range(1, 4): a(f"v_fmac_f32 v13, v{vSA+2*w}, v{vSA+2*w+1}")
    a(f"""buffer_store_dwordx4 v[12:15], v6, {WS}, s53 offen sc0 sc1
    s_mov_b64 exec, -1""")
    if peekm is not None:
        a(f"""s_lshl_b32 s53, {sHK}, 9
        s_add_u32 s53, s53, {O_ML}
        v_lshlrev_b32 v6, 5, v1
        s_bfm_b64 exec, 16, 0
        buffer_load_dword v12, v6, {WS}, s53 offen offset:8 {peekm}
        s_waitcnt vmcnt(0)
        v_cmp_eq_u32 vcc, v12, v{vTAG}
        s_bcnt1_i32_b64 s52, vcc
        s_mov_b64 exec, -1
        v_mov_b32 v12, s52""")
        one(f"ds_write_b32 v{vCNT}, v12 offset:{C_RK}")
    a(f"{NL}:")
    for r in range(4): a(f"v_mov_b32 v{vO+r}, 0")
    per = 1152 // pfg
    npf = (pf_rows * per + 63) // 64
    a(f"""s_lshr_b32 s52, s2, 3
    s_mul_i32 s52, s52, 18
    s_lshr_b32 s53, s3, 1
    s_mul_i32 s53, s53, 9
    s_add_u32 s52, s52, s53
    s_mul_i32 s52, s52, 9216
    s_and_b32 s53, s2, 7
    s_mul_i32 s53, s53, 1152
    s_add_u32 s52, s52, s53
    s_bitcmp1_b32 s3, 0
    s_cselect_b32 s34, s18, s16
    s_cselect_b32 s35, s19, s17""")
    srd(32, 34, 35, str((pf_rows-1)*9216 + 1152), "s52")
    for F in PRE:
        v_addr(); wait_unit(); v_read(F); a(f"s_waitcnt lgkmcnt(0)\nds_write_b32 v{vCON}, v4"); next_unit()
        if pgpre & 2: progress()
    a(f"""v_and_b32 v6, 31, v1
    v_lshlrev_b32 v6, 4, v6
    s_lshl_b32 s53, {sHK}, 9
    s_add_u32 s53, s53, {O_ML}
    {LM}:
    buffer_load_dwordx4 v[12:15], v6, {WS}, s53 offen sc0 sc1
    s_waitcnt vmcnt(0)
    v_cmp_ne_u32 vcc, v14, v{vTAG}
    s_cbranch_vccz {LMD}
    s_mov_b64 exec, vcc""")
    retry(LM)
    a(f"{LMD}:\ns_mov_b64 exec, -1")
    stamp(5)
    a(f"v_mov_b32 v{vM}, v12")
    red_par("v_max_f32", f"v{vM}", "v4")
    a(f"""v_sub_f32 v12, v12, v{vM}
    v_mul_f32 v12, {LOG2E}, v12
    v_exp_f32 v12, v12
    v_mul_f32 v13, 0.5, v13
    v_mul_f32 v9, v13, v12""")
    red_par("v_add_f32", "v9", "v4")
    a(f"""v_rcp_f32 v10, v9
    v_fma_f32 v11, -v9, v10, 1.0
    v_fma_f32 v{vL}, v11, v10, v10""")
    stamp(6)
    a("; ---- V pass")
    LVG, LV, LVE, LNS = a.label("vg"), a.label("vl"), a.label("ve"), a.label("ns")
    a(f"""s_mov_b32 s46, 0x00030003
    s_mov_b32 s47, 0x00030003
    v_and_b32 v8, 1, v3
    v_lshlrev_b32 v8, 9, v8
    v_lshrrev_b32 v9, 1, v3
    v_lshl_add_u32 v8, v9, 6, v8
    v_lshl_add_u32 v{vQ+14}, v2, 4, v8
    v_add_u32 v8, {L_ORED}, v{vQ+14}""")
    for k in range(4):
        a(f"s_xor_b32 s52, s3, {k}\ns_lshl_b32 s52, s52, 10\nv_add_u32 v{vQ+10+k}, s52, v8")
    make_p()
    for F in PRE: p_spread(); v_mfma(F, 0); p_shift()
    a(f"s_branch {LV}\n{LVG}:")
    LR, LRD, LRX, LRY = a.label("rdy"), a.label("rdyd"), a.label("rdyx"), a.label("rdyy")
    a(f"""s_cmp_lg_u32 s60, {rdyat}
    s_cbranch_scc1 {LRX}
    s_cmp_lg_u32 s3, 1
    s_cbranch_scc1 {LRY}
    v_lshlrev_b32 v4, 5, v1
    s_mov_b32 s52, {O_ML}
    s_mov_b32 s53, {O_ML + 4096}
    {f's_branch {LRD}' if nordy else ''}
    {LR}:
    buffer_load_dword v12, v4, {WS}, s52 offen offset:8 sc0 sc1
    buffer_load_dword v13, v4, {WS}, s52 offen offset:2056 sc0 sc1
    buffer_load_dword v14, v4, {WS}, s53 offen offset:8 sc0 sc1
    buffer_load_dword v15, v4, {WS}, s53 offen offset:2056 sc0 sc1
    s_waitcnt vmcnt(0)
    v_xor_b32 v12, v12, v{vTAG}
    v_xor_b32 v13, v13, v{vTAG}
    v_xor_b32 v14, v14, v{vTAG}
    v_xor_b32 v15, v15, v{vTAG}
    v_or3_b32 v12, v12, v13, v14
    v_or_b32 v12, v12, v15
    v_cmp_ne_u32 vcc, 0, v12
    s_cbranch_vccz {LRD}""")
    retry(LR)
    a(f"{LRD}:")
    one(f"ds_write_b32 v{vCNT}, v{vONE} offset:{C_RD}")
    a(f"""s_cmp_lg_u32 s2, 0
    s_cbranch_scc1 {LRY}
    v_subrev_u32 v12, {hex(TAGC-0x1000)}, v{vTAG}""")
    one(f"buffer_store_dword v12, v7, {WS}, 0 offen offset:{O_E} sc0 sc1")
    a(f"s_branch {LRY}\n{LRX}:\ns_cmp_lg_u32 s60, 56\ns_cbranch_scc1 {LRY}")
    spin_lds(f"v{vCNT}", "v5", "s52", 1, 1, off=C_RD)
    a(f"{LRY}:")
    make_p()
    a(f"{LV}:")
    p_spread(); v_addr()
    a(f"s_cmp_eq_u32 s60, 63\ns_cbranch_scc1 {LVE}")
    wait_unit(); v_read(vF); v_mfma(vF, 14)
    a(f"ds_write_b32 v{vCON}, v4")
    next_unit(); p_shift(); progress()
    if ct:
        X, Z = a.label("ct"), a.label("ctf")
        a(f"""s_cmp_lg_u32 s60, {ct}
        s_cbranch_scc1 {X}
        s_cmp_lg_u32 s3, 1
        s_cbranch_scc1 {X}
        v_lshlrev_b32 v8, 21, v1
        s_mov_b64 exec, 7
        s_cmp_lt_u32 s2, {ID_O}
        s_cbranch_scc1 {Z}""")
        for lo in (16, 18):
            srd(36, lo, lo + 1, str(576*9216))
            a(f"buffer_load_dword v{vQ}, v8, s[36:39], 0 offen nt")
        a(f"{Z}:\ns_mov_b64 exec, 3\ns_mul_i32 s52, s54, {18*32*1152}\nv_mul_u32_u24 v8, {18*32*1152 - 4}, v1")
        srd(36, 20, 21, str(18*32*1152), "s52")
        a(f"buffer_load_dword v{vQ}, v8, s[36:39], 0 offen nt\ns_cmp_ge_u32 s2, {ID_F}\ns_cbranch_scc1 {Z}x\ns_mul_i32 s52, s54, {512*1152}\nv_mul_u32_u24 v8, {512*1152 - 4}, v1")
        srd(36, 12, 13, str(512*1152), "s52")
        a(f"buffer_load_dword v{vQ}, v8, s[36:39], 0 offen nt\n{Z}x:\ns_mov_b64 exec, -1\n{X}:")
    if wt:
        X = a.label("wt")
        a(f"s_cmp_lg_u32 s60, {wt}\ns_cbranch_scc1 {X}\ns_cmp_lg_u32 s3, 1\ns_cbranch_scc1 {X}")
        if not wtall: a(f"s_cmp_lg_u32 s55, 13\ns_cbranch_scc1 {X}")
        a(f"v_lshlrev_b32 v8, 20, v1\ns_mov_b64 exec, 0x3f")
        for lo, nb in ((12, 4096*1152), (16, 576*9216), (18, 576*9216), (20, 4608*1152), (22, 1152)):
            srd(36, lo, lo + 1, str(nb))
            a(f"buffer_load_dword v{vQ}, v8, s[36:39], 0 offen nt")
        a(f"s_mov_b64 exec, -1\n{X}:")
    if icw:
        X, H = a.label("ic"), a.label("ich")
        a(f"""s_cmp_lg_u32 s60, {icw}
        s_cbranch_scc1 {X}
        s_cmp_lg_u32 s3, 1
        s_cbranch_scc1 {X}
        {'' if icall else f's_cmp_lg_u32 s55, 9'}
        {'' if icall else f's_cbranch_scc1 {X}'}
        s_getpc_b64 s[52:53]
        {H}:
        s_sub_u32 s52, s52, {H}-{KN}_kernel
        s_subb_u32 s53, s53, 0
        v_lshlrev_b32 v8, 7, v1""")
        for i in range(4):
            a(f"""v_cmp_gt_u32 vcc, L_end-{KN}_kernel, v8
            s_and_saveexec_b64 s[98:99], vcc
            s_cbranch_execz {X}_e
            global_load_dword v{vQ}, v8, s[52:53]
            v_add_u32 v8, 0x2000, v8""".replace("s[98:99]", "s[34:35]" if False else "vcc"))
        a(f"{X}_e:\ns_mov_b64 exec, -1\n{X}:")
    if tk:
        X = a.label("tk")
        a(f"s_cmp_lg_u32 s60, {tk}\ns_cbranch_scc1 {X}\ns_cmp_lg_u32 s3, 1\ns_cbranch_scc1 {X}")
        srd(36, 24, 25, "256")
        a(f"v_mov_b32 v{vQ+12}, 1")
        one(f"buffer_atomic_add v{vQ+12}, v7, s[36:39], 0 offen sc0 sc1")
        a(f"{X}:")
    def prefetch():
        for i in range(npf):
            a(f"""v_add_u32 v8, {64*i}, v1
            v_mul_u32_u24 v9, {-(-65536 // per)}, v8
            v_lshrrev_b32 v9, 16, v9
            v_mul_u32_u24 v10, {per}, v9
            v_sub_u32 v10, v8, v10
            v_mul_u32_u24 v9, 9216, v9
            v_mul_u32_u24 v10, {pfg}, v10
            v_add_u32 v9, v9, v10
            buffer_load_dword v{vQ}, v9, s[32:35], 0 offen""")
    if pf_at and pf_at < 64:
        a(f"s_cmp_lg_u32 s60, {pf_at}\ns_cbranch_scc1 {LNS}")
        prefetch()
    a(f"""{LNS}:
    s_and_b32 s52, s60, 7
    s_cbranch_scc1 {LV}
    s_branch {LVG}
    {LVE}:""")
    NX = a.label("ox")
    a(f"""s_lshl_b32 s96, s1, 10
    s_add_u32 s96, s96, {O_OP}""")
    wait_unit(); v_read(vF); v_mfma(vF, 14)
    stamp(7)
    a(f"""ds_write_b32 v{vCON}, v4
    ds_write_b128 v{vQ+10}, v[{vO}:{vO+3}]
    s_mov_b64 exec, 1
    ds_add_rtn_u32 v5, v{vCNT}, v{vONE} offset:{C_O}
    s_mov_b64 exec, -1""")
    for w in range(3): a(f"ds_read_b128 v[{vG+4*w}:{vG+4*w+3}], v{vQ+11+w}")
    a(f"""s_waitcnt lgkmcnt(3)
    v_readfirstlane_b32 s52, v5
    s_cmp_lg_u32 s52, 3
    s_waitcnt lgkmcnt(0)
    s_cbranch_scc1 {NX}""" if not diag else f"""s_waitcnt lgkmcnt(0)
    v_readfirstlane_b32 s52, v5
    s_cmp_lg_u32 s52, 3
    s_cbranch_scc1 {NX}""")
    pk(vG+4, vG+4, vG+8); pk(vG+6, vG+6, vG+10); pk(vG, vG, vO); pk(vG+2, vG+2, vO+2); pk(12, vG, vG+4); pk(14, vG+2, vG+6)
    for r in range(4): a(f"v_min_u32 v{12+r}, -2, v{12+r}")
    a(f"buffer_store_dwordx4 v[12:15], v{vQ+14}, {WS}, s96 offen sc0 sc1")
    if (holdS, holdF, holdO) != (None, None, None): one(f"ds_write_b32 v{vCNT}, v{vONE} offset:{C_OP}")
    a(f"{NX}:")
    stamp(8)
    LNO, LNF = a.label("noO"), a.label("noF")
    a(f"""s_cmp_ge_u32 s2, {ID_F}
    s_cbranch_scc1 {LNO}
    s_cmp_ge_u32 s2, {ID_O}
    s_cbranch_scc1 {LNF}""")
    AO, BO, GO, SO = 176, 106, 58, 90
    a(f"""v_lshlrev_b32 v10, 12, v2
    v_lshl_add_u32 v10, v3, 4, v10
    s_lshl_b32 s58, s54, 15
    s_lshr_b32 s52, s3, 1
    s_lshl_b32 s52, s52, 14
    s_add_u32 s58, s58, s52
    s_and_b32 s52, s3, 1
    s_lshl_b32 s52, s52, 9
    s_add_u32 s58, s58, s52
    s_add_u32 s58, s58, {O_OP}
    v_lshrrev_b32 v8, 2, v3
    v_lshl_add_u32 v8, v2, 3, v8
    v_lshlrev_b32 v8, 7, v8
    v_and_b32 v9, 3, v3
    v_lshl_add_u32 v8, v9, 3, v8
    v_lshrrev_b32 v9, 3, v3
    v_lshlrev_b32 v12, 1, v2
    v_and_b32 v12, 2, v12
    v_or_b32 v9, v9, v12
    v_xor_b32 v9, s3, v9
    v_lshl_add_u32 v8, v9, 5, v8
    v_add_u32 v8, {WO_L}, v8
    s_lshl_b32 s52, s3, 8
    s_add_u32 s52, s52, {L_OB}
    v_lshl_add_u32 v6, v{vE}, 1, s52
    v_lshlrev_b32 v9, 4, v2
    v_add_u32 v11, {L_OB}, v9
    v_mul_u32_u24 v12, {P2C}, v3
    v_add_u32 v9, v9, v12
    s_mov_b32 s50, 0x00ff00ff
    s_mov_b32 s51, 0x00ff00ff
    s_mul_i32 s59, s54, 2304
    s_lshl_b32 s53, s55, 8
    s_add_u32 s59, s59, s53
    s_lshl_b32 s53, s3, 6
    s_add_u32 s59, s59, s53
    s_add_u32 s59, s59, {O_P2}
    s_getreg_b32 s60, hwreg(HW_REG_XCC_ID, 0, 3)
    s_lshl_b32 s60, s60, 10
    s_lshl_b32 s53, s2, 2
    s_add_u32 s60, s60, s53
    s_add_u32 s60, s60, {O_H2}
    s_movk_i32 s61, 257""")
    L1, L1D, L1W = a.label("h1"), a.label("h1d"), a.label("h1w")
    def h1_loads():
        for hh in range(2):
            for k in range(4): a(f"buffer_load_dwordx4 v[{GO+16*hh+4*k}:{GO+16*hh+4*k+3}], v10, {WS}, s58 offen offset:{1024*k + 256*hh} sc0 sc1")
    def frags_if(mark, done, body):
        X = a.label("fx")
        a(f"""s_cmp_lg_u32 {done}, 0
        s_cbranch_scc1 {X}
        ds_read_b32 v4, v{vLND}
        s_waitcnt lgkmcnt(0)
        v_readfirstlane_b32 s52, v4
        s_cmp_lt_i32 s52, {mark}
        s_cbranch_scc1 {X}
        s_mov_b64 s[46:47], exec
        s_mov_b64 exec, -1""")
        body()
        a(f"s_mov_b64 exec, s[46:47]\ns_mov_b32 {done}, 1\n{X}:")
    def frags_must(mark, done, body):
        X = a.label("fm")
        a(f"s_cmp_lg_u32 {done}, 0\ns_cbranch_scc1 {X}\ns_movk_i32 s61, {mark}")
        spin_lds(f"v{vLND}", "v4", "s52", "s61")
        body()
        a(f"{X}:")
    def wo_frags():
        for s_ in range(16):
            for h in range(2):
                r = AO + 4*s_ + 2*h
                a(f"ds_read_b64_tr_b16 v[{r}:{r+1}], v8 offset:{4096*s_ + 512*h}")
    if hu:
        a(f"s_lshl_b32 s60, s54, 12\ns_add_u32 s60, s60, {O_H1}")
        spin_lds(f"v{vCNT}", "v4", "s52", 1, off=C_IS)
        notice_load(32, "s60")
        spin_lds(f"v{vLND}", "v4", "s52", "s61")
        wo_frags()
        notice_wait(32, "s60", True, d1)
        stamp(11)
    else:
        if e1:
            spin_lds(f"v{vCNT}", "v4", "s52", 1, off=C_IS)
            h1_loads()
        spin_lds(f"v{vLND}", "v4", "s52", "s61")
        stamp(11); cnt0()
        if not e1: h1_loads()
        wo_frags()
        a(f"s_branch {L1W}")
    a(f"{L1}:")
    h1_loads()
    a(f"{L1W}:")
    for hh in range(2):
        a(f"s_waitcnt vmcnt({4-4*hh})")
        sum4(SO + 4*hh, [GO + 16*hh + 4*k for k in range(4)])
    poison_check(GO, 32, [SO, SO+4], L1, L1D)
    stamp(9); cnt1(12)
    if loc2 == "h1":
        X = a.label("l2")
        a(f"""s_cmp_lg_u32 s3, 0
        s_cbranch_scc1 {X}
        s_getreg_b32 s52, hwreg(HW_REG_XCC_ID, 0, 3)
        s_lshl_b32 s52, s52, 10
        s_lshl_b32 s53, s2, 2
        s_add_u32 s52, s52, s53
        s_add_u32 s52, s52, {O_H2}
        s_mov_b64 exec, 1
        buffer_store_dword v{vTAG}, v7, {WS}, s52 offen {locst}
        s_mov_b64 exec, -1
        {X}:""")
    if hu:
        X = a.label("hu")
        a(f"s_or_b32 s52, s55, s3\ns_cbranch_scc1 {X}")
        notice(f"s_lshl_b32 s53, s54, 7\ns_add_u32 s53, s53, {O_H2}", 8, 1024)
        a(f"{X}:")
    tr4(SO, SO+4)
    a(f"""v_cvt_pk_bf16_f32 v12, v{SO}, v{SO+4}
    ds_write_b16 v6, v12
    ds_write_b16_d16_hi v6, v12 offset:128""")
    barrier(C_P, True)
    if opd == 'h1':
        a(f"""s_lshl_b32 s52, s55, 2
        s_add_u32 s52, s52, s3
        s_mul_i32 s52, s52, 18432
        s_mul_i32 s53, s54, {18*32*1152}
        s_add_u32 s52, s52, s53
        s_mov_b64 exec, -1""")
        srd(36, 20, 21, "18432", "s52")
        a("""v_lshlrev_b32 v98, 7, v1
        v_add_u32 v99, 0x2000, v98
        v_add_u32 v100, 0x4000, v98
        buffer_load_dword v101, v98, s[36:39], 0 offen
        buffer_load_dword v101, v99, s[36:39], 0 offen
        buffer_load_dword v101, v100, s[36:39], 0 offen""")
    for s_ in range(16): a(f"ds_read_b128 v[{BO+4*s_}:{BO+4*s_+3}], v11 offset:{64*s_}")
    for s_ in range(16):
        a(f"s_waitcnt lgkmcnt({15-s_})")
        d = 12 if s_ % 2 == 0 else SO
        c = "0" if s_ < 2 else f"v[{d}:{d+3}]"
        a(f"v_mfma_f32_16x16x32_bf16 v[{d}:{d+3}], v[{AO+4*s_}:{AO+4*s_+3}], v[{BO+4*s_}:{BO+4*s_+3}], {c}")
        if loc2 == s_ + 1:
            X = a.label("l2")
            a(f"""s_cmp_lg_u32 s3, 0
            s_cbranch_scc1 {X}
            s_mov_b64 exec, 1
            buffer_store_dword v{vTAG}, v7, {WS}, s60 offen {locst}
            s_mov_b64 exec, -1
            {X}:""")
    if p2full:
        a(f"""s_lshl_b32 s52, s3, 6
        s_add_u32 s52, s52, {L_HN}
        v_lshl_add_u32 v{vA}, v2, 4, s52
        v_lshlrev_b32 v{vA+1}, 4, v3
        v_add_u32 v{vA+2}, {L_HN}, v{vA+1}
        v_and_b32 v{vA+3}, 1, v2
        s_lshl_b32 s52, s3, 1
        v_add_u32 v{vA+3}, s52, v{vA+3}
        v_mul_u32_u24 v{vA+3}, {P2C}, v{vA+3}
        v_add_u32 v9, v{vA+3}, v{vA+1}
        s_lshl_b32 s52, s3, 6
        s_sub_u32 s59, s59, s52
        s_mov_b32 s50, 0x00010001
        s_mov_b32 s51, 0x00010001
        s_mov_b64 exec, s[50:51]""")
        pk(12, 12, SO); pk(14, 14, SO+2)
        for r in range(4): a(f"v_min_u32 v{12+r}, -2, v{12+r}")
        a(f"""ds_write_b128 v{vA}, v[12:15]
        s_bfm_b64 exec, 32, 0
        s_waitcnt lgkmcnt(0)
        s_barrier
        ds_read_b128 v[12:15], v{vA+2}
        s_waitcnt lgkmcnt(0)
        buffer_store_dwordx4 v[12:15], v9, {WS}, s59 offen sc0 sc1""")
    else:
        a("s_mov_b64 exec, s[50:51]")
        pk(12, 12, SO); pk(14, 14, SO+2)
        for r in range(4): a(f"v_min_u32 v{12+r}, -2, v{12+r}")
        a(f"buffer_store_dwordx4 v[12:15], v9, {WS}, s59 offen sc0 sc1")
    stamp(10)
    if loc2 == "st":
        X = a.label("l2")
        a(f"""s_cmp_lg_u32 s3, 0
        s_cbranch_scc1 {X}
        s_getreg_b32 s52, hwreg(HW_REG_XCC_ID, 0, 3)
        s_lshl_b32 s52, s52, 10
        s_lshl_b32 s53, s2, 2
        s_add_u32 s52, s52, s53
        s_add_u32 s52, s52, {O_H2}
        s_mov_b64 exec, 1
        buffer_store_dword v{vTAG}, v7, {WS}, s52 offen {locst}
        s_mov_b64 exec, -1
        {X}:""")

    if opd == 'p2':
        a(f"""s_lshl_b32 s52, s55, 2
        s_add_u32 s52, s52, s3
        s_mul_i32 s52, s52, 18432
        s_mul_i32 s53, s54, {18*32*1152}
        s_add_u32 s52, s52, s53
        s_mov_b64 exec, -1""")
        srd(36, 20, 21, "18432", "s52")
        a("""v_lshlrev_b32 v4, 7, v1
        v_add_u32 v5, 0x2000, v4
        v_add_u32 v6, 0x4000, v4
        buffer_load_dword v8, v4, s[36:39], 0 offen
        buffer_load_dword v8, v5, s[36:39], 0 offen
        buffer_load_dword v8, v6, s[36:39], 0 offen""")
    a(f"s_branch L_fin")
    a(f"{LNF}:")
    if pf_at == 64: prefetch()
    L3, L3D, L4, L4D = a.label("h3"), a.label("h3d"), a.label("h4"), a.label("h4d")
    a(f"""s_cmp_ge_u32 s2, {ID_R}
    s_cbranch_scc1 L_fin
    s_cmp_lg_u32 s3, 0
    s_cbranch_scc1 L_fin
    s_sub_u32 s52, s2, {ID_O}
    s_mul_i32 s58, s52, 9216
    s_add_u32 s58, s58, {O_P3}
    s_lshl_b32 s59, s52, 6
    s_mul_i32 s52, s54, {P2C}
    s_add_u32 s59, s59, s52
    s_add_u32 s59, s59, {O_P2}
    v_lshrrev_b32 v6, 2, v1
    v_mul_u32_u24 v6, 2304, v6
    v_and_b32 v9, 3, v1
    v_lshl_add_u32 v6, v9, 4, v6
    v_mov_b32 v8, {OOB}
    v_cndmask_b32 v9, v8, v{vXO}, s[44:45]
    v_cmp_gt_u32 vcc, 32, v1
    v_lshlrev_b32 v{vXF}, 16, v{vXF}
    v_cndmask_b32 v6, v8, v6, vcc
    v_lshlrev_b32 v10, 4, v1
    s_lshl_b32 s60, s54, 10
    s_add_u32 s61, s60, {O_H3}
    s_add_u32 s60, s60, {O_H2}""")
    a("s_add_u32 s96, s58, 4096\ns_add_u32 s97, s58, 8192")
    def h3_loads():
        for k in range(9):
            a(f"buffer_load_dwordx4 v[{vG+4*k}:{vG+4*k+3}], v10, {WS}, {['s58', 's96', 's97'][k//4]} offen offset:{1024*(k%4)} sc0 sc1")
    L3W = a.label("h3w")
    if rloc:
        LH, LHD = a.label("lh"), a.label("lhd")
        a(f"""s_getreg_b32 s60, hwreg(HW_REG_XCC_ID, 0, 3)
        s_lshl_b32 s60, s60, 10
        s_add_u32 s60, s60, {O_H3}
        s_movk_i32 s61, 120
        v_lshlrev_b32 v14, 3, v1
        {LH}:
        buffer_load_dwordx2 v[12:13], v14, {WS}, s60 offen offset:512 {locld}
        s_sub_u32 s61, s61, 1
        s_cbranch_scc1 {LHD}
        s_waitcnt vmcnt(0)
        v_cmp_eq_u32 vcc, v12, v{vTAG}
        v_cmp_eq_u32 s[46:47], v13, v{vTAG}
        s_bcnt1_i32_b64 s52, vcc
        s_bcnt1_i32_b64 s53, s[46:47]
        s_add_u32 s52, s52, s53
        s_cmp_lt_u32 s52, {need3}
        s_cbranch_scc1 {LH}
        {LHD}:
        s_mov_b64 exec, -1
        s_waitcnt vmcnt(0)""")
        if dR: a(f"s_sleep {dR}")
        stamp(13)
        L4W = a.label("h4w")
        a(f"buffer_load_dwordx4 v[12:15], v6, {WS}, s59 offen sc0 sc1")
        h3_loads()
        a(f"s_waitcnt vmcnt(9)\ns_branch {L4W}")
    a(f"""{L4}:
    buffer_load_dwordx4 v[12:15], v6, {WS}, s59 offen sc0 sc1
    s_waitcnt vmcnt(0)""")
    if rloc: a(f"{L4W}:")
    poison_check(12, 4, [12], L4, L4D)
    stamp(11)
    tr4(12)
    for m in ("row_ror:8", "row_ror:4"):
        a(f"v_add_f32_dpp v12, v12, v12 {m} row_mask:0xf bank_mask:0xf")
    rnd1("v12")
    a(f"v_add_f32 v11, v12, v{vXF}")
    rnd1("v11")
    cnt0()
    if rloc: a(f"s_branch {L3W}")
    a(f"{L3}:")
    h3_loads()
    a(f"{L3W}:")
    a("s_waitcnt vmcnt(7)")
    pk(12, vG, vG+4); pk(14, vG+2, vG+6)
    for k in range(2, 9):
        a(f"s_waitcnt vmcnt({8-k})")
        pk(12, 12, vG+4*k); pk(14, 14, vG+4*k+2)
    poison_check(vG, 36, [12], L3, L3D)
    stamp(14); cnt1(12)
    tr4(12)
    for m in ("row_ror:8", "row_ror:4"):
        a(f"v_add_f32_dpp v12, v12, v12 {m} row_mask:0xf bank_mask:0xf")
    rnd1("v12")
    if probe:
        srd(36, 8, 9, "0x10000000")
        a("v_mov_b32 v13, 0x300000")
        for k in range(probe): a(f"buffer_load_dword v14, v13, s[36:39], 0 offen nt\ns_waitcnt vmcnt(0)\nv_add_u32 v13, 0x1000100, v13")
    a(f"""v_add_f32 v12, v12, v11
    v_cvt_pk_bf16_f32 v12, v12, v12
    buffer_store_short v12, v9, {OUTS}, 0 offen {outf}
    s_branch L_fin""")
    a(f"{LNO}:")
    AG, AD, DD, SM = 184, 58, 94, 156
    a(f"""v_mul_u32_u24 v10, 2304, v2
    v_lshl_add_u32 v10, v3, 4, v10
    v_mov_b32 v9, {OOB}
    v_cndmask_b32 v11, v9, v10, s[44:45]
    s_mul_i32 s52, s3, 576
    s_mul_i32 s96, s54, {P2C}
    s_add_u32 s96, s96, s52
    s_add_u32 s96, s96, {O_P2}
    s_add_u32 s97, s96, 9216
    s_lshl_b32 s58, s56, 6
    s_mul_i32 s53, s3, {9*9216}
    s_add_u32 s58, s58, s53
    s_add_u32 s58, s58, {O_P3}
    s_mul_i32 s52, s3, 288
    v_lshl_add_u32 v{vA+1}, v{vE}, 1, s52
    v_add_u32 v{vA+1}, {L_HN}, v{vA+1}
    s_lshl_b32 s53, s3, 3
    s_add_u32 s53, s53, {L_ST}
    v_mov_b32 v{vA+2}, s53
    v_mov_b32 v{vA+3}, {L_ST}
    v_lshlrev_b32 v{vA+5}, 4, v2
    v_add_u32 v{vA+4}, {L_HN}, v{vA+5}
    v_mul_u32_u24 v{vA+7}, 9216, v3
    v_add_u32 v{vA+7}, v{vA+7}, v{vA+5}
    v_add_u32 v{vA+5}, {L_ACT}, v{vA+5}
    v_cmp_gt_u32 vcc, 9, v3
    v_lshrrev_b32 v12, 2, v3
    v_lshl_add_u32 v12, v2, 3, v12
    v_cndmask_b32 v{vA+7}, v9, v{vA+7}, vcc
    v_mul_u32_u24 v8, 1152, v12
    v_and_b32 v6, 3, v3
    v_lshl_add_u32 v8, v6, 3, v8
    v_add_u32 v8, {WD_L}, v8
    v_lshrrev_b32 v14, 3, v3
    v_lshlrev_b32 v15, 1, v2
    v_and_b32 v15, 2, v15
    v_or_b32 v14, v14, v15
    v_and_b32 v{vA+6}, 1, v2
    v_lshl_add_u32 v{vA+6}, v{vA+6}, 2, v6
    s_lshl_b32 s52, s3, 4
    s_add_u32 s53, s52, {L_ACT}
    v_lshl_add_u32 v{vA+6}, v{vA+6}, 1, s53
    v_lshlrev_b32 v12, 6, v12
    v_and_b32 v13, 1, v3
    v_lshl_add_u32 v12, v13, 3, v12
    v_and_b32 v15, 2, v3
    v_and_b32 v13, 1, v2
    v_or_b32 v13, v13, v15
    v_xor_b32 v13, s3, v13
    v_lshl_add_u32 v12, v13, 4, v12
    v_mul_u32_u24 v15, {(WU_L - WG_L)//2}, v15
    v_add_u32 v12, {WG_L}, v12
    v_add_u32 v6, v12, v15
    v_lshlrev_b32 v{vXR}, 16, v{vXR}
    v_lshlrev_b32 v{vXR+1}, 16, v{vXR+1}
    v_lshlrev_b32 v{vXR+2}, 16, v{vXR+2}""")
    if levels or pf_at or icw or wt or ct: a("s_waitcnt vmcnt(0)")
    a(f"v_mov_b32 v{vA}, v6\ns_mul_i32 s52, s3, 9")
    for bb in range(0 if cwd else 9):
        a(f"v_xor_b32 v13, s52, v14\nv_lshl_add_u32 v{vQ+bb}, v13, 5, v8")
        if bb < 8: a("s_add_u32 s52, s52, 1")
    def gu_frags():
        for s_ in range(18):
            for h in range(2):
                r = AG + 4*s_ + 2*h
                a(f"ds_read_b64_tr_b16 v[{r}:{r+1}], v{vA} offset:{2048*s_ + 256*h}")
        stamp(9)
    def wd_frags():
        for bb in range(9):
            for h in range(2):
                r = AD + 4*bb + 2*h
                if cwd: a(f"ds_read_b64_tr_b16 v[{r}:{r+1}], v{vQ+9} offset:{32*bb + 2304*h}")
                else: a(f"ds_read_b64_tr_b16 v[{r}:{r+1}], v{vQ+bb} offset:{4608*h}")
        stamp(10)
    L2, L2D = a.label("h2"), a.label("h2d")
    L2W = a.label("h2w")
    def h2_loads():
        for i in range(3):
            for j in range(2):
                r = vG + 8*i + 4*j
                a(f"buffer_load_dwordx4 v[{r}:{r+3}], v{10 + (i == 2)}, {WS}, s{96+j} offen offset:{256*i} sc0 sc1")
    a(f"s_lshl_b32 s60, s54, 10\ns_add_u32 s60, s60, {O_H2}")
    assert not hu
    if order == "dg":
        a(f"s_movk_i32 s61, {MK_D}")
        spin_lds(f"v{vLND}", "v4", "s52", "s61")
        wd_frags()
        a(f"s_movk_i32 s61, {MK_G}")
        spin_lds(f"v{vLND}", "v4", "s52", "s61")
        cnt0()
        first, last = None, gu_frags
    elif cwd:
        a(f"s_mul_i32 s52, s56, {32*1152}")
        srd(36, 20, 21, str(32*1152), "s52")
        a(f"""s_mul_i32 s60, s3, 288
        s_mul_i32 s59, s3, 9216
        s_add_u32 s59, s59, {WD_L}""")
        for i in range(9):
            a(f"""v_add_u32 v12, {64*i}, v1
            v_mul_u32_u24 v13, 3641, v12
            v_lshrrev_b32 v13, 16, v13
            v_mul_u32_u24 v14, 18, v13
            v_sub_u32 v14, v12, v14
            v_mul_u32_u24 v13, 1152, v13
            v_lshl_add_u32 v{vQ+i}, v14, 4, v13""")
            if i % 4: a(f"v_subrev_u32 v{vQ+i}, {1024*(i%4)}, v{vQ+i}")
        a(f"""v_lshrrev_b32 v12, 1, v2
        v_lshlrev_b32 v12, 4, v12
        v_and_b32 v13, 1, v2
        v_lshl_add_u32 v12, v13, 2, v12
        v_lshrrev_b32 v14, 2, v3
        v_add_u32 v12, v12, v14
        v_mul_u32_u24 v12, 288, v12
        v_and_b32 v14, 3, v3
        v_lshl_add_u32 v12, v14, 3, v12
        v_add_u32 v{vQ+9}, s59, v12
        s_lshr_b32 s52, s3, 1
        s_lshl_b32 s52, s52, 5
        s_and_b32 s53, s3, 1
        s_lshl_b32 s53, s53, 3
        s_add_u32 s52, s52, s53
        s_add_u32 s52, s52, {L_ACT}
        v_lshl_add_u32 v13, v13, 3, v14
        v_lshl_add_u32 v{vA+6}, v13, 1, s52""")
        spin_lds(f"v{vCNT}", "v4", "s52", 4, off=C_O)
        a(f"s_movk_i32 s61, {MK_G}")
        spin_lds(f"v{vLND}", "v4", "s52", "s61")
        cnt0()
        last = gu_frags
    else:
        a(f"s_movk_i32 s61, {MK_G}")
        spin_lds(f"v{vLND}", "v4", "s52", "s61")
        gu_frags()
        if e2:
            spin_lds(f"v{vCNT}", "v4", "s52", 1, off=C_IS)
            h2_loads()
        a(f"s_movk_i32 s61, {MK_D}")
        spin_lds(f"v{vLND}", "v4", "s52", "s61")
        cnt0()
        last = wd_frags
    assert not ndef
    if loc2:
        LH, LHD, LHC = a.label("lh"), a.label("lhd"), a.label("lhc")
        a(f"""s_getreg_b32 s63, hwreg(HW_REG_XCC_ID, 0, 3)
        s_lshl_b32 s63, s63, 10
        s_add_u32 s63, s63, {O_H2}
        s_movk_i32 s61, 100
        v_lshlrev_b32 v13, 2, v1
        buffer_load_dword v12, v13, {WS}, s63 offen {locld}""")
        last()
        a(f"""s_branch {LHC}
        {LH}:
        buffer_load_dword v12, v13, {WS}, s63 offen {locld}
        {LHC}:
        s_sub_u32 s61, s61, 1
        s_cbranch_scc1 {LHD}
        s_waitcnt vmcnt(0)
        v_cmp_eq_u32 vcc, v12, v{vTAG}
        s_bcnt1_i32_b64 s52, vcc
        s_cmp_lt_u32 s52, {need2}
        s_cbranch_scc1 {LH}
        {LHD}:
        s_mov_b64 exec, -1""")
        if d2l: a(f"s_sleep {d2l}")
        h2_loads()
    else:
        if not e2: h2_loads()
        last()
    def h2_sums(extra):
        for i in range(3):
            a(f"s_waitcnt vmcnt({4-2*i+extra})")
            sum4(SM + 4*i, [vG + 8*i + 4*j for j in range(2)])
    def wd_dma(which=range(9)):
        for i in which:
            if i % 4 == 0: a(f"s_mov_b32 m0, s59\ns_add_u32 s59, s59, 4096")
            a(f"buffer_load_dwordx4 v{vQ+i}, s[36:39], s60 offen offset:{1024*(i%4)} {polW} lds")
    a(f"s_branch {L2W}")
    a(f"{L2}:")
    h2_loads()
    a(f"{L2W}:")
    h2_sums(0)
    poison_check(vG, 24, [SM, SM+4, SM+8], L2, L2D)
    stamp(11); cnt1(1)
    if cwd and wdat == 'h2': wd_dma()
    tr4(SM, SM+4, SM+8)
    H0, H1, H2 = f"v{SM}", f"v{SM+4}", f"v{SM+8}"
    rnd2(H0, H1, "v4"); rnd1(H2)
    a(f"v_add_f32 {H0}, {H0}, v{vXR}\nv_add_f32 {H1}, {H1}, v{vXR+1}\nv_add_f32 {H2}, {H2}, v{vXR+2}")
    rnd2(H0, H1, "v4"); rnd1(H2)
    a(f"""v_readfirstlane_b32 s53, {H0}
    v_subrev_f32 v8, s53, {H0}
    v_subrev_f32 v9, s53, {H1}
    v_subrev_f32 v10, s53, {H2}
    v_mul_f32 v5, v8, v8
    v_add_f32 v4, v8, v9
    v_cndmask_b32 v10, v7, v10, s[44:45]
    v_fmac_f32 v5, v9, v9
    v_add_f32 v4, v4, v10
    v_fmac_f32 v5, v10, v10""")
    red63("v_add_f32", "v4", "v5")
    a(f"""v_readlane_b32 s46, v4, 63
    v_readlane_b32 s47, v5, 63
    v_mov_b32 v8, {fhex(1/144)}
    v_mul_f32 v8, s46, v8
    v_mov_b32 v9, s47
    v_fma_f32 v9, -v8, s46, v9
    v_add_f32 v8, s53, v8
    s_mov_b64 exec, 1
    ds_write_b64 v{vA+2}, v[8:9]""")
    if cwd and wdat == 'st2':
        a("s_mov_b64 exec, -1"); wd_dma()
    barrier(C_ST, not ndef)
    if ndef: one(f"ds_write_b32 v{vCNT}, v{vONE} offset:{C_WD}")
    a(f"""ds_read_b128 v[{vG}:{vG+3}], v{vA+3}
    ds_read_b128 v[{vG+4}:{vG+7}], v{vA+3} offset:16""")
    if cwd and wdat == 'st': wd_dma()
    a(f"""s_waitcnt lgkmcnt(0)
    v_pk_add_f32 v[8:9], v[{vG}:{vG+1}], v[{vG+2}:{vG+3}]
    v_pk_add_f32 v[10:11], v[{vG+4}:{vG+5}], v[{vG+6}:{vG+7}]
    v_pk_add_f32 v[8:9], v[8:9], v[10:11]
    v_mul_f32 v8, 0x3e800000, v8
    v_sub_f32 v{vG}, v{vG}, v8
    v_sub_f32 v{vG+2}, v{vG+2}, v8
    v_sub_f32 v{vG+4}, v{vG+4}, v8
    v_sub_f32 v{vG+6}, v{vG+6}, v8
    v_mul_f32 v10, v{vG}, v{vG}
    v_fmac_f32 v10, v{vG+2}, v{vG+2}
    v_fmac_f32 v10, v{vG+4}, v{vG+4}
    v_fmac_f32 v10, v{vG+6}, v{vG+6}
    v_fmac_f32 v9, {fhex(144.0)}, v10
    v_mul_f32 v9, {fhex(1/576)}, v9""")
    ln_scale("v8", "v9", "v10")
    for H in (H0, H1, H2): a(f"v_sub_f32 {H}, {H}, v8")
    rnd2(H0, H1, "v4"); rnd1(H2)
    for H in (H0, H1, H2): a(f"v_mul_f32 {H}, {H}, v9")
    a(f"""v_cvt_pk_bf16_f32 v12, {H0}, {H1}
    v_cvt_pk_bf16_f32 v13, {H2}, {H2}
    ds_write_b16 v{vA+1}, v12
    ds_write_b16_d16_hi v{vA+1}, v12 offset:128
    s_mov_b64 exec, s[44:45]
    ds_write_b16 v{vA+1}, v13 offset:256
    s_mov_b32 s46, 0x22222222
    s_mov_b32 s47, 0x22222222
    s_mov_b32 s48, 0xcccccccc
    s_mov_b32 s49, 0xcccccccc
    s_mov_b32 s50, 0x88888888
    s_mov_b32 s51, 0x88888888
    s_mov_b64 exec, -1""")
    if cwd and wdat == 'hn2': wd_dma()
    barrier(C_HN, not ndef)
    stamp(12)
    BG = vG
    for s_ in range(18): a(f"ds_read_b128 v[{BG+4*s_}:{BG+4*s_+3}], v{vA+4} offset:{64*s_}")
    a(f"v_mov_b32 v6, {fhex(0.044715)}")
    for s_ in range(18):
        a(f"s_waitcnt lgkmcnt({min(15, 17-s_)})")
        if cwd and wdat == 'hn' and 1 <= s_ <= 9: wd_dma([s_ - 1])
        if cwd and s_ == 17 and wdfr == 'mfma':
            a("s_waitcnt vmcnt(0)"); wd_frags()
        d = 12 if s_ % 2 == 0 else 8
        c = "0" if s_ < 2 else f"v[{d}:{d+3}]"
        a(f"v_mfma_f32_16x16x32_bf16 v[{d}:{d+3}], v[{AG+4*s_}:{AG+4*s_+3}], v[{BG+4*s_}:{BG+4*s_+3}], {c}")
        if hu and s_ + 1 == hu3:
            X = a.label("hu")
            a(f"s_cmp_lg_u32 s55, 31\ns_cbranch_scc1 {X}\ns_cmp_lg_u32 s3, 0\ns_cbranch_scc1 {X}")
            notice(f"s_lshl_b32 s53, s54, 7\ns_add_u32 s53, s53, {O_H3}", 8, 1024)
            a(f"{X}:")
    K0 = (2/3.141592653589793)**0.5
    pk(12, 12, 8); pk(14, 14, 10)
    a(f"""v_cndmask_b32 v12, v12, v13, s[46:47]
    v_cndmask_b32 v14, v14, v15, s[50:51]
    v_cndmask_b32 v12, v12, v14, s[48:49]""")
    rnd1("v12")
    a(f"""v_mov_b32 v13, v12
    v_permlane32_swap_b32 v12, v13
    v_mul_f32 v8, v12, v12
    v_mul_f32 v8, v8, v12
    v_fma_f32 v8, v8, v6, v12
    v_mul_f32 v8, {fhex(-2*K0*1.4426950408889634)}, v8
    v_exp_f32 v8, v8
    v_add_f32 v8, 1.0, v8
    v_rcp_f32 v8, v8
    v_mul_f32 v12, v12, v8""")
    rnd1("v12")
    a(f"""v_mul_f32 v12, v12, v13
    v_cvt_pk_bf16_f32 v12, v12, v12
    s_mov_b64 exec, 0x000f000f
    ds_write_b16 v{vA+6}, v12
    s_mov_b32 s46, 0x00010001
    s_mov_b32 s47, 0x00010001
    s_mov_b64 exec, -1""")
    if ndef:
        a(f"s_movk_i32 s61, 260")
        spin_lds(f"v{vLND}", "v4", "s52", "s61")
        wd_frags()
    if cwd and wdfr == 'act':
        a("s_waitcnt vmcnt(0)"); wd_frags()
    barrier(C_ACT, True)
    stamp(13)
    def hint3():
        X = a.label("l3")
        a(f"""s_cmp_lg_u32 s3, 0
        s_cbranch_scc1 {X}
        s_getreg_b32 s52, hwreg(HW_REG_XCC_ID, 0, 3)
        s_lshl_b32 s52, s52, 10
        s_lshl_b32 s53, s2, 2
        s_add_u32 s52, s52, s53
        s_add_u32 s52, s52, {O_H3}
        s_mov_b64 exec, 1
        buffer_store_dword v{vTAG}, v7, {WS}, s52 offen {locst}
        s_mov_b64 exec, -1
        {X}:""")
    a(f"ds_read_b128 v[12:15], v{vA+5}")
    if loc3 == 'act': hint3()
    a("s_waitcnt lgkmcnt(0)")
    if sel:
        for bb in range(9):
            D = DD if bb == 0 else vG + 4*bb
            a(f"v_mfma_f32_16x16x32_bf16 v[{D}:{D+3}], v[{AD+4*bb}:{AD+4*bb+3}], v[12:15], 0")
        if loc3 == 'mfma': hint3()
        for bb in range(1, 9):
            D = vG + 4*bb
            a(f"""s_lshl_b64 exec, s[46:47], {bb}
            v_pk_mov_b32 v[{DD}:{DD+1}], v[{D}:{D+1}], v[{D}:{D+1}] op_sel:[0,1]
            v_pk_mov_b32 v[{DD+2}:{DD+3}], v[{D+2}:{D+3}], v[{D+2}:{D+3}] op_sel:[0,1]""")
        a("s_mov_b64 exec, -1")
    else:
        def onehot(bb):
            B = vG + 4*bb
            for r in range(4): a(f"v_cndmask_b32 v{B+r}, v7, v{12+r}, s[46:47]")
            if bb < 8: a("s_lshl_b64 s[46:47], s[46:47], 1")
        onehot(0)
        for bb in range(9):
            if bb < 8: onehot(bb + 1)
            B = vG + 4*bb
            c = "0" if bb == 0 else f"v[{DD}:{DD+3}]"
            a(f"v_mfma_f32_16x16x32_bf16 v[{DD}:{DD+3}], v[{AD+4*bb}:{AD+4*bb+3}], v[{B}:{B+3}], {c}")
    for r in range(4): a(f"v_min_u32 v{DD+r}, -2, v{DD+r}")
    a(f"buffer_store_dwordx4 v[{DD}:{DD+3}], v{vA+7}, {WS}, s58 offen sc0 sc1")
    stamp(14)
    if rloc and not loc3:
        a(f"""s_cmp_lg_u32 s3, 0
        s_cbranch_scc1 L_fin
        s_getreg_b32 s52, hwreg(HW_REG_XCC_ID, 0, 3)
        s_lshl_b32 s52, s52, 10
        s_lshl_b32 s53, s2, 2
        s_add_u32 s52, s52, s53
        s_add_u32 s52, s52, {O_H3}
        s_mov_b64 exec, 1
        buffer_store_dword v{vTAG}, v7, {WS}, s52 offen {locst}""")
    a("L_fin:")
    if diag:
        stamp(15)
        a(f"""s_add_u32 s26, s26, 0x20000000
        s_addc_u32 s27, s27, 0
        v_lshrrev_b32 v2, 6, v0
        v_mov_b32 v3, s2
        v_mul_u32_u24 v3, 5, v3
        v_add_u32 v3, v3, v2
        v_lshlrev_b32 v3, 7, v3
        s_waitcnt lgkmcnt(0)
        s_mov_b64 exec, 1""")
        for i in range(NST):
            a(f"v_mov_b32 v4, s{ST0+2*i}\nv_mov_b32 v5, s{ST0+2*i+1}\nglobal_store_dwordx2 v3, v[4:5], s[26:27] offset:{8*i}\ns_nop 1")
    a(f"""L_end:
    s_endpgm
    .section .rodata,"a"
    .p2align 6
    .amdhsa_kernel {KN}_kernel
    .amdhsa_next_free_vgpr 256
    .amdhsa_next_free_sgpr 102
    .amdhsa_accum_offset 256
    .amdhsa_group_segment_fixed_size 0
    .amdhsa_kernarg_size 96
    .amdhsa_user_sgpr_count 2
    .amdhsa_user_sgpr_kernarg_segment_ptr 1
    .amdhsa_system_sgpr_workgroup_id_x 1
    .amdhsa_float_denorm_mode_32 3
    .end_amdhsa_kernel""")
    a.lines = [l.replace('sc0 sc1', sc) for l in a.lines]
    a.lines, n = pad(a.lines)
    return a.text()

if __name__ == "__main__":
    import ast
    out = sys.argv[1]
    kw = {}
    for x in sys.argv[2:]:
        k, v = x.split("="); kw[k] = ast.literal_eval(v)
    open(out, "w").write(gen(**kw))
```
